```python
import torch

def _softmax(x, axis=-1):
    return torch.softmax(x, dim=axis)

def _gelu(x):
    return torch.nn.functional.gelu(x, approximate='tanh')

def _silu(x):
    return torch.nn.functional.silu(x)

def _sigmoid(x):
    return torch.sigmoid(x)

def _layernorm(x, axis=-1, eps=1e-05):
    m = x.mean(dim=axis, keepdim=True)
    v = x.var(dim=axis, keepdim=True, unbiased=False)
    return (x - m) / torch.sqrt(v + eps)

def _scatter_add(tgt, idx, src, axis=0):
    return tgt.clone().index_add_(axis, idx, src)

def _segment_sum(src, seg, n):
    out = torch.zeros((n,) + src.shape[1:], dtype=src.dtype)
    return out.index_add_(0, seg, src)

def _pad(x, pw):
    flat = tuple((v for pair in reversed(pw) for v in pair))
    return torch.nn.functional.pad(x, flat)
kernel_name = 'standalone__tensor_product_equiv_equiformer__graph'

def setup_inputs():

    _w = lambda a: (lambda t: t.to(torch.bfloat16) if t.is_floating_point() else t)(torch.as_tensor(a))
    N, deg, C, De = (25000, 32, 64, max(0, 1))
    E = N * deg
    src = (lambda lo, hi, *s: torch.randint(lo, hi, s))(0, N, E).to(torch.int64)
    dst = (lambda lo, hi, *s: torch.randint(lo, hi, s))(0, N, E).to(torch.int64)
    rvec = (lambda *s: torch.randn(*s, dtype=torch.bfloat16) * 0.05)(E, 3).to(float)
    rn = (torch.linalg.norm(rvec, dim=-1, keepdim=True) + 1e-06).to(float)
    rhat = (rvec / rn).to(float)
    eps = torch.zeros((3, 3, 3), dtype=float)
    eps[0, 1, 2] = eps[1, 2, 0] = eps[2, 0, 1] = 1.0
    eps[0, 2, 1] = eps[2, 1, 0] = eps[1, 0, 2] = -1.0
    return {'x': _w((lambda *s: torch.randn(*s, dtype=torch.bfloat16) * 0.4)(N, 4 * C).to(float)), 'rhat': _w(rhat), 'e_attr': _w((lambda *s: torch.randn(*s, dtype=torch.bfloat16) * 0.4)(E, De).to(float)), 'src': _w(src), 'dst': _w(dst), 'w_rad': _w((lambda *s: torch.randn(*s, dtype=torch.bfloat16) * 0.4)(De, 5 * C).to(float)), 'w_si0': _w((lambda *s: torch.randn(*s, dtype=torch.bfloat16) * 0.4)(2 * C, C).to(float)), 'w_si1': _w((lambda *s: torch.randn(*s, dtype=torch.bfloat16) * 0.05)(3 * C, C).to(float)), 'cg_eps': _w(eps)}

def reference(x, rhat, e_attr, src, dst, w_rad, w_si0, w_si1, cg_eps):
    N = x.shape[0]
    C = w_si0.shape[1]
    E = rhat.shape[0]
    x0 = x[:, :C].clone()
    x1 = x[:, C:].reshape(N, 3, C)
    R = (e_attr @ w_rad).reshape(E, 5, C)
    f0 = x0[src]
    f1 = x1[src]
    Y1 = rhat
    p00_0 = f0 * R[:, 0, :]
    p11_0 = torch.einsum('ejc,ej->ec', f1, Y1) * R[:, 1, :]
    p01_1 = torch.einsum('ec,ej->ejc', f0, Y1) * R[:, 2, :][:, None, :]
    p10_1 = f1 * R[:, 3, :][:, None, :]
    p11_1 = torch.einsum('ijk,ekc,ej->eic', cg_eps, f1, Y1) * R[:, 4, :][:, None, :]
    m0 = torch.concatenate([p00_0, p11_0], axis=-1) @ w_si0
    m1 = torch.einsum('ejp,pc->ejc', torch.concatenate([p01_1, p10_1, p11_1], axis=-1), w_si1)
    agg0 = _segment_sum(m0, dst, N)
    agg1 = _segment_sum(m1.reshape(E, 3 * C), dst, N).reshape(N, 3, C)
    gate = _sigmoid(agg0)
    out1 = agg1 * gate[:, None, :]
    return torch.concatenate([agg0, out1.reshape(N, 3 * C)], axis=-1)
```

```python
import sys, argparse

NAME = "standalone__tensor_product_equiv_equiformer__graph"
N = 25000
E = 800000
CH = 3200
NCHUNK = 250
BN = 98
NB = 256
NG = 14
GN = 7
K1_BS = 832
K1_WWG = 10
CAP = 3584

WS_REC = 0
WS_SEG = 0x930000
WS_WF = 0x980000

L_COEF = 0
L_META = CAP * 8
L_HIST = L_META + CAP * 4
L_BASE = L_HIST + 1024
L_STG = 45056
L_SBUF = L_STG + NG * 4096
L_FLAG = L_SBUF + 4 * 112 * 128
K2_LDS = L_FLAG + 256
ST = 112 * 128

K1_HIST = 0
K1_BASE = 1024
K1_REC = 4096
K1_LDS = K1_REC + CH * 12


class Asm:
    def __init__(self):
        self.l = []
    def __call__(self, s):
        for ln in s.strip("\n").split("\n"):
            self.l.append("    " + ln.strip() if not ln.strip().endswith(":") else ln.strip())
    def text(self):
        return "\n".join(self.l) + "\n"


def wave_scan(A, v):
    for sh in (1, 2, 4, 8):
        A("s_nop 1")
        A(f"v_add_u32_dpp v{v}, v{v}, v{v} row_shr:{sh} row_mask:0xf bank_mask:0xf bound_ctrl:0")
    A("s_nop 1")
    A(f"v_add_u32_dpp v{v}, v{v}, v{v} row_bcast:15 row_mask:0xa bank_mask:0xf")
    A("s_nop 1")
    A(f"v_add_u32_dpp v{v}, v{v}, v{v} row_bcast:31 row_mask:0xc bank_mask:0xf")


def srd(A, d, lo, hi, nbytes):
    A(f"s_mov_b32 s{d}, s{lo}")
    A(f"s_and_b32 s{d+1}, s{hi}, 0xffff")
    A(f"s_mov_b32 s{d+2}, {nbytes}")
    A(f"s_mov_b32 s{d+3}, 0x00020000")


def gen_k1(opt):
    A = Asm()
    k = "tp_sort_kernel"
    A(f".globl {k}\n.p2align 8\n.type {k},@function\n{k}:")
    A(f"s_cmp_ge_u32 s2, {NCHUNK + K1_WWG}")
    A("s_cbranch_scc1 K1_END")
    A("s_load_dwordx8 s[8:15], s[0:1], 0x0")
    A("s_load_dwordx8 s[16:23], s[0:1], 0x20")
    A("s_load_dwordx2 s[24:25], s[0:1], 0x40")
    A("s_load_dwordx2 s[26:27], s[0:1], 0x58")
    A(f"s_cmp_ge_u32 s2, {NCHUNK}")
    A("s_cbranch_scc1 K1_WEIGHTS")
    A("v_lshlrev_b32 v1, 2, v0")
    A("v_mov_b32 v2, 0")
    A("ds_write_b32 v1, v2")
    A(f"s_mul_i32 s3, s2, {CH*4}")
    A("v_lshlrev_b32 v3, 4, v0")
    A("v_add_u32 v3, s3, v3")
    A("v_lshrrev_b32 v4, 1, v3")
    A("v_add_u32 v5, v3, v4")
    A(f"v_cmp_gt_u32 vcc, {CH//4}, v0")
    A("s_waitcnt lgkmcnt(0)")
    A("s_and_saveexec_b64 s[28:29], vcc")
    A("s_mov_b64 s[30:31], exec")
    A("global_load_dwordx4 v[8:11], v3, s[16:17]")
    A("global_load_dwordx4 v[12:15], v3, s[14:15]")
    A("global_load_dwordx2 v[16:17], v4, s[12:13]")
    A("global_load_dwordx4 v[18:21], v5, s[10:11]")
    A("global_load_dwordx2 v[22:23], v5, s[10:11] offset:16")
    A("s_mov_b64 exec, s[28:29]")
    nx = 0
    if opt.xpf1:
        A("s_mul_i32 s3, s2, 51200")
        A("v_lshlrev_b32 v6, 7, v0")
        A("v_add_u32 v6, s3, v6")
        A("v_cmp_gt_u32 vcc, 400, v0")
        A("s_and_saveexec_b64 s[28:29], vcc")
        A("s_cbranch_execz K1_NOPF")
        A("global_load_dword v7, v6, s[8:9]")
        A("K1_NOPF:")
        A("s_mov_b64 exec, s[28:29]")
        nx = 1
    A("s_barrier")
    A("s_mov_b64 exec, s[30:31]")
    A("s_mov_b32 s4, 42800")
    A("s_movk_i32 s5, 147")
    A("v_mov_b32 v60, 1")
    A(f"s_waitcnt vmcnt(4)" if not nx else "s_waitcnt vmcnt(4)")
    if nx:
        pass
    for i in range(4):
        A(f"v_mul_u32_u24 v{24+i}, s4, v{8+i}")
        A(f"v_lshrrev_b32 v{24+i}, 22, v{24+i}")
        A(f"v_lshlrev_b32 v{28+i}, 2, v{24+i}")
        A(f"ds_add_rtn_u32 v{32+i}, v{28+i}, v60")
    for i in range(4):
        A(f"v_mul_u32_u24 v{36+i}, {BN}, v{24+i}")
        A(f"v_sub_u32 v{36+i}, v{8+i}, v{36+i}")
        A(f"v_mul_u32_u24 v{40+i}, s5, v{36+i}")
        A(f"v_lshrrev_b32 v{40+i}, 10, v{40+i}")
        A(f"v_mul_u32_u24 v{44+i}, {GN}, v{40+i}")
        A(f"v_sub_u32 v{44+i}, v{36+i}, v{44+i}")
    A("s_waitcnt vmcnt(3)" if not nx else "s_waitcnt vmcnt(3)")
    for i in range(4):
        A(f"v_mul_u32_u24 v{36+i}, 41, v{12+i}")
        A(f"v_lshrrev_b32 v{36+i}, 16, v{36+i}")
        A(f"v_lshl_add_u32 v{36+i}, v{40+i}, 4, v{36+i}")
        A(f"v_lshl_or_b32 v{36+i}, v{36+i}, 16, v{12+i}")
        A(f"v_lshl_or_b32 v{36+i}, v{44+i}, 26, v{36+i}")
    if nx:
        A("v_readfirstlane_b32 s6, v0")
        A("s_nop 3")
        A("s_cmp_lt_u32 s6, 400")
        A("s_cbranch_scc1 K1_W1")
        A("s_waitcnt vmcnt(0)")
        A("K1_W1:")
        A("s_waitcnt vmcnt(1)")
    else:
        A("s_waitcnt vmcnt(0)")
    A("s_mov_b32 s7, 0xffff0000")
    A("v_lshlrev_b32 v40, 16, v16")
    A("v_and_b32 v41, s7, v16")
    A("v_lshlrev_b32 v42, 16, v17")
    A("v_and_b32 v43, s7, v17")
    for i in range(4):
        for j in range(3):
            h = 3 * i + j
            reg = 18 + h // 2
            if h % 2 == 0:
                A(f"v_lshlrev_b32 v{44+j}, 16, v{reg}")
            else:
                A(f"v_and_b32 v{44+j}, s7, v{reg}")
            A(f"v_mul_f32 v{44+j}, v{40+i}, v{44+j}")
        A(f"v_cvt_pk_bf16_f32 v{48+2*i}, v{40+i}, v44")
        A(f"v_cvt_pk_bf16_f32 v{49+2*i}, v45, v46")
    A("s_mov_b64 exec, -1")
    A("s_waitcnt lgkmcnt(0)")
    A("s_barrier")
    A("v_and_b32 v1, 63, v0")
    A("v_lshlrev_b32 v1, 4, v1")
    A(f"ds_read_b128 v[8:11], v1 offset:{K1_HIST}")
    A("s_waitcnt lgkmcnt(0)")
    A("v_add_u32 v12, v8, v9")
    A("v_add_u32 v13, v12, v10")
    A("v_add_u32 v14, v13, v11")
    A("v_mov_b32 v15, v14")
    wave_scan(A, 15)
    A("v_sub_u32 v16, v15, v14")
    A("v_add_u32 v17, v16, v8")
    A("v_add_u32 v18, v16, v12")
    A("v_add_u32 v19, v16, v13")
    A(f"ds_write_b128 v1, v[16:19] offset:{K1_BASE}")
    A("v_readfirstlane_b32 s6, v0")
    A("s_nop 3")
    A("s_cmp_lg_u32 s6, 0")
    A("s_cbranch_scc1 K1_NOSEG")
    for i in range(4):
        A(f"v_lshl_or_b32 v{20+i}, v{8+i}, 16, v{16+i}")
    A("s_lshl_b32 s3, s2, 10")
    A(f"s_add_u32 s3, s3, {WS_SEG}")
    A("v_add_u32 v2, s3, v1")
    A("global_store_dwordx4 v2, v[20:23], s[26:27]")
    A("K1_NOSEG:")
    A("s_mov_b64 exec, s[30:31]")
    for i in range(4):
        A(f"ds_read_b32 v{24+i}, v{28+i} offset:{K1_BASE}")
    for i in range(4):
        A(f"s_waitcnt lgkmcnt({3-i})")
        A(f"v_add_u32 v{24+i}, v{24+i}, v{32+i}")
        A(f"v_mul_u32_u24 v{24+i}, 12, v{24+i}")
        A(f"v_add_u32 v{24+i}, {K1_REC}, v{24+i}")
    for i in range(4):
        A(f"ds_write2_b32 v{24+i}, v{48+2*i}, v{49+2*i} offset1:1")
        A(f"ds_write_b32 v{24+i}, v{36+i} offset:8")
    A("s_mov_b64 exec, -1")
    A("s_waitcnt lgkmcnt(0)")
    A("s_barrier")
    A("v_lshlrev_b32 v1, 4, v0")
    A(f"s_mul_i32 s3, s2, {CH*12}")
    A("v_add_u32 v2, s3, v1")
    st = K1_BS * 16
    A(f"ds_read_b128 v[8:11], v1 offset:{K1_REC}")
    A(f"ds_read_b128 v[12:15], v1 offset:{K1_REC + st}")
    A(f"ds_read_b128 v[16:19], v1 offset:{K1_REC + 2*st}")
    A(f"v_add_u32 v3, {st}, v2")
    A(f"v_add_u32 v4, {2*st}, v2")
    A("s_waitcnt lgkmcnt(2)")
    A("global_store_dwordx4 v2, v[8:11], s[26:27]")
    A("s_waitcnt lgkmcnt(1)")
    A("global_store_dwordx4 v3, v[12:15], s[26:27]")
    A(f"v_cmp_gt_u32 vcc, {CH*12//16 - 2*K1_BS}, v0")
    A("s_and_saveexec_b64 s[28:29], vcc")
    A("s_cbranch_execz K1_END")
    A("s_waitcnt lgkmcnt(0)")
    A("global_store_dwordx4 v4, v[16:19], s[26:27]")
    A("s_endpgm")

    A("K1_WEIGHTS:")
    A(f"s_sub_u32 s3, s2, {NCHUNK}")
    A(f"s_mul_i32 s3, s3, {K1_BS}")
    A("v_add_u32 v1, s3, v0")
    A("s_nop 0")
    A("v_readfirstlane_b32 s4, v1")
    A("s_nop 3")
    A("s_cmp_ge_u32 s4, 8192")
    A("s_cbranch_scc1 K1_END")
    A("s_lshr_b32 s5, s4, 11")
    A("s_bfe_u32 s6, s4, 0x20009")
    A("s_bfe_u32 s7, s4, 0x20007")
    A("s_bfe_u32 s28, s4, 0x10006")
    A("s_mov_b32 s29, 4")
    A("s_cmp_eq_u32 s5, s7")
    A("s_cselect_b32 s29, 3, s29")
    A("s_cmp_eq_u32 s7, 0")
    A("s_cselect_b32 s29, 2, s29")
    A("s_cselect_b32 s30, 0, 1")
    A("s_cmp_eq_u32 s5, 0")
    A("s_cselect_b32 s29, s30, s29")
    A("s_waitcnt lgkmcnt(0)")
    A("s_cmp_lt_u32 s29, 2")
    A("s_cselect_b32 s32, s20, s22")
    A("s_cselect_b32 s33, s21, s23")
    A("s_cselect_b32 s30, 0, 2")
    A("s_sub_u32 s30, s29, s30")
    A("s_lshl_b32 s30, s30, 13")
    A("v_and_b32 v2, 15, v0")
    A("v_bfe_u32 v3, v0, 4, 2")
    A("s_lshl_b32 s31, s28, 2")
    A("v_lshl_add_u32 v4, v3, 4, s31")
    A("s_lshl_b32 s34, s6, 5")
    A("s_add_u32 s34, s34, s30")
    A("v_lshlrev_b32 v5, 7, v4")
    A("v_lshl_add_u32 v5, v2, 1, v5")
    A("v_add_u32 v5, s34, v5")
    for e in range(8):
        off = (8 * (e >> 2) + (e & 3)) * 128
        A(f"global_load_ushort v{8+e}, v5, s[32:33] offset:{off}")
    A("s_lshl_b32 s34, s29, 7")
    A("v_lshl_add_u32 v6, v4, 1, s34")
    A("global_load_dwordx2 v[16:17], v6, s[18:19]")
    A("global_load_dwordx2 v[18:19], v6, s[18:19] offset:16")
    A("s_xor_b32 s35, s5, s7")
    A("s_mul_i32 s36, s5, 9")
    A("s_mul_i32 s37, s35, 3")
    A("s_add_u32 s36, s36, s37")
    A("s_add_u32 s36, s36, s7")
    A("s_sub_u32 s36, s36, 13")
    A("s_cmp_eq_u32 s29, 4")
    A("s_cselect_b32 s36, s36, 0")
    A("s_lshl_b32 s36, s36, 1")
    A("v_mov_b32 v7, s36")
    A("global_load_ushort v20, v7, s[24:25]")
    A("s_waitcnt vmcnt(0)")
    A("v_lshlrev_b32 v20, 16, v20")
    A("s_cmp_eq_u32 s29, 4")
    A("s_cselect_b64 vcc, -1, 0")
    A("v_mov_b32 v21, 1.0")
    A("v_cndmask_b32 v20, v21, v20, vcc")
    A("s_mov_b32 s7, 0xffff0000")
    for e in range(8):
        reg = 16 + e // 2
        if e % 2 == 0:
            A(f"v_lshlrev_b32 v22, 16, v{reg}")
        else:
            A(f"v_and_b32 v22, s7, v{reg}")
        A(f"v_lshlrev_b32 v{8+e}, 16, v{8+e}")
        A(f"v_mul_f32 v22, v22, v20")
        A(f"v_mul_f32 v{8+e}, v{8+e}, v22")
    for d in range(4):
        A(f"v_cvt_pk_bf16_f32 v{24+d}, v{8+2*d}, v{9+2*d}")
    A("v_lshlrev_b32 v1, 4, v1")
    A(f"v_add_u32 v1, {WS_WF}, v1")
    A("global_store_dwordx4 v1, v[24:27], s[26:27]")
    A("K1_END:")
    A("s_endpgm")
    kd = f"""
.amdhsa_kernel {k}
  .amdhsa_next_free_vgpr 64
  .amdhsa_next_free_sgpr 40
  .amdhsa_accum_offset 64
  .amdhsa_group_segment_fixed_size 0
  .amdhsa_kernarg_size 96
  .amdhsa_user_sgpr_count 2
  .amdhsa_user_sgpr_kernarg_segment_ptr 1
  .amdhsa_system_sgpr_workgroup_id_x 1
  .amdhsa_float_denorm_mode_32 3
.end_amdhsa_kernel
"""
    return A.text(), kd


def gen_k2(opt):
    A = Asm()
    k = f"{NAME}_kernel"
    sX, sREC, sSEG, sOUT = 4, 8, 12, 16
    sW, sNU, sI, sIi, sIq, sM0, s512 = 20, 21, 22, 23, 24, 25, 26
    sStep, sIStep, sBack, sT0, sT1 = 27, 28, 29, 30, 31
    sMode, sRound, sNR, sJB, sK, sCM = 32, 33, 34, 35, 36, 37
    sEX = 40
    sWS = 56
    sP = 58
    sU, sCT = 64, 65
    sM0b = 66
    vDOff, vSrcP, vNlP, vB0, vB1, vA0, vA1, vMy, vSrc, vNl, vD0, vD1, vSW, vSR, vLane = range(1, 16)
    vA = 16
    vB = 24
    vT = 28
    vAcc = 32
    vO = 64
    vW = 92
    vX = 124

    A(f".globl {k}\n.p2align 8\n.type {k},@function\n{k}:")
    A(f"s_cmp_ge_u32 s2, {NB}")
    A("s_cbranch_scc1 K2_END")
    A(f"s_load_dwordx2 s[{sP}:{sP+1}], s[0:1], 0x0")
    A(f"s_load_dwordx2 s[{sP+2}:{sP+3}], s[0:1], 0x48")
    A(f"s_load_dwordx2 s[{sWS}:{sWS+1}], s[0:1], 0x58")
    A(f"v_lshrrev_b32 v{vT}, 6, v0")
    A(f"v_and_b32 v{vLane}, 63, v0")
    A(f"v_readfirstlane_b32 s{sW}, v{vT}")
    A(f"s_mov_b32 s{sMode}, 0")
    A(f"s_mov_b32 s{sRound}, 0")
    A(f"s_mov_b32 s{sJB}, 0")
    A(f"s_mov_b32 s{sK}, 0")
    A(f"s_mov_b32 s{sCM}, 0")
    A(f"s_movk_i32 s{s512}, 512")
    for i in range(28):
        A(f"v_mov_b32 v{vO+i}, 0")
    A("s_waitcnt lgkmcnt(0)")
    srd(A, sX, sP, sP + 1, N * 512)
    srd(A, sOUT, sP + 2, sP + 3, N * 512)
    srd(A, sREC, sWS, sWS + 1, NCHUNK * CH * 12)
    A(f"s_add_u32 s{sP}, s{sWS}, {WS_SEG}")
    A(f"s_addc_u32 s{sP+1}, s{sWS+1}, 0")
    srd(A, sSEG, sP, sP + 1, NCHUNK * 1024)
    A(f"s_lshr_b32 s{sU}, s{sW}, 2")
    A(f"s_and_b32 s{sCT}, s{sW}, 3")

    A("K2_ROUND:")
    A(f"v_lshrrev_b32 v{vT}, 2, v0")
    A(f"v_lshlrev_b32 v{vT+1}, 10, v{vT}")
    A(f"s_lshl_b32 s{sT0}, s2, 2")
    A(f"buffer_load_dword v{vT+2}, v{vT+1}, s[{sSEG}:{sSEG+3}], s{sT0} offen")
    A(f"v_cmp_gt_u32 vcc, {CAP*4//16}, v0")
    A(f"v_mov_b32 v{vA}, -1\nv_mov_b32 v{vA+1}, -1\nv_mov_b32 v{vA+2}, -1\nv_mov_b32 v{vA+3}, -1")
    A(f"v_lshlrev_b32 v{vA+4}, 4, v0")
    A(f"v_mov_b32 v{vA+5}, 0")
    A(f"v_cndmask_b32 v{vA}, v{vA+5}, v{vA}, vcc")
    A(f"v_cndmask_b32 v{vA+1}, v{vA+5}, v{vA+1}, vcc")
    A(f"v_cndmask_b32 v{vA+2}, v{vA+5}, v{vA+2}, vcc")
    A(f"v_cndmask_b32 v{vA+3}, v{vA+5}, v{vA+3}, vcc")
    A(f"ds_write_b128 v{vA+4}, v[{vA}:{vA+3}] offset:{L_META}")
    A(f"v_mov_b32 v{vA+6}, {L_FLAG}")
    A(f"ds_write_b32 v{vA+6}, v{vA+5}")
    A(f"v_and_b32 v{vT+3}, 3, v0")
    A(f"v_mul_u32_u24 v{vT+1}, {CH}, v{vT}")
    A(f"v_add_u32 v{vT+1}, v{vT+1}, v{vT+3}")
    A(f"v_add_u32 v{vT+1}, s{sJB}, v{vT+1}")
    A(f"v_and_b32 v{vX}, s{sCM}, v{vT}")
    A(f"v_cmp_eq_u32 s[{sP}:{sP+1}], s{sK}, v{vX}")
    A("s_waitcnt vmcnt(0)")
    A(f"v_lshrrev_b32 v{vX+1}, 16, v{vT+2}")
    A(f"v_and_b32 v{vT+2}, 0xffff, v{vT+2}")
    A(f"v_add_u32 v{vT+1}, v{vT+1}, v{vT+2}")
    A(f"v_mul_u32_u24 v{vT+1}, 12, v{vT+1}")
    A(f"v_subrev_u32 v{vX+2}, s{sJB}, v{vX+1}")
    A(f"v_cndmask_b32 v{vX+2}, 0, v{vX+2}, s[{sP}:{sP+1}]")
    A(f"v_sub_u32 v{vX+2}, v{vX+2}, v{vT+3}")
    for i in range(8):
        A(f"v_cmp_lt_i32 s[{sEX+2*i}:{sEX+2*i+1}], {4*i}, v{vX+2}")
    A("s_nop 3")
    for i in range(8):
        A(f"s_mov_b64 exec, s[{sEX+2*i}:{sEX+2*i+1}]")
        A(f"s_cbranch_execz K2_LD_DONE")
        A(f"buffer_load_dwordx3 v[{vAcc+4*i}:{vAcc+4*i+2}], v{vT+1}, s[{sREC}:{sREC+3}], 0 offen offset:{48*i}")
    A("K2_LD_DONE:")
    A("s_mov_b64 exec, -1")
    A("s_waitcnt lgkmcnt(0)")
    A("s_barrier")
    A(f"v_cmp_lt_u32 vcc, 32, v{vX+1}")
    A(f"s_and_saveexec_b64 s[{sP}:{sP+1}], vcc")
    A("s_cbranch_execz K2_NOOVF")
    A(f"ds_max_u32 v{vA+6}, v{vX+1}")
    A("K2_NOOVF:")
    A("s_mov_b64 exec, -1")
    A(f"v_mov_b32 v{vX}, 1")
    A("s_waitcnt vmcnt(0)")
    for i in range(8):
        A(f"s_mov_b64 exec, s[{sEX+2*i}:{sEX+2*i+1}]")
        A(f"s_cbranch_execz K2_AT_DONE")
        A(f"v_bfe_u32 v{vA+i}, v{vAcc+4*i+2}, 16, 8")
        A(f"v_lshlrev_b32 v{vA+i}, 2, v{vA+i}")
        A(f"ds_add_rtn_u32 v{vAcc+4*i+3}, v{vA+i}, v{vX} offset:{L_HIST}")
    A("K2_AT_DONE:")
    A("s_mov_b64 exec, -1")
    A(f"s_lshl_b32 s{sT0}, s{sW}, 13")
    A(f"s_add_u32 s{sT0}, s{sT0}, {WS_WF}")
    A(f"v_lshlrev_b32 v{vT}, 4, v{vLane}")
    A(f"v_add_u32 v{vT}, s{sT0}, v{vT}")
    A(f"v_add_u32 v{vT+1}, 4096, v{vT}")
    for j in range(8):
        r = vT if j < 4 else vT + 1
        A(f"global_load_dwordx4 v[{vW+4*j}:{vW+4*j+3}], v{r}, s[{sWS}:{sWS+1}] offset:{(j % 4) * 1024}")
    A("s_waitcnt lgkmcnt(0)")
    A("s_barrier")
    A(f"v_lshlrev_b32 v{vT}, 4, v{vLane}")
    A(f"ds_read_b128 v[{vB}:{vB+3}], v{vT} offset:{L_HIST}")
    A(f"v_mov_b32 v{vX+3}, {L_FLAG}")
    A(f"ds_read_b32 v{vX+3}, v{vX+3}")
    A("s_waitcnt lgkmcnt(0)")
    A(f"v_add_u32 v{vT+1}, v{vB}, v{vB+1}")
    A(f"v_add_u32 v{vT+2}, v{vT+1}, v{vB+2}")
    A(f"v_add_u32 v{vT+3}, v{vT+2}, v{vB+3}")
    A("s_nop 1")
    A(f"v_add_u32_dpp v{vX}, v{vT+3}, v{vT+3} quad_perm:[1,0,3,2] row_mask:0xf bank_mask:0xf")
    A("s_nop 1")
    A(f"v_add_u32_dpp v{vX}, v{vX}, v{vX} quad_perm:[2,3,0,1] row_mask:0xf bank_mask:0xf")
    A(f"v_add_u32 v{vX+1}, 15, v{vX}")
    A(f"v_and_b32 v{vX+1}, -16, v{vX+1}")
    A(f"v_max_u32 v{vX+1}, 16, v{vX+1}")
    A(f"v_sub_u32 v{vX+2}, v{vX+1}, v{vX}")
    A(f"v_and_b32 v{vX}, 3, v{vLane}")
    A(f"v_cmp_eq_u32 vcc, 3, v{vX}")
    A("s_nop 1")
    A(f"v_cndmask_b32 v{vX+2}, 0, v{vX+2}, vcc")
    A(f"v_add_u32 v{vT+3}, v{vT+3}, v{vX+2}")
    A(f"v_mov_b32 v{vX}, v{vT+3}")
    wave_scan(A, vX)
    A(f"v_sub_u32 v{vX}, v{vX}, v{vT+3}")
    A(f"v_add_u32 v{vB+1}, v{vX}, v{vB}")
    A(f"v_add_u32 v{vB+2}, v{vX}, v{vT+1}")
    A(f"v_add_u32 v{vB+3}, v{vX}, v{vT+2}")
    A(f"v_mov_b32 v{vB}, v{vX}")
    A(f"ds_write_b128 v{vT}, v[{vB}:{vB+3}] offset:{L_BASE}")
    A(f"s_lshl_b32 s{sT0}, s{sW}, 2")
    A(f"v_readlane_b32 s{sT1}, v{vX}, {4*NG}")
    A(f"v_readfirstlane_b32 s{sP}, v{vX+3}")
    A(f"v_readlane_b32 s{sBack}, v{vX}, s{sT0}")
    A(f"v_readlane_b32 s{sNU}, v{vX+1}, s{sT0}")
    A("s_nop 3")
    A(f"s_cmp_lg_u32 s{sMode}, 0")
    A("s_cbranch_scc1 K2_OK")
    A(f"s_cmp_gt_u32 s{sT1}, {CAP}")
    A("s_cbranch_scc1 K2_GOSLOW")
    A(f"s_cmp_eq_u32 s{sP}, 0")
    A("s_cbranch_scc1 K2_OK")
    A("K2_GOSLOW:")
    A(f"s_mov_b32 s{sMode}, 1")
    A(f"s_mov_b32 s{sCM}, 3")
    A(f"s_max_u32 s{sP}, s{sP}, 1")
    A(f"s_add_u32 s{sP}, s{sP}, 31")
    A(f"s_lshr_b32 s{sP}, s{sP}, 5")
    A(f"s_lshl_b32 s{sNR}, s{sP}, 2")
    A("s_waitcnt vmcnt(0) lgkmcnt(0)")
    A("s_barrier")
    A("s_branch K2_ROUND")
    A("K2_OK:")
    for i in range(8):
        A(f"s_mov_b64 exec, s[{sEX+2*i}:{sEX+2*i+1}]")
        A(f"s_cbranch_execz K2_RB_DONE")
        A(f"ds_read_b32 v{vA+i}, v{vA+i} offset:{L_BASE}")
    A("K2_RB_DONE:")
    A("s_waitcnt lgkmcnt(0)")
    for i in range(8):
        A(f"s_mov_b64 exec, s[{sEX+2*i}:{sEX+2*i+1}]")
        A(f"s_cbranch_execz K2_SC_DONE")
        A(f"v_add_u32 v{vA+i}, v{vA+i}, v{vAcc+4*i+3}")
        A(f"v_lshlrev_b32 v{vT}, 3, v{vA+i}")
        A(f"ds_write_b64 v{vT}, v[{vAcc+4*i}:{vAcc+4*i+1}] offset:{L_COEF}")
        A(f"v_and_b32 v{vT+1}, 0x38, v{vT}")
        A(f"v_lshrrev_b32 v{vT+2}, 4, v{vA+i}")
        A(f"v_lshl_add_u32 v{vT+1}, v{vT+2}, 6, v{vT+1}")
        A(f"v_bfe_u32 v{vT+2}, v{vA+i}, 3, 1")
        A(f"v_lshl_add_u32 v{vT+1}, v{vT+2}, 1, v{vT+1}")
        A(f"ds_write_b16 v{vT+1}, v{vAcc+4*i+2} offset:{L_META}")
        A(f"v_lshrrev_b32 v{vT+3}, 24, v{vAcc+4*i+2}")
        A(f"ds_write_b16 v{vT+1}, v{vT+3} offset:{L_META+4}")
    A("K2_SC_DONE:")
    A("s_mov_b64 exec, -1")
    A(f"v_and_b32 v{vT}, 7, v{vLane}")
    A(f"v_bfe_u32 v{vT+1}, v{vLane}, 4, 1")
    A(f"v_lshlrev_b32 v{vT+2}, 2, v{vT+1}")
    A(f"v_xor_b32 v{vT}, v{vT}, v{vT+2}")
    A(f"v_lshlrev_b32 v{vDOff}, 4, v{vT}")
    A(f"v_lshrrev_b32 v{vT}, 5, v{vLane}")
    A(f"v_bfe_u32 v{vT+2}, v{vLane}, 2, 2")
    A(f"v_lshl_add_u32 v{vT+3}, v{vT}, 2, v{vT+2}")
    A(f"s_lshl_b32 s{sT0}, s{sBack}, 2")
    A(f"s_add_u32 s{sT0}, s{sT0}, {L_META}")
    A(f"v_lshrrev_b32 v{vX}, 3, v{vLane}")
    A(f"v_lshl_add_u32 v{vSrcP}, v{vX}, 3, s{sT0}")
    A(f"s_add_u32 s{sT0}, s{sT0}, 4")
    A(f"v_lshl_add_u32 v{vNlP}, v{vT+3}, 3, s{sT0}")
    A(f"s_lshl_b32 s{sT0}, s{sBack}, 3")
    A(f"v_lshl_add_u32 v{vB0}, v{vT+3}, 3, s{sT0}")
    A(f"v_mov_b32 v{vB1}, v{vB0}")
    A(f"v_and_b32 v{vX}, 3, v{vLane}")
    A(f"v_lshl_add_u32 v{vMy}, v{vT+1}, 2, v{vX}")
    A(f"v_lshlrev_b32 v{vMy}, 2, v{vMy}")
    A(f"s_lshl_b32 s{sM0b}, s{sW}, 12")
    A(f"s_add_u32 s{sM0b}, s{sM0b}, {L_STG}")
    A(f"v_lshlrev_b32 v{vA0}, 7, v{vT+3}")
    A(f"v_bfe_u32 v{vX+1}, v{vLane}, 3, 1")
    A(f"v_lshl_add_u32 v{vA0}, v{vX+1}, 6, v{vA0}")
    A(f"v_lshl_add_u32 v{vA0}, v{vT+1}, 5, v{vA0}")
    A(f"v_lshl_add_u32 v{vA0}, v{vX}, 3, v{vA0}")
    A(f"v_add_u32 v{vA0}, s{sM0b}, v{vA0}")
    A(f"v_xor_b32 v{vA1}, 64, v{vA0}")
    A(f"v_bfe_u32 v{vT+2}, v{vLane}, 2, 3")
    A(f"s_lshl_b32 s{sT0}, s{sW}, 3")
    A(f"v_add_u32 v{vT+2}, s{sT0}, v{vT+2}")
    A(f"v_bfe_u32 v{vT+3}, v{vT+2}, 1, 3")
    A(f"v_and_b32 v{vX+1}, 1, v{vT+2}")
    A(f"v_xor_b32 v{vT+3}, v{vT+3}, v{vX+1}")
    A(f"v_lshlrev_b32 v{vX+1}, 1, v{vX}")
    A(f"v_xor_b32 v{vT+3}, v{vT+3}, v{vX+1}")
    A(f"v_lshlrev_b32 v{vX+1}, 2, v{vT}")
    A(f"v_xor_b32 v{vT+3}, v{vT+3}, v{vX+1}")
    A(f"v_lshlrev_b32 v{vSW}, 4, v{vT+3}")
    A(f"v_lshl_add_u32 v{vSW}, v{vT+2}, 7, v{vSW}")
    A(f"v_mul_u32_u24 v{vX+1}, {ST}, v{vX}")
    A(f"v_add_u32 v{vSW}, v{vSW}, v{vX+1}")
    A(f"v_add_u32 v{vSW}, {L_SBUF}, v{vSW}")
    A(f"v_and_b32 v{vT}, 15, v{vLane}")
    A(f"v_lshrrev_b32 v{vT+1}, 4, v{vLane}")
    A(f"v_lshrrev_b32 v{vT+2}, 1, v{vT}")
    A(f"v_xor_b32 v{vT+1}, v{vT+1}, v{vT+2}")
    A(f"v_and_b32 v{vT+2}, 1, v{vT}")
    A(f"v_xor_b32 v{vT+1}, v{vT+1}, v{vT+2}")
    A(f"v_lshlrev_b32 v{vSR}, 4, v{vT+1}")
    A(f"v_lshl_add_u32 v{vSR}, v{vT}, 7, v{vSR}")
    A(f"s_lshr_b32 s{sNU}, s{sNU}, 4")
    A(f"s_sub_u32 s{sBack}, 1, s{sNU}")
    A(f"s_lshl_b32 s{sBack}, s{sBack}, 6")
    A(f"s_mov_b32 s{sIi}, 0")
    A(f"s_mov_b32 s{sIq}, 0")
    A(f"s_mov_b32 s{sM0}, s{sM0b}")
    A("s_waitcnt vmcnt(0) lgkmcnt(0)")
    A("s_barrier")

    def issue_addr():
        A(f"v_mad_u32_u16 v{vD0}, v{vSrc}, s{s512}, v{vDOff} op_sel:[0,0,0,0]")
        A(f"v_mad_u32_u16 v{vD1}, v{vSrc}, s{s512}, v{vDOff} op_sel:[1,0,0,0]")

    def issue_dma():
        A(f"s_mov_b32 m0, s{sM0}")
        A(f"s_add_u32 s{sIi}, s{sIi}, 1")
        A(f"buffer_load_dwordx4 v{vD0}, s[{sX}:{sX+3}], s{sIq} offen lds")
        A(f"s_add_u32 m0, s{sM0}, 1024")
        A(f"s_cmp_lt_u32 s{sIi}, s{sNU}")
        A(f"buffer_load_dwordx4 v{vD1}, s[{sX}:{sX+3}], s{sIq} offen lds")
        A(f"s_cselect_b32 s{sIStep}, 64, s{sBack}")
        A(f"s_cselect_b32 s{sIi}, s{sIi}, 0")
        A(f"s_cselect_b32 s{sT0}, 0, 128")
        A(f"v_add_u32 v{vSrcP}, s{sIStep}, v{vSrcP}")
        A(f"s_add_u32 s{sIq}, s{sIq}, s{sT0}")
        A(f"s_cmp_eq_u32 s{sIq}, 512")
        A(f"s_cselect_b32 s{sIq}, 0x40000000, s{sIq}")
        A(f"s_xor_b32 s{sM0}, s{sM0}, 0x800")
        A(f"ds_read_b32 v{vSrc}, v{vSrcP}")

    A(f"s_cmp_ge_u32 s{sW}, {NG}")
    A("s_cbranch_scc1 K2_P0_FLUSHED")
    A(f"ds_read_b32 v{vSrc}, v{vSrcP}")
    A(f"ds_read_b32 v{vNl}, v{vNlP}")
    for _ in range(2):
        A("s_waitcnt lgkmcnt(0)")
        issue_addr()
        issue_dma()
    for q in range(4):
        if q > 0:
            A(f"s_cmp_ge_u32 s{sW}, {NG}")
            A(f"s_cbranch_scc1 K2_P{q}_FLUSHED")
        for i in range(32):
            A(f"v_mov_b32 v{vAcc+i}, 0")
        A(f"s_mov_b32 s{sI}, 0")
        A(f"K2_P{q}_LOOP:")
        A("s_waitcnt lgkmcnt(0)")
        A(f"v_xor_b32_sdwa v{vB0}, v{vNl}, v{vMy} dst_sel:WORD_1 dst_unused:UNUSED_PRESERVE src0_sel:WORD_0 src1_sel:WORD_0")
        A(f"v_xor_b32_sdwa v{vB1}, v{vNl}, v{vMy} dst_sel:WORD_1 dst_unused:UNUSED_PRESERVE src0_sel:WORD_1 src1_sel:WORD_0")
        issue_addr()
        A(f"ds_read_b64_tr_b16 v[{vB}:{vB+1}], v{vB0}")
        A(f"ds_read_b64_tr_b16 v[{vB+2}:{vB+3}], v{vB1} offset:64")
        A(f"s_add_u32 s{sI}, s{sI}, 1")
        A(f"s_cmp_lt_u32 s{sI}, s{sNU}")
        A(f"s_cselect_b32 s{sStep}, 64, s{sBack}")
        A("s_waitcnt vmcnt(2)")
        A(f"ds_read_b64_tr_b16 v[{vA}:{vA+1}], v{vA0}")
        A(f"ds_read_b64_tr_b16 v[{vA+2}:{vA+3}], v{vA0} offset:1024")
        A(f"ds_read_b64_tr_b16 v[{vA+4}:{vA+5}], v{vA1}")
        A(f"ds_read_b64_tr_b16 v[{vA+6}:{vA+7}], v{vA1} offset:1024")
        A(f"v_add_u32 v{vNlP}, s{sStep}, v{vNlP}")
        A(f"v_lshl_add_u32 v{vB0}, s{sStep}, 1, v{vB0}")
        A(f"v_lshl_add_u32 v{vB1}, s{sStep}, 1, v{vB1}")
        A(f"v_xor_b32 v{vA0}, 0x800, v{vA0}")
        A(f"v_xor_b32 v{vA1}, 0x800, v{vA1}")
        A("s_waitcnt lgkmcnt(0)")
        issue_dma()
        A(f"ds_read_b32 v{vNl}, v{vNlP}")
        A(f"v_mfma_f32_32x32x16_bf16 v[{vAcc}:{vAcc+15}], v[{vA}:{vA+3}], v[{vB}:{vB+3}], v[{vAcc}:{vAcc+15}]")
        A(f"v_mfma_f32_32x32x16_bf16 v[{vAcc+16}:{vAcc+31}], v[{vA+4}:{vA+7}], v[{vB}:{vB+3}], v[{vAcc+16}:{vAcc+31}]")
        A(f"s_cmp_lt_u32 s{sI}, s{sNU}")
        A(f"s_cbranch_scc1 K2_P{q}_LOOP")
        A(f"v_xor_b32 v{vT}, 16, v{vSW}")
        A(f"v_xor_b32 v{vT+1}, 32, v{vSW}")
        A(f"v_xor_b32 v{vT+2}, 48, v{vSW}")
        A("s_nop 7")
        for d in range(16):
            A(f"v_cvt_pk_bf16_f32 v{vAcc+d}, v{vAcc+2*d}, v{vAcc+2*d+1}")
        A(f"ds_write_b128 v{vSW}, v[{vAcc}:{vAcc+3}]")
        A(f"ds_write_b128 v{vT}, v[{vAcc+4}:{vAcc+7}]")
        A(f"ds_write_b128 v{vT+1}, v[{vAcc+8}:{vAcc+11}]")
        A(f"ds_write_b128 v{vT+2}, v[{vAcc+12}:{vAcc+15}]")
        if q == 3:
            A("s_waitcnt vmcnt(0)")
        A(f"K2_P{q}_FLUSHED:")
        A(f"s_xor_b32 s{sT0}, s{sU}, {q}")
        A(f"s_lshl_b32 s{sT1}, s{sT0}, 5")
        A(f"s_mul_i32 s{sT0}, s{sT0}, {ST}")
        A(f"s_add_u32 s{sT0}, s{sT0}, {L_SBUF}")
        A(f"v_xor_b32 v{vT}, s{sT1}, v{vSR}")
        A(f"v_add_u32 v{vT}, s{sT0}, v{vT}")
        A(f"v_xor_b32 v{vT+1}, 64, v{vT}")
        A("s_waitcnt lgkmcnt(0)")
        A("s_barrier")
        for half in range(2):
            tiles = range(0, 4) if half == 0 else range(4, 7)
            for j, tl in enumerate(tiles):
                A(f"ds_read_b128 v[{vAcc+8*j}:{vAcc+8*j+3}], v{vT} offset:{tl*2048}")
                A(f"ds_read_b128 v[{vAcc+8*j+4}:{vAcc+8*j+7}], v{vT+1} offset:{tl*2048}")
            n = 2 * len(tiles)
            for j, tl in enumerate(tiles):
                for f in range(2):
                    n -= 1
                    A(f"s_waitcnt lgkmcnt({n})")
                    w = vW + 8 * q + 4 * f
                    A(f"v_mfma_f32_16x16x32_bf16 v[{vO+4*tl}:{vO+4*tl+3}], v[{w}:{w+3}], v[{vAcc+8*j+4*f}:{vAcc+8*j+4*f+3}], v[{vO+4*tl}:{vO+4*tl+3}]")
        A("s_barrier")
    A(f"s_cmp_eq_u32 s{sMode}, 0")
    A("s_cbranch_scc1 K2_EPI")
    A(f"s_add_u32 s{sRound}, s{sRound}, 1")
    A(f"s_cmp_ge_u32 s{sRound}, s{sNR}")
    A("s_cbranch_scc1 K2_EPI")
    A(f"s_and_b32 s{sK}, s{sRound}, 3")
    A(f"s_lshr_b32 s{sJB}, s{sRound}, 2")
    A(f"s_lshl_b32 s{sJB}, s{sJB}, 5")
    A("s_branch K2_ROUND")
    A("K2_EPI:")
    A(f"v_and_b32 v{vT}, 7, v{vLane}")
    A(f"v_bfe_u32 v{vT+1}, v{vLane}, 3, 1")
    A(f"v_mul_u32_u24 v{vT+1}, {GN}, v{vT+1}")
    A(f"v_add_u32 v{vT+1}, v{vT+1}, v{vT}")
    A(f"v_lshlrev_b32 v{vT+1}, 9, v{vT+1}")
    A(f"v_lshrrev_b32 v{vT+2}, 4, v{vLane}")
    A(f"v_lshl_add_u32 v{vT+1}, v{vT+2}, 3, v{vT+1}")
    A(f"s_mul_i32 s{sT0}, s2, {BN*512}")
    A(f"s_lshl_b32 s{sT1}, s{sW}, 5")
    A(f"s_add_u32 s{sT0}, s{sT0}, s{sT1}")
    A(f"v_add_u32 v{vT+1}, s{sT0}, v{vT+1}")
    A(f"v_cmp_eq_u32 vcc, 7, v{vT}")
    A(f"v_mov_b32 v{vT+2}, 0x40000000")
    A("s_nop 0")
    A(f"v_cndmask_b32 v{vT+1}, v{vT+1}, v{vT+2}, vcc")
    A(f"s_mul_i32 s{sT0}, s{sCT}, 7168")
    A(f"v_lshl_add_u32 v{vT}, v{vLane}, 4, s{sT0}")
    A(f"s_mov_b32 s{sT1}, 0xbfb8aa3b")
    A(f"s_cmp_lg_u32 s{sU}, 0")
    A("s_cbranch_scc1 K2_EPI1")
    for tl in range(7):
        o = vO + 4 * tl
        g = vAcc + 4 * tl
        for r in range(4):
            A(f"v_mul_f32 v{g+r}, s{sT1}, v{o+r}")
        for r in range(4):
            A(f"v_exp_f32 v{g+r}, v{g+r}")
        A("s_nop 0")
        for r in range(4):
            A(f"v_add_f32 v{g+r}, 1.0, v{g+r}")
        for r in range(4):
            A(f"v_rcp_f32 v{g+r}, v{g+r}")
        A("s_nop 0")
        A(f"ds_write_b128 v{vT}, v[{g}:{g+3}] offset:{tl*1024}")
    A("s_waitcnt lgkmcnt(0)")
    A("s_barrier")
    A("s_branch K2_STORE")
    A("K2_EPI1:")
    A("s_barrier")
    for tl in range(7):
        g = vAcc + 4 * tl
        A(f"ds_read_b128 v[{g}:{g+3}], v{vT} offset:{tl*1024}")
    for tl in range(7):
        o = vO + 4 * tl
        g = vAcc + 4 * tl
        A(f"s_waitcnt lgkmcnt({6-tl})")
        for r in range(4):
            A(f"v_mul_f32 v{o+r}, v{o+r}, v{g+r}")
    A("K2_STORE:")
    A(f"s_mov_b32 s{sT0}, 0")
    for tl in range(7):
        o = vO + 4 * tl
        A(f"v_cvt_pk_bf16_f32 v{o}, v{o}, v{o+1}")
        A(f"v_cvt_pk_bf16_f32 v{o+1}, v{o+2}, v{o+3}")
        A(f"buffer_store_dwordx2 v[{o}:{o+1}], v{vT+1}, s[{sOUT}:{sOUT+3}], s{sT0} offen")
        A(f"s_add_u32 s{sT0}, s{sT0}, {2*GN*512}")
    A("K2_END:")
    A("s_endpgm")
    kd = f"""
.amdhsa_kernel {k}
  .amdhsa_next_free_vgpr 128
  .amdhsa_next_free_sgpr 72
  .amdhsa_accum_offset 128
  .amdhsa_group_segment_fixed_size 0
  .amdhsa_kernarg_size 96
  .amdhsa_user_sgpr_count 2
  .amdhsa_user_sgpr_kernarg_segment_ptr 1
  .amdhsa_system_sgpr_workgroup_id_x 1
  .amdhsa_float_denorm_mode_32 3
.end_amdhsa_kernel
"""
    return A.text(), kd


def main():
    ap = argparse.ArgumentParser()
    ap.add_argument("-o", default=f"cdna_kernels/{NAME}.s")
    ap.add_argument("--xpf1", type=int, default=1)
    opt = ap.parse_args()
    hdr = open(f"cdna_kernels/{NAME}.s.ref").read().split("\n")
    head = [l for l in hdr if l.startswith(";") and "@launch" not in l and "Override launch" not in l and "grid=ceil" not in l]
    t1, kd1 = gen_k1(opt)
    t2, kd2 = gen_k2(opt)
    out = "\n".join(head) + "\n"
    out += f"; @launch kernel=tp_sort_kernel grid=({NCHUNK + K1_WWG},1,1) block=({K1_BS},1,1) lds={K1_LDS}\n"
    out += f"; @launch kernel={NAME}_kernel grid=({NB},1,1) block=(1024,1,1) lds={K2_LDS}\n"
    out += '.amdgcn_target "amdgcn-amd-amdhsa--gfx950"\n.text\n'
    out += t1 + t2
    out += '.section .rodata,"a"\n.p2align 6\n' + kd1 + ".p2align 6\n" + kd2
    open(opt.o, "w").write(out)


if __name__ == "__main__":
    main()
```

```python
import sys, argparse

NAME = "standalone__tensor_product_equiv_equiformer__graph"
N = 25000
E = 800000
CH = 3200
NCHUNK = 250
BN = 98
NB = 256
NG = 14
GN = 7
K1_BS = 832
K1_WWG = 10
CAP = 3776
MINU = 12

WS_REC = 0
WS_SEG = 0x930000
WS_WF = 0x980000
WS_DBG = 0xA00000

L_COEF = 0
L_META = CAP * 8
L_HIST = L_META + CAP * 4
L_BASE = L_HIST + 1024
L_STG = L_BASE + 1024
L_SBUF = L_STG + NG * 4096
L_FLAG = L_SBUF + 4 * 112 * 128
K2_LDS = L_FLAG + 64
ST = 112 * 128
assert L_STG % 256 == 0 and L_SBUF % 256 == 0 and K2_LDS <= 163840

K1_HIST = 0
K1_BASE = 1024
K1_REC = 4096
K1_LDS = K1_REC + CH * 12


class Asm:
    def __init__(self, stamps=False, sbase=72):
        self.l = []
        self.stamps = stamps
        self.ns = 0
        self.sbase = sbase
        self.names = []
    def stamp(self, name):
        if not self.stamps: return
        if self.sbase + 2 * self.ns + 1 > 101: return
        r = self.sbase + 2 * self.ns
        self(f"s_memrealtime s[{r}:{r+1}]" if self.stamps == 2 else f"s_memtime s[{r}:{r+1}]")
        self.names.append(name)
        self.ns += 1
    def stamp_dyn(self, name, n, sidx, stmp):
        if not self.stamps: return
        lab = f"SD_{self.sbase}_{self.ns}"
        for i in range(n):
            self(f"s_cmp_lg_u32 s{sidx}, {i}")
            self(f"s_cbranch_scc1 {lab}_{i}")
            self.stamp(f"{name}{i}")
            self(f"{lab}_{i}:")
    def dump_stamps(self, ws, nwaves, extra_off, vt, vtid):
        if not self.stamps: return
        self("s_waitcnt lgkmcnt(0)")
        self("s_mov_b64 exec, -1")
        self(f"v_mov_b32 v{vt}, 0")
        for i in range(self.ns):
            self(f"v_writelane_b32 v{vt}, s{self.sbase + 2*i}, {i}")
        self(f"v_lshrrev_b32 v{vt+1}, 6, v{vtid}")
        self(f"s_mul_i32 s{self.sbase}, s2, {nwaves}")
        self(f"v_add_u32 v{vt+1}, s{self.sbase}, v{vt+1}")
        self(f"v_lshlrev_b32 v{vt+1}, 6, v{vt+1}")
        self(f"v_and_b32 v{vt+2}, 63, v{vtid}")
        self(f"v_lshl_add_u32 v{vt+1}, v{vt+2}, 2, v{vt+1}")
        self(f"v_add_u32 v{vt+1}, {WS_DBG + extra_off}, v{vt+1}")
        self(f"s_mov_b64 exec, 0xffff")
        self(f"global_store_dword v{vt+1}, v{vt}, s[{ws}:{ws+1}]")
    def __call__(self, s):
        for ln in s.strip("\n").split("\n"):
            self.l.append("    " + ln.strip() if not ln.strip().endswith(":") else ln.strip())
    def text(self):
        return "\n".join(self.l) + "\n"


def wave_scan(A, v):
    for sh in (1, 2, 4, 8):
        A("s_nop 1")
        A(f"v_add_u32_dpp v{v}, v{v}, v{v} row_shr:{sh} row_mask:0xf bank_mask:0xf bound_ctrl:0")
    A("s_nop 1")
    A(f"v_add_u32_dpp v{v}, v{v}, v{v} row_bcast:15 row_mask:0xa bank_mask:0xf")
    A("s_nop 1")
    A(f"v_add_u32_dpp v{v}, v{v}, v{v} row_bcast:31 row_mask:0xc bank_mask:0xf")


def srd(A, d, lo, hi, nbytes):
    A(f"s_mov_b32 s{d}, s{lo}")
    A(f"s_and_b32 s{d+1}, s{hi}, 0xffff")
    A(f"s_mov_b32 s{d+2}, {nbytes}")
    A(f"s_mov_b32 s{d+3}, 0x00020000")


def gen_k1(opt):
    A = Asm(opt.stamps, 40)
    k = "tp_sort_kernel"
    A(f".globl {k}\n.p2align 8\n.type {k},@function\n{k}:")
    A(f"s_cmp_ge_u32 s2, {NCHUNK + K1_WWG}")
    A("s_cbranch_scc1 K1_END")
    A("s_load_dwordx8 s[8:15], s[0:1], 0x0")
    A("s_load_dwordx8 s[16:23], s[0:1], 0x20")
    A("s_load_dwordx2 s[24:25], s[0:1], 0x40")
    A("s_load_dwordx2 s[26:27], s[0:1], 0x58")
    A(f"s_cmp_ge_u32 s2, {NCHUNK}")
    A("s_cbranch_scc1 K1_WEIGHTS")
    A.stamp("entry")
    A("v_lshlrev_b32 v1, 2, v0")
    A("v_mov_b32 v2, 0")
    A("ds_write_b32 v1, v2")
    A(f"s_mul_i32 s3, s2, {CH*4}")
    A("v_lshlrev_b32 v3, 4, v0")
    A("v_add_u32 v3, s3, v3")
    A("v_lshrrev_b32 v4, 1, v3")
    A("v_add_u32 v5, v3, v4")
    A(f"v_cmp_gt_u32 vcc, {CH//4}, v0")
    A("s_waitcnt lgkmcnt(0)")
    A("s_and_saveexec_b64 s[28:29], vcc")
    A("s_mov_b64 s[30:31], exec")
    lf = opt.k1ld
    A(f"global_load_dwordx4 v[8:11], v3, s[16:17] {lf}")
    A(f"global_load_dwordx4 v[12:15], v3, s[14:15] {lf}")
    A(f"global_load_dwordx2 v[16:17], v4, s[12:13] {lf}")
    A(f"global_load_dwordx4 v[18:21], v5, s[10:11] {lf}")
    A(f"global_load_dwordx2 v[22:23], v5, s[10:11] offset:16 {lf}")
    A.stamp("issued")
    A("s_barrier")
    A.stamp("bar1")
    A("s_mov_b32 s4, 42800")
    A("s_movk_i32 s5, 147")
    A("v_mov_b32 v60, 1")
    A("s_waitcnt vmcnt(4)")
    A.stamp("dst")
    for i in range(4):
        A(f"v_mul_u32_u24 v{24+i}, s4, v{8+i}")
        A(f"v_lshrrev_b32 v{24+i}, 22, v{24+i}")
        A(f"v_lshlrev_b32 v{28+i}, 2, v{24+i}")
        A(f"ds_add_rtn_u32 v{32+i}, v{28+i}, v60")
    for i in range(4):
        A(f"v_mul_u32_u24 v{36+i}, {BN}, v{24+i}")
        A(f"v_sub_u32 v{36+i}, v{8+i}, v{36+i}")
        A(f"v_mul_u32_u24 v{40+i}, s5, v{36+i}")
        A(f"v_lshrrev_b32 v{40+i}, 10, v{40+i}")
        A(f"v_mul_u32_u24 v{44+i}, {GN}, v{40+i}")
        A(f"v_sub_u32 v{44+i}, v{36+i}, v{44+i}")
    A("s_waitcnt vmcnt(3)")
    for i in range(4):
        A(f"v_mul_u32_u24 v{36+i}, 41, v{12+i}")
        A(f"v_lshrrev_b32 v{36+i}, 16, v{36+i}")
        A(f"v_lshl_add_u32 v{36+i}, v{40+i}, 4, v{36+i}")
        A(f"v_lshl_or_b32 v{36+i}, v{36+i}, 24, v{12+i}")
        A(f"v_lshl_or_b32 v{36+i}, v{44+i}, 18, v{36+i}")
    A("s_waitcnt vmcnt(0)")
    A.stamp("allld")
    if opt.xk1:
        A(f"s_mul_i32 s3, s2, {400*128}")
        A("v_lshlrev_b32 v6, 7, v0")
        A("v_add_u32 v6, s3, v6")
        A(f"v_cmp_gt_u32 vcc, {opt.xk1}, v0")
        A("s_and_saveexec_b64 s[28:29], vcc")
        A("s_cbranch_execz K1_NOPF")
        A("global_load_dword v7, v6, s[8:9]")
        A("K1_NOPF:")
        A("s_mov_b64 exec, s[28:29]")
    A("s_mov_b32 s7, 0xffff0000")
    A("v_lshlrev_b32 v40, 16, v16")
    A("v_and_b32 v41, s7, v16")
    A("v_lshlrev_b32 v42, 16, v17")
    A("v_and_b32 v43, s7, v17")
    for i in range(4):
        for j in range(3):
            h = 3 * i + j
            reg = 18 + h // 2
            if h % 2 == 0:
                A(f"v_lshlrev_b32 v{44+j}, 16, v{reg}")
            else:
                A(f"v_and_b32 v{44+j}, s7, v{reg}")
            A(f"v_mul_f32 v{44+j}, v{40+i}, v{44+j}")
        A(f"v_cvt_pk_bf16_f32 v{48+2*i}, v{40+i}, v44")
        A(f"v_cvt_pk_bf16_f32 v{49+2*i}, v45, v46")
    A("s_mov_b64 exec, -1")
    A("s_waitcnt lgkmcnt(0)")
    A.stamp("prebar2")
    A("s_barrier")
    A.stamp("bar2")
    A("v_and_b32 v1, 63, v0")
    A("v_lshlrev_b32 v1, 4, v1")
    A(f"ds_read_b128 v[8:11], v1 offset:{K1_HIST}")
    A("s_waitcnt lgkmcnt(0)")
    A("v_add_u32 v12, v8, v9")
    A("v_add_u32 v13, v12, v10")
    A("v_add_u32 v14, v13, v11")
    A("v_mov_b32 v15, v14")
    wave_scan(A, 15)
    A("v_sub_u32 v16, v15, v14")
    A("v_add_u32 v17, v16, v8")
    A("v_add_u32 v18, v16, v12")
    A("v_add_u32 v19, v16, v13")
    A(f"ds_write_b128 v1, v[16:19] offset:{K1_BASE}")
    A("v_readfirstlane_b32 s6, v0")
    A("s_nop 3")
    A("s_cmp_lg_u32 s6, 768")
    A("s_cbranch_scc1 K1_NOSEG")
    for i in range(4):
        A(f"v_lshl_or_b32 v{20+i}, v{8+i}, 16, v{16+i}")
    A("s_lshl_b32 s3, s2, 2")
    A(f"s_add_u32 s3, s3, {WS_SEG}")
    A("v_lshl_add_u32 v2, v1, 8, s3")
    for i in range(4):
        A(f"global_store_dword v2, v{20+i}, s[26:27] offset:{i*1024} {opt.k1seg}")
    A("K1_NOSEG:")
    A("s_mov_b64 exec, s[30:31]")
    for i in range(4):
        A(f"ds_read_b32 v{24+i}, v{28+i} offset:{K1_BASE}")
    for i in range(4):
        A(f"s_waitcnt lgkmcnt({3-i})")
        A(f"v_add_u32 v{24+i}, v{24+i}, v{32+i}")
        A(f"v_mul_u32_u24 v{24+i}, 12, v{24+i}")
        A(f"v_add_u32 v{24+i}, {K1_REC}, v{24+i}")
    for i in range(4):
        A(f"ds_write2_b32 v{24+i}, v{48+2*i}, v{49+2*i} offset1:1")
        A(f"ds_write_b32 v{24+i}, v{36+i} offset:8")
    A("s_mov_b64 exec, -1")
    A("s_waitcnt lgkmcnt(0)")
    A.stamp("prebar3")
    A("s_barrier")
    A.stamp("bar3")
    A("v_lshlrev_b32 v1, 4, v0")
    A(f"s_mul_i32 s3, s2, {CH*12}")
    A("v_add_u32 v2, s3, v1")
    st = K1_BS * 16
    A(f"ds_read_b128 v[8:11], v1 offset:{K1_REC}")
    A(f"ds_read_b128 v[12:15], v1 offset:{K1_REC + st}")
    A(f"ds_read_b128 v[16:19], v1 offset:{K1_REC + 2*st}")
    A(f"v_add_u32 v3, {st}, v2")
    A(f"v_add_u32 v4, {2*st}, v2")
    A("s_waitcnt lgkmcnt(2)")
    A(f"global_store_dwordx4 v2, v[8:11], s[26:27] {opt.k1st}")
    A("s_waitcnt lgkmcnt(1)")
    A(f"global_store_dwordx4 v3, v[12:15], s[26:27] {opt.k1st}")
    A(f"v_cmp_gt_u32 vcc, {CH*12//16 - 2*K1_BS}, v0")
    A("s_and_saveexec_b64 s[28:29], vcc")
    A("s_cbranch_execz K1_FIN")
    A("s_waitcnt lgkmcnt(0)")
    A(f"global_store_dwordx4 v4, v[16:19], s[26:27] {opt.k1st}")
    A("K1_FIN:")
    if opt.xk1e:
        A("s_mov_b64 exec, -1")
        A(f"s_mul_i32 s3, s2, {400*128}")
        A("v_lshlrev_b32 v6, 7, v0")
        A("v_add_u32 v6, s3, v6")
        A(f"v_cmp_gt_u32 vcc, {opt.xk1e}, v0")
        A("s_and_saveexec_b64 s[28:29], vcc")
        A("s_cbranch_execz K1_NOPF2")
        A("global_load_dword v7, v6, s[8:9]")
        A("K1_NOPF2:")
        A("s_mov_b64 exec, s[28:29]")
    A.stamp("stored")
    if opt.stamps:
        A("s_waitcnt vmcnt(0)")
    A.stamp("end")
    A.dump_stamps(26, 13, 0x100000, 24, 0)
    A("s_endpgm")

    A("K1_WEIGHTS:")
    A("s_waitcnt lgkmcnt(0)")
    A("s_cmp_ge_u32 s2, 256")
    A("s_cbranch_scc1 K1_NOZ")
    A("v_cmp_gt_u32 vcc, 256, v0")
    A("s_and_saveexec_b64 s[28:29], vcc")
    A("s_cbranch_execz K1_NOZ2")
    A("s_lshl_b32 s3, s2, 2")
    A(f"s_add_u32 s3, s3, {WS_SEG}")
    A("v_lshl_add_u32 v2, v0, 10, s3")
    A("v_mov_b32 v3, 0")
    A(f"global_store_dword v2, v3, s[26:27] {opt.k1seg}")
    A("K1_NOZ2:")
    A("s_mov_b64 exec, s[28:29]")
    A("K1_NOZ:")
    A(f"s_sub_u32 s3, s2, {NCHUNK}")
    A(f"s_mul_i32 s3, s3, {K1_BS}")
    A("v_add_u32 v1, s3, v0")
    A("s_nop 0")
    A("v_readfirstlane_b32 s4, v1")
    A("s_nop 3")
    A("s_cmp_ge_u32 s4, 8192")
    A("s_cbranch_scc1 K1_END")
    A("s_lshr_b32 s5, s4, 11")
    A("s_bfe_u32 s6, s4, 0x20009")
    A("s_bfe_u32 s7, s4, 0x20007")
    A("s_bfe_u32 s28, s4, 0x10006")
    A("s_mov_b32 s29, 4")
    A("s_cmp_eq_u32 s5, s7")
    A("s_cselect_b32 s29, 3, s29")
    A("s_cmp_eq_u32 s7, 0")
    A("s_cselect_b32 s29, 2, s29")
    A("s_cselect_b32 s30, 0, 1")
    A("s_cmp_eq_u32 s5, 0")
    A("s_cselect_b32 s29, s30, s29")
    A("s_cmp_lt_u32 s29, 2")
    A("s_cselect_b32 s32, s20, s22")
    A("s_cselect_b32 s33, s21, s23")
    A("s_cselect_b32 s30, 0, 2")
    A("s_sub_u32 s30, s29, s30")
    A("s_lshl_b32 s30, s30, 13")
    A("v_and_b32 v2, 15, v0")
    A("v_bfe_u32 v3, v0, 4, 2")
    A("s_lshl_b32 s31, s28, 2")
    A("v_lshl_add_u32 v4, v3, 4, s31")
    A("s_lshl_b32 s34, s6, 5")
    A("s_add_u32 s34, s34, s30")
    A("v_lshlrev_b32 v5, 7, v4")
    A("v_lshl_add_u32 v5, v2, 1, v5")
    A("v_add_u32 v5, s34, v5")
    for e in range(8):
        off = (8 * (e >> 2) + (e & 3)) * 128
        A(f"global_load_ushort v{8+e}, v5, s[32:33] offset:{off}")
    A("s_lshl_b32 s34, s29, 7")
    A("v_lshl_add_u32 v6, v4, 1, s34")
    A("global_load_dwordx2 v[16:17], v6, s[18:19]")
    A("global_load_dwordx2 v[18:19], v6, s[18:19] offset:16")
    A("s_xor_b32 s35, s5, s7")
    A("s_mul_i32 s36, s5, 9")
    A("s_mul_i32 s37, s35, 3")
    A("s_add_u32 s36, s36, s37")
    A("s_add_u32 s36, s36, s7")
    A("s_sub_u32 s36, s36, 13")
    A("s_cmp_eq_u32 s29, 4")
    A("s_cselect_b32 s36, s36, 0")
    A("s_lshl_b32 s36, s36, 1")
    A("v_mov_b32 v7, s36")
    A("global_load_ushort v20, v7, s[24:25]")
    A("s_waitcnt vmcnt(0)")
    A("v_lshlrev_b32 v20, 16, v20")
    A("s_cmp_eq_u32 s29, 4")
    A("s_cselect_b64 vcc, -1, 0")
    A("v_mov_b32 v21, 1.0")
    A("v_cndmask_b32 v20, v21, v20, vcc")
    A("s_mov_b32 s7, 0xffff0000")
    for e in range(8):
        reg = 16 + e // 2
        if e % 2 == 0:
            A(f"v_lshlrev_b32 v22, 16, v{reg}")
        else:
            A(f"v_and_b32 v22, s7, v{reg}")
        A(f"v_lshlrev_b32 v{8+e}, 16, v{8+e}")
        A(f"v_mul_f32 v22, v22, v20")
        A(f"v_mul_f32 v{8+e}, v{8+e}, v22")
    for d in range(4):
        A(f"v_cvt_pk_bf16_f32 v{24+d}, v{8+2*d}, v{9+2*d}")
    A("v_lshlrev_b32 v1, 4, v1")
    A(f"v_add_u32 v1, {WS_WF}, v1")
    A("global_store_dwordx4 v1, v[24:27], s[26:27]")
    A("K1_END:")
    A("s_endpgm")
    kd = f"""
.amdhsa_kernel {k}
  .amdhsa_next_free_vgpr 64
  .amdhsa_next_free_sgpr {102 if opt.stamps else 40}
  .amdhsa_accum_offset 64
  .amdhsa_group_segment_fixed_size 0
  .amdhsa_kernarg_size 96
  .amdhsa_user_sgpr_count 2
  .amdhsa_user_sgpr_kernarg_segment_ptr 1
  .amdhsa_system_sgpr_workgroup_id_x 1
  .amdhsa_float_denorm_mode_32 3
.end_amdhsa_kernel
"""
    return A.text(), kd


def gen_k2(opt):
    A = Asm(opt.stamps, 72)
    k = f"{NAME}_kernel"
    sX, sREC, sOUT = 4, 8, 12
    sW, sNU, sI, sQ, sQn, sM0, s512, sB, sQ0, sPh = range(16, 26)
    sT0, sT1, sGB = 26, 27, 28
    sMode, sRound, sNR, sJB, sK, sCM = 30, 31, 32, 33, 34, 35
    sU, sCT, sWF = 36, 37, 38
    sEX = 40
    sWS = 56
    sP = 58
    (vDOff, vMI, vMC, vMI0, vMC0, vB0, vB1, vBL0, vA0, vA1, vMy, vD0, vD1, vSW, vSR, vLane, vS2a, vS2b, vWo) = range(1, 20)
    vSrc = 20
    vNl = 22
    vA = 24
    vB = 32
    vS = 36
    vT = 44
    vAcc = 52
    vO = 84
    vW = 112
    vW3 = 120

    A(f".globl {k}\n.p2align 8\n.type {k},@function\n{k}:")
    A(f"s_cmp_ge_u32 s2, {NB}")
    A("s_cbranch_scc1 K2_END")
    A.stamp("entry")
    A(f"s_load_dwordx2 s[{sWS}:{sWS+1}], s[0:1], 0x58")
    A(f"s_load_dwordx2 s[{sP}:{sP+1}], s[0:1], 0x0")
    A(f"s_load_dwordx2 s[{sP+2}:{sP+3}], s[0:1], 0x48")
    A(f"v_lshrrev_b32 v{vT}, 6, v0")
    A(f"v_and_b32 v{vLane}, 63, v0")
    A(f"v_readfirstlane_b32 s{sW}, v{vT}")
    A(f"s_and_b32 s{sT0}, s2, 7")
    A(f"s_lshr_b32 s{sT1}, s2, 3")
    A(f"s_lshl_b32 s{sB}, s{sT0}, 5")
    A(f"s_add_u32 s{sB}, s{sB}, s{sT1}")
    if opt.rot == 2:
        A(f"s_mov_b32 s{sQ0}, 3")
    else:
        A(f"s_and_b32 s{sQ0}, s{sT0}, {3 if opt.rot else 0}")
    A(f"s_mov_b32 s{sMode}, 0")
    A(f"s_mov_b32 s{sRound}, 0")
    A(f"s_mov_b32 s{sJB}, 0")
    A(f"s_mov_b32 s{sK}, 0")
    A(f"s_mov_b32 s{sCM}, 0")
    A(f"s_movk_i32 s{s512}, 512")
    A(f"s_lshr_b32 s{sU}, s{sW}, 2")
    A(f"s_and_b32 s{sCT}, s{sW}, 3")
    A("s_waitcnt lgkmcnt(0)")

    A("K2_ROUND:")
    A(f"s_lshl_b32 s{sT0}, s{sB}, 10")
    A(f"s_add_u32 s{sT0}, s{sT0}, {WS_SEG}")
    A(f"v_and_b32 v{vT}, 0x3f0, v0")
    A(f"v_add_u32 v{vT+1}, s{sT0}, v{vT}")
    A(f"global_load_dwordx4 v[{vS}:{vS+3}], v{vT+1}, s[{sWS}:{sWS+1}]")
    srd(A, sX, sP, sP + 1, N * 512)
    srd(A, sOUT, sP + 2, sP + 3, N * 512)
    srd(A, sREC, sWS, sWS + 1, NCHUNK * CH * 12)
    A(f"v_cmp_gt_u32 vcc, {CAP*4//16}, v0")
    A(f"v_lshlrev_b32 v{vT+2}, 4, v0")
    A(f"v_mov_b32 v{vT+3}, 0")
    A(f"v_cndmask_b32 v{vA}, 0, -1, vcc")
    A(f"v_cndmask_b32 v{vA+1}, 0, -1, vcc")
    A(f"v_cndmask_b32 v{vA+2}, 0, -1, vcc")
    A(f"v_cndmask_b32 v{vA+3}, 0, -1, vcc")
    A(f"ds_write_b128 v{vT+2}, v[{vA}:{vA+3}] offset:{L_META}")
    A(f"v_mov_b32 v{vT+4}, {L_FLAG}")
    A(f"ds_write_b32 v{vT+4}, v{vT+3}")
    A(f"v_and_b32 v{vA}, 7, v{vLane}")
    A(f"v_bfe_u32 v{vA+1}, v{vLane}, 4, 1")
    A(f"v_lshlrev_b32 v{vA+2}, 2, v{vA+1}")
    A(f"v_xor_b32 v{vA}, v{vA}, v{vA+2}")
    A(f"v_lshlrev_b32 v{vDOff}, 4, v{vA}")
    A(f"v_lshrrev_b32 v{vA}, 5, v{vLane}")
    A(f"v_bfe_u32 v{vA+2}, v{vLane}, 2, 2")
    A(f"v_lshl_add_u32 v{vA+3}, v{vA}, 2, v{vA+2}")
    A(f"v_lshrrev_b32 v{vMI0}, 3, v{vLane}")
    A(f"v_lshlrev_b32 v{vMI0}, 2, v{vMI0}")
    A(f"v_lshlrev_b32 v{vMC0}, 2, v{vA+3}")
    A(f"v_lshlrev_b32 v{vBL0}, 3, v{vA+3}")
    A(f"v_and_b32 v{vA+4}, 3, v{vLane}")
    A(f"v_lshl_add_u32 v{vMy}, v{vA+1}, 2, v{vA+4}")
    A(f"v_lshlrev_b32 v{vMy}, 2, v{vMy}")
    A(f"s_lshl_b32 s{sM0}, s{sW}, 12")
    A(f"s_add_u32 s{sM0}, s{sM0}, {L_STG}")
    A(f"v_lshlrev_b32 v{vA0}, 7, v{vA+3}")
    A(f"v_bfe_u32 v{vA+5}, v{vLane}, 3, 1")
    A(f"v_lshl_add_u32 v{vA0}, v{vA+5}, 6, v{vA0}")
    A(f"v_lshl_add_u32 v{vA0}, v{vA+1}, 5, v{vA0}")
    A(f"v_lshl_add_u32 v{vA0}, v{vA+4}, 3, v{vA0}")
    A(f"v_add_u32 v{vA0}, s{sM0}, v{vA0}")
    A(f"v_xor_b32 v{vA1}, 64, v{vA0}")
    A(f"v_bfe_u32 v{vA+2}, v{vLane}, 2, 3")
    A(f"s_lshl_b32 s{sT0}, s{sW}, 3")
    A(f"v_add_u32 v{vA+2}, s{sT0}, v{vA+2}")
    A(f"v_bfe_u32 v{vA+3}, v{vA+2}, 1, 3")
    A(f"v_and_b32 v{vA+5}, 1, v{vA+2}")
    A(f"v_xor_b32 v{vA+3}, v{vA+3}, v{vA+5}")
    A(f"v_lshlrev_b32 v{vA+5}, 1, v{vA+4}")
    A(f"v_xor_b32 v{vA+3}, v{vA+3}, v{vA+5}")
    A(f"v_lshlrev_b32 v{vA+5}, 2, v{vA}")
    A(f"v_xor_b32 v{vA+3}, v{vA+3}, v{vA+5}")
    A(f"v_lshlrev_b32 v{vSW}, 4, v{vA+3}")
    A(f"v_lshl_add_u32 v{vSW}, v{vA+2}, 7, v{vSW}")
    A(f"v_mul_u32_u24 v{vA+5}, {ST}, v{vA+4}")
    A(f"v_add_u32 v{vSW}, v{vSW}, v{vA+5}")
    A(f"v_add_u32 v{vSW}, {L_SBUF}, v{vSW}")
    A(f"v_and_b32 v{vA}, 15, v{vLane}")
    A(f"v_lshrrev_b32 v{vA+1}, 4, v{vLane}")
    A(f"v_lshrrev_b32 v{vA+2}, 1, v{vA}")
    A(f"v_xor_b32 v{vA+1}, v{vA+1}, v{vA+2}")
    A(f"v_and_b32 v{vA+2}, 1, v{vA}")
    A(f"v_xor_b32 v{vA+1}, v{vA+1}, v{vA+2}")
    A(f"v_lshlrev_b32 v{vSR}, 4, v{vA+1}")
    A(f"v_lshl_add_u32 v{vSR}, v{vA}, 7, v{vSR}")
    A(f"s_lshl_b32 s{sWF}, s{sW}, 13")
    A(f"s_add_u32 s{sWF}, s{sWF}, {WS_WF}")
    A(f"v_lshl_add_u32 v{vWo}, v{vLane}, 4, s{sWF}")
    A(f"v_lshrrev_b32 v{vT}, 2, v{vT}")
    A(f"v_mul_u32_u24 v{vT+1}, {CH}, v{vT}")
    A(f"v_add_u32 v{vT+1}, v{vT+1}, v{vA}")
    A(f"v_add_u32 v{vT+1}, s{sJB}, v{vT+1}")
    A(f"v_add_u32 v{vT+2}, s{sJB}, v{vA}")
    A(f"s_cmp_lg_u32 s{sRound}, 0")
    A("s_cbranch_scc1 K2_NOZERO")
    for i in range(28):
        A(f"v_mov_b32 v{vO+i}, 0")
    A("K2_NOZERO:")
    A("s_waitcnt vmcnt(0)")
    A.stamp("seg")
    for r in range(4):
        A(f"v_lshrrev_b32 v{vS+4+r}, 16, v{vS+r}")
        A(f"v_and_b32 v{vS+r}, 0xffff, v{vS+r}")
        A(f"v_add_u32 v{vA+r}, v{vT+1}, v{vS+r}")
        A(f"v_mul_u32_u24 v{vA+r}, 12, v{vA+r}")
        A(f"v_add_u32 v{vT+5}, {r}, v{vT}")
        A(f"v_and_b32 v{vT+5}, s{sCM}, v{vT+5}")
        A(f"v_cmp_eq_u32 vcc, s{sK}, v{vT+5}")
        A(f"v_sub_u32 v{vT+6}, v{vS+4+r}, v{vT+2}")
        A("s_nop 0")
        A(f"v_cndmask_b32 v{vT+6}, 0, v{vT+6}, vcc")
        A(f"v_cmp_lt_i32 s[{sEX+2*r}:{sEX+2*r+1}], 0, v{vT+6}")
        A(f"v_cmp_lt_i32 s[{sEX+8+2*r}:{sEX+8+2*r+1}], 16, v{vT+6}")
    A(f"s_mov_b32 s{sT0}, {CH*12}")
    A(f"s_mov_b32 s{sT1}, {2*CH*12}")
    A(f"s_mov_b32 s{sGB}, {3*CH*12}")
    so = ["0", f"s{sT0}", f"s{sT1}", f"s{sGB}"]
    for i in range(8):
        r, it = i % 4, i // 4
        A(f"s_mov_b64 exec, s[{sEX+2*i}:{sEX+2*i+1}]")
        A(f"s_cbranch_execz K2_LD{i}")
        A(f"buffer_load_dwordx3 v[{vAcc+4*i}:{vAcc+4*i+2}], v{vA+r}, s[{sREC}:{sREC+3}], {so[r]} offen offset:{192*it}")
        A(f"K2_LD{i}:")
    A("s_mov_b64 exec, -1")
    def pf():
        A(f"s_lshr_b32 s{sT0}, s2, 3")
        A(f"s_mul_i32 s{sT0}, s{sT0}, {opt.pfn*512}")
        A(f"s_lshl_b32 s{sT1}, s{sQ0}, 7")
        A(f"s_add_u32 s{sT0}, s{sT0}, s{sT1}")
        A(f"v_cmp_gt_u32 vcc, {opt.pfn}, v0")
        A(f"v_lshlrev_b32 v{vT+5}, 9, v0")
        A(f"v_mov_b32 v{vT+6}, 0x40000000")
        A(f"v_cndmask_b32 v{vT+5}, v{vT+6}, v{vT+5}, vcc")
        A(f"buffer_load_dword v{vT+7}, v{vT+5}, s[{sX}:{sX+3}], s{sT0} offen")
    if opt.pf == 1: pf()
    A("s_waitcnt lgkmcnt(0)")
    A("s_barrier")
    def pfm():
        A(f"s_mul_i32 s{sT0}, s2, {392*128}")
        A(f"v_cmp_gt_u32 vcc, 392, v0")
        A(f"v_lshlrev_b32 v{vT+5}, 7, v0")
        A(f"v_mov_b32 v{vT+6}, 0x40000000")
        A(f"v_cndmask_b32 v{vT+5}, v{vT+6}, v{vT+5}, vcc")
        A(f"buffer_load_dword v{vT+7}, v{vT+5}, s[{sX}:{sX+3}], s{sT0} offen")
    if opt.pf == 3: pf()
    if opt.pf == 4: pfm()
    if opt.pf == 5: pf(); pfm()
    A(f"v_max_u32 v{vT+5}, v{vS+4}, v{vS+5}")
    A(f"v_max3_u32 v{vT+5}, v{vT+5}, v{vS+6}, v{vS+7}")
    A(f"v_cmp_lt_u32 vcc, 32, v{vT+5}")
    A(f"s_and_saveexec_b64 s[{sP+4}:{sP+5}], vcc")
    A("s_cbranch_execz K2_NOOVF")
    A(f"ds_max_u32 v{vT+4}, v{vT+5}")
    A("K2_NOOVF:")
    A("s_mov_b64 exec, -1")
    A(f"v_mov_b32 v{vT}, 1")
    A(f"s_waitcnt vmcnt({ {1:1,3:1,4:1,5:2}.get(opt.pf, 0) })")
    A.stamp("rec")
    for i in range(8):
        A(f"s_mov_b64 exec, s[{sEX+2*i}:{sEX+2*i+1}]")
        A(f"s_cbranch_execz K2_AT{i}")
        A(f"v_lshrrev_b32 v{vA+i}, 24, v{vAcc+4*i+2}")
        A(f"v_lshlrev_b32 v{vA+i}, 2, v{vA+i}")
        A(f"ds_add_rtn_u32 v{vAcc+4*i+3}, v{vA+i}, v{vT} offset:{L_HIST}")
        A(f"K2_AT{i}:")
    A("s_mov_b64 exec, -1")
    A("s_waitcnt lgkmcnt(0)")
    A("s_barrier")
    A.stamp("bar2")
    if opt.pf == 2: pf()
    A(f"v_lshlrev_b32 v{vT}, 4, v{vLane}")
    A(f"ds_read_b128 v[{vB}:{vB+3}], v{vT} offset:{L_HIST}")
    A(f"ds_read_b32 v{vT+4}, v{vT+4}")
    A("s_waitcnt lgkmcnt(0)")
    A(f"v_add_u32 v{vT+1}, v{vB}, v{vB+1}")
    A(f"v_add_u32 v{vT+2}, v{vT+1}, v{vB+2}")
    A(f"v_add_u32 v{vT+3}, v{vT+2}, v{vB+3}")
    A("s_nop 1")
    A(f"v_add_u32_dpp v{vS}, v{vT+3}, v{vT+3} quad_perm:[1,0,3,2] row_mask:0xf bank_mask:0xf")
    A("s_nop 1")
    A(f"v_add_u32_dpp v{vS}, v{vS}, v{vS} quad_perm:[2,3,0,1] row_mask:0xf bank_mask:0xf")
    A(f"v_and_b32 v{vS+3}, 3, v{vLane}")
    A(f"v_cmp_eq_u32 vcc, 3, v{vS+3}")
    A(f"v_add_u32 v{vS+1}, 31, v{vS}")
    A(f"v_and_b32 v{vS+1}, 0xffffffe0, v{vS+1}")
    A(f"v_max_u32 v{vS+1}, {MINU*16}, v{vS+1}")
    A(f"v_sub_u32 v{vS+2}, v{vS+1}, v{vS}")
    A(f"v_cndmask_b32 v{vS+2}, 0, v{vS+2}, vcc")
    A(f"v_add_u32 v{vT+3}, v{vT+3}, v{vS+2}")
    A(f"v_mov_b32 v{vS}, v{vT+3}")
    wave_scan(A, vS)
    A(f"v_sub_u32 v{vS}, v{vS}, v{vT+3}")
    A(f"v_add_u32 v{vB+1}, v{vS}, v{vB}")
    A(f"v_add_u32 v{vB+2}, v{vS}, v{vT+1}")
    A(f"v_add_u32 v{vB+3}, v{vS}, v{vT+2}")
    A(f"v_mov_b32 v{vB}, v{vS}")
    A(f"ds_write_b128 v{vT}, v[{vB}:{vB+3}] offset:{L_BASE}")
    A(f"s_lshl_b32 s{sT0}, s{sW}, 2")
    A(f"v_readlane_b32 s{sT1}, v{vS}, {4*NG}")
    A(f"v_readfirstlane_b32 s{sP+4}, v{vT+4}")
    A(f"v_readlane_b32 s{sGB}, v{vS}, s{sT0}")
    A(f"v_readlane_b32 s{sNU}, v{vS+1}, s{sT0}")
    for i in range(8):
        A(f"s_mov_b64 exec, s[{sEX+2*i}:{sEX+2*i+1}]")
        A(f"s_cbranch_execz K2_RB{i}")
        A(f"ds_read_b32 v{vA+i}, v{vA+i} offset:{L_BASE}")
        A(f"K2_RB{i}:")
    A("s_mov_b64 exec, -1")
    A(f"s_cmp_lg_u32 s{sMode}, 0")
    A("s_cbranch_scc1 K2_OK")
    A(f"s_cmp_gt_u32 s{sT1}, {CAP}")
    A("s_cbranch_scc1 K2_GOSLOW")
    A(f"s_cmp_eq_u32 s{sP+4}, 0")
    A("s_cbranch_scc1 K2_OK")
    A("K2_GOSLOW:")
    A(f"s_mov_b32 s{sMode}, 1")
    A(f"s_mov_b32 s{sCM}, 7")
    A(f"s_max_u32 s{sP+4}, s{sP+4}, 1")
    A(f"s_add_u32 s{sP+4}, s{sP+4}, 31")
    A(f"s_lshr_b32 s{sP+4}, s{sP+4}, 5")
    A(f"s_lshl_b32 s{sNR}, s{sP+4}, 3")
    A("s_waitcnt vmcnt(0) lgkmcnt(0)")
    A("s_barrier")
    A("s_branch K2_ROUND")
    A("K2_OK:")
    A(f"s_lshl_b32 s{sT0}, s{sGB}, 2")
    A(f"s_add_u32 s{sT0}, s{sT0}, {L_META}")
    A(f"v_add_u32 v{vMI0}, s{sT0}, v{vMI0}")
    A(f"v_add_u32 v{vMC0}, s{sT0}, v{vMC0}")
    A(f"s_lshl_b32 s{sT0}, s{sGB}, 3")
    A(f"v_add_u32 v{vBL0}, s{sT0}, v{vBL0}")
    A(f"s_lshr_b32 s{sNU}, s{sNU}, 4")
    A(f"s_sub_u32 s{sNU}, s{sNU}, 2")
    A("s_waitcnt lgkmcnt(0)")
    for i in range(8):
        A(f"s_mov_b64 exec, s[{sEX+2*i}:{sEX+2*i+1}]")
        A(f"s_cbranch_execz K2_SC{i}")
        A(f"v_add_lshl_u32 v{vA+i}, v{vA+i}, v{vAcc+4*i+3}, 2")
        A(f"v_lshlrev_b32 v{vT}, 1, v{vA+i}")
        A(f"ds_write_b32 v{vA+i}, v{vAcc+4*i+2} offset:{L_META}")
        A(f"ds_write_b64 v{vT}, v[{vAcc+4*i}:{vAcc+4*i+1}] offset:{L_COEF}")
        A(f"K2_SC{i}:")
    A("s_mov_b64 exec, -1")
    A(f"s_mov_b32 s{sPh}, 0")
    A(f"s_mov_b32 s{sQ}, s{sQ0}")
    A(f"s_lshl_b32 s{sQn}, s{sQ0}, 7")
    A("s_waitcnt lgkmcnt(0)")
    A("s_barrier")
    A.stamp("main")

    def mads():
        A(f"v_mad_u32_u16 v{vD0}, v{vSrc}, s{s512}, v{vDOff}")
        A(f"v_mad_u32_u16 v{vD1}, v{vSrc+1}, s{s512}, v{vDOff}")

    def dma(slot, wait=None):
        A(f"s_add_u32 m0, s{sM0}, {slot*2048}")
        A(wait if wait else "s_nop 0")
        A(f"buffer_load_dwordx4 v{vD0}, s[{sX}:{sX+3}], s{sQn} offen lds")
        A(f"s_add_u32 m0, s{sM0}, {slot*2048+1024}")
        A("s_nop 0")
        A(f"buffer_load_dwordx4 v{vD1}, s[{sX}:{sX+3}], s{sQn} offen lds")

    def s2_addr(qreg):
        A(f"s_xor_b32 s{sT0}, s{sU}, s{qreg}")
        A(f"s_lshl_b32 s{sT1}, s{sT0}, 5")
        A(f"s_mul_i32 s{sT0}, s{sT0}, {ST}")
        A(f"s_add_u32 s{sT0}, s{sT0}, {L_SBUF}")
        A(f"v_xor_b32 v{vS2a}, s{sT1}, v{vSR}")
        A(f"v_add_u32 v{vS2a}, s{sT0}, v{vS2a}")
        A(f"v_xor_b32 v{vS2b}, 64, v{vS2a}")

    def load_w(qreg):
        A(f"s_lshl_b32 s{sT0}, s{qreg}, 11")
        A(f"v_add_u32 v{vT}, s{sT0}, v{vWo}")
        A(f"global_load_dwordx4 v[{vW}:{vW+3}], v{vT}, s[{sWS}:{sWS+1}]")
        A(f"global_load_dwordx4 v[{vW+4}:{vW+7}], v{vT}, s[{sWS}:{sWS+1}] offset:1024")

    def load_w3():
        A(f"s_add_u32 s{sT0}, s{sQ0}, 3")
        A(f"s_and_b32 s{sT0}, s{sT0}, 3")
        A(f"s_lshl_b32 s{sT0}, s{sT0}, 11")
        A(f"v_add_u32 v{vT+4}, s{sT0}, v{vWo}")
        A(f"global_load_dwordx4 v[{vW3}:{vW3+3}], v{vT+4}, s[{sWS}:{sWS+1}]")
        A(f"global_load_dwordx4 v[{vW3+4}:{vW3+7}], v{vT+4}, s[{sWS}:{sWS+1}] offset:1024")

    def s2_mfma(tl, w, s):
        A(f"v_mfma_f32_16x16x32_bf16 v[{vO+4*tl}:{vO+4*tl+3}], v[{w}:{w+3}], v[{s}:{s+3}], v[{vO+4*tl}:{vO+4*tl+3}]")
        A(f"v_mfma_f32_16x16x32_bf16 v[{vO+4*tl}:{vO+4*tl+3}], v[{w+4}:{w+7}], v[{s+4}:{s+7}], v[{vO+4*tl}:{vO+4*tl+3}]")

    def body(slot, u, mi, miu, mc, mcu, vm=2, s2m=None, s2r=None, bar=False, post=None):
        A("s_waitcnt lgkmcnt(0)")
        A(f"v_xor_b32_sdwa v{vB0}, v{vNl}, v{vMy} dst_sel:WORD_1 dst_unused:UNUSED_PRESERVE src0_sel:BYTE_2 src1_sel:WORD_0")
        A(f"v_xor_b32_sdwa v{vB1}, v{vNl+1}, v{vMy} dst_sel:WORD_1 dst_unused:UNUSED_PRESERVE src0_sel:BYTE_2 src1_sel:WORD_0")
        A(f"ds_read2_b32 v[{vSrc}:{vSrc+1}], v{mi} offset0:{16*miu} offset1:{16*miu+8}")
        A(f"ds_read_b64_tr_b16 v[{vB}:{vB+1}], v{vB0} offset:{128*u}")
        A(f"ds_read_b64_tr_b16 v[{vB+2}:{vB+3}], v{vB1} offset:{128*u+64}")
        if s2m is not None:
            pass
        A(f"s_waitcnt vmcnt({vm})")
        A(f"ds_read_b64_tr_b16 v[{vA}:{vA+1}], v{vA0} offset:{slot*2048}")
        A(f"ds_read_b64_tr_b16 v[{vA+2}:{vA+3}], v{vA0} offset:{slot*2048+1024}")
        A(f"ds_read_b64_tr_b16 v[{vA+4}:{vA+5}], v{vA1} offset:{slot*2048}")
        A(f"ds_read_b64_tr_b16 v[{vA+6}:{vA+7}], v{vA1} offset:{slot*2048+1024}")
        if s2m is not None:
            s2_mfma(s2m, vW, vS)
        A("s_waitcnt lgkmcnt(6)")
        mads()
        dma(slot, "s_waitcnt lgkmcnt(0)")
        A(f"ds_read2_b32 v[{vNl}:{vNl+1}], v{mc} offset0:{16*mcu} offset1:{16*mcu+8}")
        A(f"v_mfma_f32_32x32x16_bf16 v[{vAcc}:{vAcc+15}], v[{vA}:{vA+3}], v[{vB}:{vB+3}], v[{vAcc}:{vAcc+15}]")
        A(f"v_mfma_f32_32x32x16_bf16 v[{vAcc+16}:{vAcc+31}], v[{vA+4}:{vA+7}], v[{vB}:{vB+3}], v[{vAcc+16}:{vAcc+31}]")
        if bar:
            A("s_barrier")
        if s2r is not None:
            A(f"ds_read_b128 v[{vS}:{vS+3}], v{vS2a} offset:{s2r*2048}")
            A(f"ds_read_b128 v[{vS+4}:{vS+7}], v{vS2b} offset:{s2r*2048}")
        if post: post()

    def adv(n):
        A(f"v_add_u32 v{vMI}, {64*n}, v{vMI}")
        A(f"v_add_u32 v{vMC}, {64*n}, v{vMC}")
        A(f"v_add_u32 v{vB0}, {128*n}, v{vB0}")
        A(f"v_add_u32 v{vB1}, {128*n}, v{vB1}")

    A(f"s_cmp_ge_u32 s{sW}, {NG}")
    A("s_cbranch_scc1 K2_HELPER")
    A(f"ds_read2_b32 v[{vSrc}:{vSrc+1}], v{vMI0} offset0:0 offset1:8")
    A(f"ds_read2_b32 v[{vS}:{vS+1}], v{vMI0} offset0:16 offset1:24")
    A(f"ds_read2_b32 v[{vNl}:{vNl+1}], v{vMC0} offset0:0 offset1:8")
    A("s_waitcnt lgkmcnt(2)")
    mads()
    dma(0)
    A("s_waitcnt lgkmcnt(1)")
    A(f"v_mad_u32_u16 v{vD0}, v{vS}, s{s512}, v{vDOff}")
    A(f"v_mad_u32_u16 v{vD1}, v{vS+1}, s{s512}, v{vDOff}")
    dma(1)
    A("K2_PHASE:")
    for i in range(32):
        A(f"v_mov_b32 v{vAcc+i}, 0")
    A(f"v_mov_b32 v{vMI}, v{vMI0}")
    A(f"v_mov_b32 v{vMC}, v{vMC0}")
    A(f"v_mov_b32 v{vB0}, v{vBL0}")
    A(f"v_mov_b32 v{vB1}, v{vBL0}")
    A(f"s_mov_b32 s{sI}, 0")
    A(f"s_cmp_eq_u32 s{sPh}, 0")
    A("s_cbranch_scc1 K2_LOOP")
    for i in range(10):
        body(i & 1, i, vMI, i + 2, vMC, i + 1,
             vm=(4 if i == 0 else 2),
             s2m=(i - 2 if 2 <= i <= 8 else None),
             s2r=(i - 1 if 1 <= i <= 7 else None),
             bar=(i == 1 or i == 9))
    adv(10)
    A(f"s_mov_b32 s{sI}, 10")
    A(f"s_cmp_ge_u32 s{sI}, s{sNU}")
    A("s_cbranch_scc1 K2_TAIL")
    A("K2_LOOP:")
    body(0, 0, vMI, 2, vMC, 1)
    A(f"s_add_u32 s{sI}, s{sI}, 2")
    body(1, 1, vMI, 3, vMC, 2, post=lambda: adv(2))
    A(f"s_cmp_lt_u32 s{sI}, s{sNU}")
    A("s_cbranch_scc1 K2_LOOP")
    A("K2_TAIL:")
    A(f"s_add_u32 s{sQn}, s{sQ}, 1")
    A(f"s_and_b32 s{sQn}, s{sQn}, 3")
    A(f"s_lshl_b32 s{sQn}, s{sQn}, 7")
    A(f"s_cmp_eq_u32 s{sPh}, 3")
    A(f"s_cselect_b32 s{sQn}, 0x40000000, s{sQn}")
    body(0, 0, vMI0, 0, vMC, 1)
    body(1, 1, vMI0, 1, vMC0, 0)
    A(f"v_xor_b32 v{vT+1}, 16, v{vSW}")
    A(f"v_xor_b32 v{vT+2}, 32, v{vSW}")
    A(f"v_xor_b32 v{vT+3}, 48, v{vSW}")
    s2_addr(sQ)
    A(f"s_cmp_eq_u32 s{sPh}, 3")
    A("s_cbranch_scc1 K2_NOW")
    load_w(sQ)
    A(f"s_cmp_lg_u32 s{sPh}, 1")
    A("s_cbranch_scc1 K2_NOW")
    load_w3()
    A("K2_NOW:")
    A("s_nop 2")
    for d in range(16):
        A(f"v_cvt_pk_bf16_f32 v{vAcc+d}, v{vAcc+2*d}, v{vAcc+2*d+1}")
    A(f"ds_write_b128 v{vSW}, v[{vAcc}:{vAcc+3}]")
    A(f"ds_write_b128 v{vT+1}, v[{vAcc+4}:{vAcc+7}]")
    A(f"ds_write_b128 v{vT+2}, v[{vAcc+8}:{vAcc+11}]")
    A(f"ds_write_b128 v{vT+3}, v[{vAcc+12}:{vAcc+15}]")
    A.stamp_dyn("fl", 4, sPh, sT0)
    A(f"s_add_u32 s{sQ}, s{sQ}, 1")
    A(f"s_and_b32 s{sQ}, s{sQ}, 3")
    A(f"s_add_u32 s{sPh}, s{sPh}, 1")
    A(f"s_cmp_lt_u32 s{sPh}, 4")
    A("s_waitcnt lgkmcnt(0)")
    A("s_cbranch_scc1 K2_PHASE")
    A("s_branch K2_FINAL")

    def stage2_all(w):
        for half in range(2):
            tiles = range(0, 4) if half == 0 else range(4, 7)
            for j, tl in enumerate(tiles):
                A(f"ds_read_b128 v[{vAcc+8*j}:{vAcc+8*j+3}], v{vS2a} offset:{tl*2048}")
                A(f"ds_read_b128 v[{vAcc+8*j+4}:{vAcc+8*j+7}], v{vS2b} offset:{tl*2048}")
            n = 2 * len(tiles)
            for j, tl in enumerate(tiles):
                n -= 2
                A(f"s_waitcnt lgkmcnt({n})")
                s2_mfma(tl, w, vAcc + 8 * j)

    A("K2_HELPER:")
    load_w3()
    A("K2_HLOOP:")
    s2_addr(sQ)
    load_w(sQ)
    A("s_barrier")
    A("s_waitcnt vmcnt(0)")
    stage2_all(vW)
    A(f"s_add_u32 s{sQ}, s{sQ}, 1")
    A(f"s_and_b32 s{sQ}, s{sQ}, 3")
    A(f"s_add_u32 s{sPh}, s{sPh}, 1")
    A(f"s_cmp_lt_u32 s{sPh}, 3")
    A("s_barrier")
    A("s_cbranch_scc1 K2_HLOOP")
    s2_addr(sQ)
    A("K2_FINAL:")
    A("s_barrier")
    A.stamp("a3")
    stage2_all(vW3)
    A("s_waitcnt vmcnt(0)")
    A(f"s_cmp_eq_u32 s{sMode}, 0")
    A("s_cbranch_scc1 K2_EPI")
    A(f"s_add_u32 s{sRound}, s{sRound}, 1")
    A(f"s_cmp_ge_u32 s{sRound}, s{sNR}")
    A("s_cbranch_scc1 K2_EPI")
    A(f"s_and_b32 s{sK}, s{sRound}, 7")
    A(f"s_lshr_b32 s{sJB}, s{sRound}, 3")
    A(f"s_lshl_b32 s{sJB}, s{sJB}, 5")
    A("s_barrier")
    A("s_branch K2_ROUND")
    A("K2_EPI:")
    A.stamp("s2f")
    A(f"v_and_b32 v{vT}, 7, v{vLane}")
    A(f"v_bfe_u32 v{vT+1}, v{vLane}, 3, 1")
    A(f"v_mul_u32_u24 v{vT+1}, {GN}, v{vT+1}")
    A(f"v_add_u32 v{vT+1}, v{vT+1}, v{vT}")
    A(f"v_cmp_eq_u32 vcc, 7, v{vT}")
    A(f"v_lshrrev_b32 v{vT+2}, 5, v{vLane}")
    A(f"s_lshl_b32 s{sT0}, s{sW}, 1")
    A(f"v_add_u32 v{vT+2}, s{sT0}, v{vT+2}")
    A(f"v_bfe_u32 v{vT+3}, v{vLane}, 4, 1")
    A(f"v_lshlrev_b32 v{vT+3}, 3, v{vT+3}")
    A(f"v_mov_b32 v{vT+4}, 0x30000")
    A(f"v_add_u32 v{vT+3}, {L_STG}, v{vT+3}")
    A(f"v_cndmask_b32 v{vT+3}, v{vT+3}, v{vT+4}, vcc")
    A(f"s_mul_i32 s{sT0}, s{sCT}, 7168")
    A(f"v_lshl_add_u32 v{vT}, v{vLane}, 4, s{sT0}")
    for tl in range(7):
        A(f"v_add_u32 v{vT+4}, {14*tl}, v{vT+1}")
        A(f"v_and_b32 v{vT+5}, 7, v{vT+4}")
        A(f"v_xor_b32 v{vT+5}, v{vT+5}, v{vT+2}")
        A(f"v_lshl_add_u32 v{vA+tl}, v{vT+5}, 4, v{vT+3}")
        A(f"v_lshl_add_u32 v{vA+tl}, v{vT+4}, 9, v{vA+tl}")
    A(f"s_mov_b32 s{sT1}, 0xbfb8aa3b")
    A(f"s_cmp_lg_u32 s{sU}, 0")
    A("s_cbranch_scc1 K2_EPI1")
    for tl in range(7):
        o = vO + 4 * tl
        g = vAcc + 4 * tl
        for r in range(4):
            A(f"v_mul_f32 v{g+r}, s{sT1}, v{o+r}")
        for r in range(4):
            A(f"v_exp_f32 v{g+r}, v{g+r}")
        A("s_nop 0")
        for r in range(4):
            A(f"v_add_f32 v{g+r}, 1.0, v{g+r}")
        for r in range(4):
            A(f"v_rcp_f32 v{g+r}, v{g+r}")
        A("s_nop 0")
        A(f"ds_write_b128 v{vT}, v[{g}:{g+3}] offset:{tl*1024}")
    A("s_waitcnt lgkmcnt(0)")
    A("s_barrier")
    A("s_branch K2_STORE")
    A("K2_EPI1:")
    A("s_barrier")
    for tl in range(7):
        g = vAcc + 4 * tl
        A(f"ds_read_b128 v[{g}:{g+3}], v{vT} offset:{tl*1024}")
    for tl in range(7):
        o = vO + 4 * tl
        g = vAcc + 4 * tl
        A(f"s_waitcnt lgkmcnt({6-tl})")
        for r in range(4):
            A(f"v_mul_f32 v{o+r}, v{o+r}, v{g+r}")
    A("K2_STORE:")
    for tl in range(7):
        o = vO + 4 * tl
        A(f"v_cvt_pk_bf16_f32 v{o}, v{o}, v{o+1}")
        A(f"v_cvt_pk_bf16_f32 v{o+1}, v{o+2}, v{o+3}")
        A(f"ds_write_b64 v{vA+tl}, v[{o}:{o+1}]")
    A(f"v_bfe_u32 v{vT}, v0, 5, 3")
    A(f"v_xor_b32 v{vT}, v{vT}, v0")
    A(f"v_lshlrev_b32 v{vT}, 4, v{vT}")
    A(f"v_add_u32 v{vT}, {L_STG}, v{vT}")
    A(f"v_lshlrev_b32 v{vT+1}, 4, v0")
    A(f"s_mul_i32 s{sT0}, s{sB}, {BN*512}")
    A("s_waitcnt lgkmcnt(0)")
    A("s_barrier")
    A.stamp("tile")
    for kk in range(3):
        A(f"ds_read_b128 v[{vAcc+4*kk}:{vAcc+4*kk+3}], v{vT} offset:{kk*16384}")
    A(f"s_cmp_lg_u32 s{sW}, 0")
    A("s_cbranch_scc1 K2_ST3")
    A(f"ds_read_b128 v[{vAcc+12}:{vAcc+15}], v{vT} offset:{3*16384}")
    A(f"s_add_u32 s{sT1}, s{sT0}, {3*16384}")
    A("s_waitcnt lgkmcnt(0)")
    A(f"buffer_store_dwordx4 v[{vAcc+12}:{vAcc+15}], v{vT+1}, s[{sOUT}:{sOUT+3}], s{sT1} offen {opt.k2st}")
    A("K2_ST3:")
    for kk in range(3):
        A(f"s_waitcnt lgkmcnt({2-kk})")
        A(f"buffer_store_dwordx4 v[{vAcc+4*kk}:{vAcc+4*kk+3}], v{vT+1}, s[{sOUT}:{sOUT+3}], s{sT0} offen {opt.k2st}")
        A(f"s_add_u32 s{sT0}, s{sT0}, 16384")
    A.stamp("st")
    if opt.stamps:
        A("s_waitcnt vmcnt(0)")
    A.stamp("end")
    A.dump_stamps(sWS, 16, 0, vT, 0)
    A("K2_END:")
    A("s_endpgm")
    if opt.stamps: print("K2 stamps:", A.names)
    kd = f"""
.amdhsa_kernel {k}
  .amdhsa_next_free_vgpr 128
  .amdhsa_next_free_sgpr {102 if opt.stamps else 72}
  .amdhsa_accum_offset 128
  .amdhsa_group_segment_fixed_size 0
  .amdhsa_kernarg_size 96
  .amdhsa_user_sgpr_count 2
  .amdhsa_user_sgpr_kernarg_segment_ptr 1
  .amdhsa_system_sgpr_workgroup_id_x 1
  .amdhsa_float_denorm_mode_32 3
.end_amdhsa_kernel
"""
    return A.text(), kd


def main():
    ap = argparse.ArgumentParser()
    ap.add_argument("-o", default=f"cdna_kernels/{NAME}.s")
    ap.add_argument("--stamps", type=int, default=0)
    ap.add_argument("--rot", type=int, default=1)
    ap.add_argument("--pf", type=int, default=1)
    ap.add_argument("--pfn", type=int, default=782)
    ap.add_argument("--xk1", type=int, default=0)
    ap.add_argument("--xk1e", type=int, default=0)
    ap.add_argument("--k1ld", default="nt")
    ap.add_argument("--k1st", default="sc1")
    ap.add_argument("--k1seg", default="")
    ap.add_argument("--k2st", default="")
    opt = ap.parse_args()
    hdr = open(f"cdna_kernels/{NAME}.s.ref").read().split("\n")
    head = [l for l in hdr if l.startswith(";") and "@launch" not in l and "Override launch" not in l and "grid=ceil" not in l]
    t1, kd1 = gen_k1(opt)
    t2, kd2 = gen_k2(opt)
    out = "\n".join(head) + "\n"
    out += f"; @launch kernel=tp_sort_kernel grid=({NCHUNK + K1_WWG},1,1) block=({K1_BS},1,1) lds={K1_LDS}\n"
    out += f"; @launch kernel={NAME}_kernel grid=({NB},1,1) block=(1024,1,1) lds={K2_LDS}\n"
    out += '.amdgcn_target "amdgcn-amd-amdhsa--gfx950"\n.text\n'
    out += t1 + t2
    out += '.section .rodata,"a"\n.p2align 6\n' + kd1 + ".p2align 6\n" + kd2
    open(opt.o, "w").write(out)


if __name__ == "__main__":
    main()
```

```python
import sys, argparse

NAME = "standalone__tensor_product_equiv_equiformer__graph"
N = 25000
E = 800000
CH = 3200
NCHUNK = 250
BN = 98
NB = 256
NG = 14
GN = 7
K1_BS = 832
K1_WWG = 10
CAP = 3776
MINU = 12

WS_REC = 0
WS_SEG = 0x930000
WS_WF = 0x980000
WS_DBG = 0xA00000

L_COEF = 0
L_META = CAP * 8
L_HIST = L_META + CAP * 4
L_BASE = L_HIST + 1024
L_STG = L_BASE + 1024
L_SBUF = L_STG + NG * 4096
L_FLAG = L_SBUF + 4 * 112 * 128
K2_LDS = L_FLAG + 64
ST = 112 * 128
assert L_STG % 256 == 0 and L_SBUF % 256 == 0 and K2_LDS <= 163840

K1_HIST = 0
K1_BASE = 1024
K1_REC = 4096
K1_LDS = K1_REC + CH * 12


class Asm:
    def __init__(self, stamps=False, sbase=72):
        self.l = []
        self.stamps = stamps
        self.ns = 0
        self.sbase = sbase
        self.names = []
    def stamp(self, name):
        if not self.stamps: return
        if self.sbase + 2 * self.ns + 1 > 101: return
        r = self.sbase + 2 * self.ns
        self(f"s_memrealtime s[{r}:{r+1}]" if self.stamps == 2 else f"s_memtime s[{r}:{r+1}]")
        self.names.append(name)
        self.ns += 1
    def stamp_dyn(self, name, n, sidx, stmp):
        if not self.stamps: return
        lab = f"SD_{self.sbase}_{self.ns}"
        for i in range(n):
            self(f"s_cmp_lg_u32 s{sidx}, {i}")
            self(f"s_cbranch_scc1 {lab}_{i}")
            self.stamp(f"{name}{i}")
            self(f"{lab}_{i}:")
    def dump_stamps(self, ws, nwaves, extra_off, vt, vtid):
        if not self.stamps: return
        self("s_waitcnt lgkmcnt(0)")
        self("s_mov_b64 exec, -1")
        self(f"v_mov_b32 v{vt}, 0")
        for i in range(self.ns):
            self(f"v_writelane_b32 v{vt}, s{self.sbase + 2*i}, {i}")
        self(f"v_lshrrev_b32 v{vt+1}, 6, v{vtid}")
        self(f"s_mul_i32 s{self.sbase}, s2, {nwaves}")
        self(f"v_add_u32 v{vt+1}, s{self.sbase}, v{vt+1}")
        self(f"v_lshlrev_b32 v{vt+1}, 6, v{vt+1}")
        self(f"v_and_b32 v{vt+2}, 63, v{vtid}")
        self(f"v_lshl_add_u32 v{vt+1}, v{vt+2}, 2, v{vt+1}")
        self(f"v_add_u32 v{vt+1}, {WS_DBG + extra_off}, v{vt+1}")
        self(f"s_mov_b64 exec, 0xffff")
        self(f"global_store_dword v{vt+1}, v{vt}, s[{ws}:{ws+1}]")
    def __call__(self, s):
        for ln in s.strip("\n").split("\n"):
            self.l.append("    " + ln.strip() if not ln.strip().endswith(":") else ln.strip())
    def text(self):
        return "\n".join(self.l) + "\n"


def wave_scan(A, v):
    for sh in (1, 2, 4, 8):
        A("s_nop 1")
        A(f"v_add_u32_dpp v{v}, v{v}, v{v} row_shr:{sh} row_mask:0xf bank_mask:0xf bound_ctrl:0")
    A("s_nop 1")
    A(f"v_add_u32_dpp v{v}, v{v}, v{v} row_bcast:15 row_mask:0xa bank_mask:0xf")
    A("s_nop 1")
    A(f"v_add_u32_dpp v{v}, v{v}, v{v} row_bcast:31 row_mask:0xc bank_mask:0xf")


def srd(A, d, lo, hi, nbytes):
    A(f"s_mov_b32 s{d}, s{lo}")
    A(f"s_and_b32 s{d+1}, s{hi}, 0xffff")
    A(f"s_mov_b32 s{d+2}, {nbytes}")
    A(f"s_mov_b32 s{d+3}, 0x00020000")


def gen_k1(opt):
    A = Asm(opt.stamps, 40)
    k = "tp_sort_kernel"
    A(f".globl {k}\n.p2align 8\n.type {k},@function\n{k}:")
    A(f"s_cmp_ge_u32 s2, {NCHUNK + K1_WWG}")
    A("s_cbranch_scc1 K1_END")
    A("s_load_dwordx8 s[8:15], s[0:1], 0x0")
    A("s_load_dwordx8 s[16:23], s[0:1], 0x20")
    A("s_load_dwordx2 s[24:25], s[0:1], 0x40")
    A("s_load_dwordx2 s[26:27], s[0:1], 0x58")
    A(f"s_cmp_ge_u32 s2, {NCHUNK}")
    A("s_cbranch_scc1 K1_WEIGHTS")
    A.stamp("entry")
    A("v_lshlrev_b32 v1, 2, v0")
    A("v_mov_b32 v2, 0")
    A("ds_write_b32 v1, v2")
    A(f"s_mul_i32 s3, s2, {CH*4}")
    A("v_lshlrev_b32 v3, 4, v0")
    A("v_add_u32 v3, s3, v3")
    A("v_lshrrev_b32 v4, 1, v3")
    A("v_add_u32 v5, v3, v4")
    A(f"v_cmp_gt_u32 vcc, {CH//4}, v0")
    A("s_waitcnt lgkmcnt(0)")
    A("s_and_saveexec_b64 s[28:29], vcc")
    A("s_mov_b64 s[30:31], exec")
    lf = opt.k1ld
    A(f"global_load_dwordx4 v[8:11], v3, s[16:17] {lf}")
    A(f"global_load_dwordx4 v[12:15], v3, s[14:15] {lf}")
    A(f"global_load_dwordx2 v[16:17], v4, s[12:13] {lf}")
    A(f"global_load_dwordx4 v[18:21], v5, s[10:11] {lf}")
    A(f"global_load_dwordx2 v[22:23], v5, s[10:11] offset:16 {lf}")
    A.stamp("issued")
    A("s_barrier")
    A.stamp("bar1")
    A("s_mov_b32 s4, 42800")
    A("s_movk_i32 s5, 147")
    A("v_mov_b32 v60, 1")
    A("s_waitcnt vmcnt(4)")
    A.stamp("dst")
    for i in range(4):
        A(f"v_mul_u32_u24 v{24+i}, s4, v{8+i}")
        A(f"v_lshrrev_b32 v{24+i}, 22, v{24+i}")
        A(f"v_lshlrev_b32 v{28+i}, 2, v{24+i}")
        A(f"ds_add_rtn_u32 v{32+i}, v{28+i}, v60")
    for i in range(4):
        A(f"v_mul_u32_u24 v{36+i}, {BN}, v{24+i}")
        A(f"v_sub_u32 v{36+i}, v{8+i}, v{36+i}")
        A(f"v_mul_u32_u24 v{40+i}, s5, v{36+i}")
        A(f"v_lshrrev_b32 v{40+i}, 10, v{40+i}")
        A(f"v_mul_u32_u24 v{44+i}, {GN}, v{40+i}")
        A(f"v_sub_u32 v{44+i}, v{36+i}, v{44+i}")
    A("s_waitcnt vmcnt(3)")
    for i in range(4):
        A(f"v_mul_u32_u24 v{36+i}, 41, v{12+i}")
        A(f"v_lshrrev_b32 v{36+i}, 16, v{36+i}")
        A(f"v_lshl_add_u32 v{36+i}, v{40+i}, 4, v{36+i}")
        A(f"v_lshl_or_b32 v{36+i}, v{36+i}, 24, v{12+i}")
        A(f"v_lshl_or_b32 v{36+i}, v{44+i}, 18, v{36+i}")
    A("s_waitcnt vmcnt(0)")
    A.stamp("allld")
    if opt.xk1:
        A(f"s_mul_i32 s3, s2, {400*128}")
        A("v_lshlrev_b32 v6, 7, v0")
        A("v_add_u32 v6, s3, v6")
        A(f"v_cmp_gt_u32 vcc, {opt.xk1}, v0")
        A("s_and_saveexec_b64 s[28:29], vcc")
        A("s_cbranch_execz K1_NOPF")
        A("global_load_dword v7, v6, s[8:9]")
        A("K1_NOPF:")
        A("s_mov_b64 exec, s[28:29]")
    A("s_mov_b32 s7, 0xffff0000")
    A("v_lshlrev_b32 v40, 16, v16")
    A("v_and_b32 v41, s7, v16")
    A("v_lshlrev_b32 v42, 16, v17")
    A("v_and_b32 v43, s7, v17")
    for i in range(4):
        for j in range(3):
            h = 3 * i + j
            reg = 18 + h // 2
            if h % 2 == 0:
                A(f"v_lshlrev_b32 v{44+j}, 16, v{reg}")
            else:
                A(f"v_and_b32 v{44+j}, s7, v{reg}")
            A(f"v_mul_f32 v{44+j}, v{40+i}, v{44+j}")
        A(f"v_cvt_pk_bf16_f32 v{48+2*i}, v{40+i}, v44")
        A(f"v_cvt_pk_bf16_f32 v{49+2*i}, v45, v46")
    A("s_mov_b64 exec, -1")
    A("s_waitcnt lgkmcnt(0)")
    A.stamp("prebar2")
    A("s_barrier")
    A.stamp("bar2")
    A("v_and_b32 v1, 63, v0")
    A("v_lshlrev_b32 v1, 4, v1")
    A(f"ds_read_b128 v[8:11], v1 offset:{K1_HIST}")
    A("s_waitcnt lgkmcnt(0)")
    A("v_add_u32 v12, v8, v9")
    A("v_add_u32 v13, v12, v10")
    A("v_add_u32 v14, v13, v11")
    A("v_mov_b32 v15, v14")
    wave_scan(A, 15)
    A("v_sub_u32 v16, v15, v14")
    A("v_add_u32 v17, v16, v8")
    A("v_add_u32 v18, v16, v12")
    A("v_add_u32 v19, v16, v13")
    A(f"ds_write_b128 v1, v[16:19] offset:{K1_BASE}")
    A("v_readfirstlane_b32 s6, v0")
    A("s_nop 3")
    A("s_cmp_lg_u32 s6, 768")
    A("s_cbranch_scc1 K1_NOSEG")
    for i in range(4):
        A(f"v_lshl_or_b32 v{20+i}, v{8+i}, 16, v{16+i}")
    A("s_lshl_b32 s3, s2, 2")
    A(f"s_add_u32 s3, s3, {WS_SEG}")
    A("v_lshl_add_u32 v2, v1, 8, s3")
    for i in range(4):
        A(f"global_store_dword v2, v{20+i}, s[26:27] offset:{i*1024} {opt.k1seg}")
    A("K1_NOSEG:")
    A("s_mov_b64 exec, s[30:31]")
    for i in range(4):
        A(f"ds_read_b32 v{24+i}, v{28+i} offset:{K1_BASE}")
    for i in range(4):
        A(f"s_waitcnt lgkmcnt({3-i})")
        A(f"v_add_u32 v{24+i}, v{24+i}, v{32+i}")
        A(f"v_mul_u32_u24 v{24+i}, 12, v{24+i}")
        A(f"v_add_u32 v{24+i}, {K1_REC}, v{24+i}")
    for i in range(4):
        A(f"ds_write2_b32 v{24+i}, v{48+2*i}, v{49+2*i} offset1:1")
        A(f"ds_write_b32 v{24+i}, v{36+i} offset:8")
    A("s_mov_b64 exec, -1")
    A("s_waitcnt lgkmcnt(0)")
    A.stamp("prebar3")
    A("s_barrier")
    A.stamp("bar3")
    A("v_lshlrev_b32 v1, 4, v0")
    A(f"s_mul_i32 s3, s2, {CH*12}")
    A("v_add_u32 v2, s3, v1")
    st = K1_BS * 16
    A(f"ds_read_b128 v[8:11], v1 offset:{K1_REC}")
    A(f"ds_read_b128 v[12:15], v1 offset:{K1_REC + st}")
    A(f"ds_read_b128 v[16:19], v1 offset:{K1_REC + 2*st}")
    A(f"v_add_u32 v3, {st}, v2")
    A(f"v_add_u32 v4, {2*st}, v2")
    A("s_waitcnt lgkmcnt(2)")
    A(f"global_store_dwordx4 v2, v[8:11], s[26:27] {opt.k1st}")
    A("s_waitcnt lgkmcnt(1)")
    A(f"global_store_dwordx4 v3, v[12:15], s[26:27] {opt.k1st}")
    A(f"v_cmp_gt_u32 vcc, {CH*12//16 - 2*K1_BS}, v0")
    A("s_and_saveexec_b64 s[28:29], vcc")
    A("s_cbranch_execz K1_FIN")
    A("s_waitcnt lgkmcnt(0)")
    A(f"global_store_dwordx4 v4, v[16:19], s[26:27] {opt.k1st}")
    A("K1_FIN:")
    if opt.xk1e:
        A("s_mov_b64 exec, -1")
        A(f"s_mul_i32 s3, s2, {400*128}")
        A("v_lshlrev_b32 v6, 7, v0")
        A("v_add_u32 v6, s3, v6")
        A(f"v_cmp_gt_u32 vcc, {opt.xk1e}, v0")
        A("s_and_saveexec_b64 s[28:29], vcc")
        A("s_cbranch_execz K1_NOPF2")
        A("global_load_dword v7, v6, s[8:9]")
        A("K1_NOPF2:")
        A("s_mov_b64 exec, s[28:29]")
    A.stamp("stored")
    if opt.stamps:
        A("s_waitcnt vmcnt(0)")
    A.stamp("end")
    A.dump_stamps(26, 13, 0x100000, 24, 0)
    A("s_endpgm")

    A("K1_WEIGHTS:")
    A("s_waitcnt lgkmcnt(0)")
    A("s_cmp_ge_u32 s2, 256")
    A("s_cbranch_scc1 K1_NOZ")
    A("v_cmp_gt_u32 vcc, 256, v0")
    A("s_and_saveexec_b64 s[28:29], vcc")
    A("s_cbranch_execz K1_NOZ2")
    A("s_lshl_b32 s3, s2, 2")
    A(f"s_add_u32 s3, s3, {WS_SEG}")
    A("v_lshl_add_u32 v2, v0, 10, s3")
    A("v_mov_b32 v3, 0")
    A(f"global_store_dword v2, v3, s[26:27] {opt.k1seg}")
    A("K1_NOZ2:")
    A("s_mov_b64 exec, s[28:29]")
    A("K1_NOZ:")
    A(f"s_sub_u32 s3, s2, {NCHUNK}")
    A(f"s_mul_i32 s3, s3, {K1_BS}")
    A("v_add_u32 v1, s3, v0")
    A("s_nop 0")
    A("v_readfirstlane_b32 s4, v1")
    A("s_nop 3")
    A("s_cmp_ge_u32 s4, 8192")
    A("s_cbranch_scc1 K1_END")
    A("s_lshr_b32 s5, s4, 11")
    A("s_bfe_u32 s6, s4, 0x20009")
    A("s_bfe_u32 s7, s4, 0x20007")
    A("s_bfe_u32 s28, s4, 0x10006")
    A("s_mov_b32 s29, 4")
    A("s_cmp_eq_u32 s5, s7")
    A("s_cselect_b32 s29, 3, s29")
    A("s_cmp_eq_u32 s7, 0")
    A("s_cselect_b32 s29, 2, s29")
    A("s_cselect_b32 s30, 0, 1")
    A("s_cmp_eq_u32 s5, 0")
    A("s_cselect_b32 s29, s30, s29")
    A("s_cmp_lt_u32 s29, 2")
    A("s_cselect_b32 s32, s20, s22")
    A("s_cselect_b32 s33, s21, s23")
    A("s_cselect_b32 s30, 0, 2")
    A("s_sub_u32 s30, s29, s30")
    A("s_lshl_b32 s30, s30, 13")
    A("v_and_b32 v2, 15, v0")
    A("v_bfe_u32 v3, v0, 4, 2")
    A("s_lshl_b32 s31, s28, 2")
    A("v_lshl_add_u32 v4, v3, 4, s31")
    A("s_lshl_b32 s34, s6, 5")
    A("s_add_u32 s34, s34, s30")
    A("v_lshlrev_b32 v5, 7, v4")
    A("v_lshl_add_u32 v5, v2, 1, v5")
    A("v_add_u32 v5, s34, v5")
    for e in range(8):
        off = (8 * (e >> 2) + (e & 3)) * 128
        A(f"global_load_ushort v{8+e}, v5, s[32:33] offset:{off}")
    A("s_lshl_b32 s34, s29, 7")
    A("v_lshl_add_u32 v6, v4, 1, s34")
    A("global_load_dwordx2 v[16:17], v6, s[18:19]")
    A("global_load_dwordx2 v[18:19], v6, s[18:19] offset:16")
    A("s_xor_b32 s35, s5, s7")
    A("s_mul_i32 s36, s5, 9")
    A("s_mul_i32 s37, s35, 3")
    A("s_add_u32 s36, s36, s37")
    A("s_add_u32 s36, s36, s7")
    A("s_sub_u32 s36, s36, 13")
    A("s_cmp_eq_u32 s29, 4")
    A("s_cselect_b32 s36, s36, 0")
    A("s_lshl_b32 s36, s36, 1")
    A("v_mov_b32 v7, s36")
    A("global_load_ushort v20, v7, s[24:25]")
    A("s_waitcnt vmcnt(0)")
    A("v_lshlrev_b32 v20, 16, v20")
    A("s_cmp_eq_u32 s29, 4")
    A("s_cselect_b64 vcc, -1, 0")
    A("v_mov_b32 v21, 1.0")
    A("v_cndmask_b32 v20, v21, v20, vcc")
    A("s_mov_b32 s7, 0xffff0000")
    for e in range(8):
        reg = 16 + e // 2
        if e % 2 == 0:
            A(f"v_lshlrev_b32 v22, 16, v{reg}")
        else:
            A(f"v_and_b32 v22, s7, v{reg}")
        A(f"v_lshlrev_b32 v{8+e}, 16, v{8+e}")
        A(f"v_mul_f32 v22, v22, v20")
        A(f"v_mul_f32 v{8+e}, v{8+e}, v22")
    for d in range(4):
        A(f"v_cvt_pk_bf16_f32 v{24+d}, v{8+2*d}, v{9+2*d}")
    A("v_lshlrev_b32 v1, 4, v1")
    A(f"v_add_u32 v1, {WS_WF}, v1")
    A("global_store_dwordx4 v1, v[24:27], s[26:27]")
    A("K1_END:")
    A("s_endpgm")
    kd = f"""
.amdhsa_kernel {k}
  .amdhsa_next_free_vgpr 64
  .amdhsa_next_free_sgpr {102 if opt.stamps else 40}
  .amdhsa_accum_offset 64
  .amdhsa_group_segment_fixed_size 0
  .amdhsa_kernarg_size 96
  .amdhsa_user_sgpr_count 2
  .amdhsa_user_sgpr_kernarg_segment_ptr 1
  .amdhsa_system_sgpr_workgroup_id_x 1
  .amdhsa_float_denorm_mode_32 3
.end_amdhsa_kernel
"""
    return A.text(), kd


def gen_k2(opt):
    A = Asm(opt.stamps, 72)
    k = f"{NAME}_kernel"
    sX, sREC, sOUT = 4, 8, 12
    sW, sNU, sI, sQ, sQn, sM0, s512, sB, sQ0, sPh = range(16, 26)
    sT0, sT1, sGB = 26, 27, 28
    sMode, sRound, sNR, sJB, sK, sCM = 30, 31, 32, 33, 34, 35
    sU, sCT, sWF = 36, 37, 38
    sEX = 40
    sWS = 56
    sP = 58
    (vDOff, vMI, vMC, vMI0, vMC0, vB0, vB1, vBL0, vA0, vA1, vMy, vD0, vD1, vSW, vSR, vLane, vS2a, vS2b, vWo) = range(1, 20)
    vSrc = 20
    vNl = 22
    vA = 24
    vB = 32
    vS = 36
    vT = 44
    vAcc = 52
    vO = 84
    vW = 112
    vW3 = 120

    A(f".globl {k}\n.p2align 8\n.type {k},@function\n{k}:")
    A(f"s_cmp_ge_u32 s2, {NB}")
    A("s_cbranch_scc1 K2_END")
    A.stamp("entry")
    A(f"s_load_dwordx2 s[{sWS}:{sWS+1}], s[0:1], 0x58")
    A(f"s_load_dwordx2 s[{sP}:{sP+1}], s[0:1], 0x0")
    A(f"s_load_dwordx2 s[{sP+2}:{sP+3}], s[0:1], 0x48")
    A(f"v_lshrrev_b32 v{vT}, 6, v0")
    A(f"v_and_b32 v{vLane}, 63, v0")
    A(f"v_readfirstlane_b32 s{sW}, v{vT}")
    A(f"s_and_b32 s{sT0}, s2, 7")
    A(f"s_lshr_b32 s{sT1}, s2, 3")
    A(f"s_lshl_b32 s{sB}, s{sT0}, 5")
    A(f"s_add_u32 s{sB}, s{sB}, s{sT1}")
    if opt.rot == 2:
        A(f"s_mov_b32 s{sQ0}, 3")
    else:
        A(f"s_and_b32 s{sQ0}, s{sT0}, {3 if opt.rot else 0}")
    A(f"s_mov_b32 s{sMode}, 0")
    A(f"s_mov_b32 s{sRound}, 0")
    A(f"s_mov_b32 s{sJB}, 0")
    A(f"s_mov_b32 s{sK}, 0")
    A(f"s_mov_b32 s{sCM}, 0")
    A(f"s_movk_i32 s{s512}, 512")
    A(f"s_lshr_b32 s{sU}, s{sW}, 2")
    A(f"s_and_b32 s{sCT}, s{sW}, 3")
    A("s_waitcnt lgkmcnt(0)")

    A("K2_ROUND:")
    A(f"s_lshl_b32 s{sT0}, s{sB}, 10")
    A(f"s_add_u32 s{sT0}, s{sT0}, {WS_SEG}")
    A(f"v_and_b32 v{vT}, 0x3f0, v0")
    A(f"v_add_u32 v{vT+1}, s{sT0}, v{vT}")
    A(f"global_load_dwordx4 v[{vS}:{vS+3}], v{vT+1}, s[{sWS}:{sWS+1}]")
    srd(A, sX, sP, sP + 1, N * 512)
    srd(A, sOUT, sP + 2, sP + 3, N * 512)
    srd(A, sREC, sWS, sWS + 1, NCHUNK * CH * 12)
    A(f"v_cmp_gt_u32 vcc, {CAP*4//16}, v0")
    A(f"v_lshlrev_b32 v{vT+2}, 4, v0")
    A(f"v_mov_b32 v{vT+3}, 0")
    A(f"v_cndmask_b32 v{vA}, 0, -1, vcc")
    A(f"v_cndmask_b32 v{vA+1}, 0, -1, vcc")
    A(f"v_cndmask_b32 v{vA+2}, 0, -1, vcc")
    A(f"v_cndmask_b32 v{vA+3}, 0, -1, vcc")
    A(f"ds_write_b128 v{vT+2}, v[{vA}:{vA+3}] offset:{L_META}")
    A(f"v_mov_b32 v{vT+4}, {L_FLAG}")
    A(f"ds_write_b32 v{vT+4}, v{vT+3}")
    A(f"v_and_b32 v{vA}, 7, v{vLane}")
    A(f"v_bfe_u32 v{vA+1}, v{vLane}, 4, 1")
    A(f"v_lshlrev_b32 v{vA+2}, 2, v{vA+1}")
    A(f"v_xor_b32 v{vA}, v{vA}, v{vA+2}")
    A(f"v_lshlrev_b32 v{vDOff}, 4, v{vA}")
    A(f"v_lshrrev_b32 v{vA}, 5, v{vLane}")
    A(f"v_bfe_u32 v{vA+2}, v{vLane}, 2, 2")
    A(f"v_lshl_add_u32 v{vA+3}, v{vA}, 2, v{vA+2}")
    A(f"v_lshrrev_b32 v{vMI0}, 3, v{vLane}")
    A(f"v_lshlrev_b32 v{vMI0}, 2, v{vMI0}")
    A(f"v_lshlrev_b32 v{vMC0}, 2, v{vA+3}")
    A(f"v_lshlrev_b32 v{vBL0}, 3, v{vA+3}")
    A(f"v_and_b32 v{vA+4}, 3, v{vLane}")
    A(f"v_lshl_add_u32 v{vMy}, v{vA+1}, 2, v{vA+4}")
    A(f"v_lshlrev_b32 v{vMy}, 2, v{vMy}")
    A(f"s_lshl_b32 s{sM0}, s{sW}, 12")
    A(f"s_add_u32 s{sM0}, s{sM0}, {L_STG}")
    A(f"v_lshlrev_b32 v{vA0}, 7, v{vA+3}")
    A(f"v_bfe_u32 v{vA+5}, v{vLane}, 3, 1")
    A(f"v_lshl_add_u32 v{vA0}, v{vA+5}, 6, v{vA0}")
    A(f"v_lshl_add_u32 v{vA0}, v{vA+1}, 5, v{vA0}")
    A(f"v_lshl_add_u32 v{vA0}, v{vA+4}, 3, v{vA0}")
    A(f"v_add_u32 v{vA0}, s{sM0}, v{vA0}")
    A(f"v_xor_b32 v{vA1}, 64, v{vA0}")
    A(f"v_bfe_u32 v{vA+2}, v{vLane}, 2, 3")
    A(f"s_lshl_b32 s{sT0}, s{sW}, 3")
    A(f"v_add_u32 v{vA+2}, s{sT0}, v{vA+2}")
    A(f"v_bfe_u32 v{vA+3}, v{vA+2}, 1, 3")
    A(f"v_and_b32 v{vA+5}, 1, v{vA+2}")
    A(f"v_xor_b32 v{vA+3}, v{vA+3}, v{vA+5}")
    A(f"v_lshlrev_b32 v{vA+5}, 1, v{vA+4}")
    A(f"v_xor_b32 v{vA+3}, v{vA+3}, v{vA+5}")
    A(f"v_lshlrev_b32 v{vA+5}, 2, v{vA}")
    A(f"v_xor_b32 v{vA+3}, v{vA+3}, v{vA+5}")
    A(f"v_lshlrev_b32 v{vSW}, 4, v{vA+3}")
    A(f"v_lshl_add_u32 v{vSW}, v{vA+2}, 7, v{vSW}")
    A(f"v_mul_u32_u24 v{vA+5}, {ST}, v{vA+4}")
    A(f"v_add_u32 v{vSW}, v{vSW}, v{vA+5}")
    A(f"v_add_u32 v{vSW}, {L_SBUF}, v{vSW}")
    A(f"v_and_b32 v{vA}, 15, v{vLane}")
    A(f"v_lshrrev_b32 v{vA+1}, 4, v{vLane}")
    A(f"v_lshrrev_b32 v{vA+2}, 1, v{vA}")
    A(f"v_xor_b32 v{vA+1}, v{vA+1}, v{vA+2}")
    A(f"v_and_b32 v{vA+2}, 1, v{vA}")
    A(f"v_xor_b32 v{vA+1}, v{vA+1}, v{vA+2}")
    A(f"v_lshlrev_b32 v{vSR}, 4, v{vA+1}")
    A(f"v_lshl_add_u32 v{vSR}, v{vA}, 7, v{vSR}")
    A(f"s_lshl_b32 s{sWF}, s{sW}, 13")
    A(f"s_add_u32 s{sWF}, s{sWF}, {WS_WF}")
    A(f"v_lshl_add_u32 v{vWo}, v{vLane}, 4, s{sWF}")
    A(f"v_lshrrev_b32 v{vT}, 2, v{vT}")
    A(f"v_mul_u32_u24 v{vT+1}, {CH}, v{vT}")
    A(f"v_add_u32 v{vT+1}, v{vT+1}, v{vA}")
    A(f"v_add_u32 v{vT+1}, s{sJB}, v{vT+1}")
    A(f"v_add_u32 v{vT+2}, s{sJB}, v{vA}")
    A(f"s_cmp_lg_u32 s{sRound}, 0")
    A("s_cbranch_scc1 K2_NOZERO")
    for i in range(28):
        A(f"v_mov_b32 v{vO+i}, 0")
    A("K2_NOZERO:")
    A("s_waitcnt vmcnt(0)")
    A.stamp("seg")
    for r in range(4):
        A(f"v_lshrrev_b32 v{vS+4+r}, 16, v{vS+r}")
        A(f"v_and_b32 v{vS+r}, 0xffff, v{vS+r}")
        A(f"v_add_u32 v{vA+r}, v{vT+1}, v{vS+r}")
        A(f"v_mul_u32_u24 v{vA+r}, 12, v{vA+r}")
        A(f"v_add_u32 v{vT+5}, {r}, v{vT}")
        A(f"v_and_b32 v{vT+5}, s{sCM}, v{vT+5}")
        A(f"v_cmp_eq_u32 vcc, s{sK}, v{vT+5}")
        A(f"v_sub_u32 v{vT+6}, v{vS+4+r}, v{vT+2}")
        A("s_nop 0")
        A(f"v_cndmask_b32 v{vT+6}, 0, v{vT+6}, vcc")
        A(f"v_cmp_lt_i32 s[{sEX+2*r}:{sEX+2*r+1}], 0, v{vT+6}")
        A(f"v_cmp_lt_i32 s[{sEX+8+2*r}:{sEX+8+2*r+1}], 16, v{vT+6}")
    A(f"s_mov_b32 s{sT0}, {CH*12}")
    A(f"s_mov_b32 s{sT1}, {2*CH*12}")
    A(f"s_mov_b32 s{sGB}, {3*CH*12}")
    so = ["0", f"s{sT0}", f"s{sT1}", f"s{sGB}"]
    for i in range(8):
        r, it = i % 4, i // 4
        A(f"s_mov_b64 exec, s[{sEX+2*i}:{sEX+2*i+1}]")
        A(f"s_cbranch_execz K2_LD{i}")
        A(f"buffer_load_dwordx3 v[{vAcc+4*i}:{vAcc+4*i+2}], v{vA+r}, s[{sREC}:{sREC+3}], {so[r]} offen offset:{192*it}")
        A(f"K2_LD{i}:")
    A("s_mov_b64 exec, -1")
    def pf():
        A(f"s_lshr_b32 s{sT0}, s2, 3")
        A(f"s_mul_i32 s{sT0}, s{sT0}, {opt.pfn*512}")
        A(f"s_lshl_b32 s{sT1}, s{sQ0}, 7")
        A(f"s_add_u32 s{sT0}, s{sT0}, s{sT1}")
        A(f"v_cmp_gt_u32 vcc, {opt.pfn}, v0")
        A(f"v_lshlrev_b32 v{vT+5}, 9, v0")
        A(f"v_mov_b32 v{vT+6}, 0x40000000")
        A(f"v_cndmask_b32 v{vT+5}, v{vT+6}, v{vT+5}, vcc")
        A(f"buffer_load_dword v{vT+7}, v{vT+5}, s[{sX}:{sX+3}], s{sT0} offen")
    if opt.pf == 1: pf()
    A("s_waitcnt lgkmcnt(0)")
    A("s_barrier")
    def pfm():
        A(f"s_mul_i32 s{sT0}, s2, {392*128}")
        A(f"v_cmp_gt_u32 vcc, 392, v0")
        A(f"v_lshlrev_b32 v{vT+5}, 7, v0")
        A(f"v_mov_b32 v{vT+6}, 0x40000000")
        A(f"v_cndmask_b32 v{vT+5}, v{vT+6}, v{vT+5}, vcc")
        A(f"buffer_load_dword v{vT+7}, v{vT+5}, s[{sX}:{sX+3}], s{sT0} offen")
    if opt.pf == 3: pf()
    if opt.pf == 4: pfm()
    if opt.pf == 5: pf(); pfm()
    A(f"v_max_u32 v{vT+5}, v{vS+4}, v{vS+5}")
    A(f"v_max3_u32 v{vT+5}, v{vT+5}, v{vS+6}, v{vS+7}")
    A(f"v_cmp_lt_u32 vcc, 32, v{vT+5}")
    A(f"s_and_saveexec_b64 s[{sP+4}:{sP+5}], vcc")
    A("s_cbranch_execz K2_NOOVF")
    A(f"ds_max_u32 v{vT+4}, v{vT+5}")
    A("K2_NOOVF:")
    A("s_mov_b64 exec, -1")
    A(f"v_mov_b32 v{vT}, 1")
    A(f"s_waitcnt vmcnt({ {1:1,3:1,4:1,5:2}.get(opt.pf, 0) })")
    A.stamp("rec")
    for i in range(8):
        A(f"s_mov_b64 exec, s[{sEX+2*i}:{sEX+2*i+1}]")
        A(f"s_cbranch_execz K2_AT{i}")
        A(f"v_lshrrev_b32 v{vA+i}, 24, v{vAcc+4*i+2}")
        A(f"v_lshlrev_b32 v{vA+i}, 2, v{vA+i}")
        A(f"ds_add_rtn_u32 v{vAcc+4*i+3}, v{vA+i}, v{vT} offset:{L_HIST}")
        A(f"K2_AT{i}:")
    A("s_mov_b64 exec, -1")
    A("s_waitcnt lgkmcnt(0)")
    A("s_barrier")
    A.stamp("bar2")
    if opt.pf == 2: pf()
    A(f"v_lshlrev_b32 v{vT}, 4, v{vLane}")
    A(f"ds_read_b128 v[{vB}:{vB+3}], v{vT} offset:{L_HIST}")
    A(f"ds_read_b32 v{vT+4}, v{vT+4}")
    A("s_waitcnt lgkmcnt(0)")
    A(f"v_add_u32 v{vT+1}, v{vB}, v{vB+1}")
    A(f"v_add_u32 v{vT+2}, v{vT+1}, v{vB+2}")
    A(f"v_add_u32 v{vT+3}, v{vT+2}, v{vB+3}")
    A("s_nop 1")
    A(f"v_add_u32_dpp v{vS}, v{vT+3}, v{vT+3} quad_perm:[1,0,3,2] row_mask:0xf bank_mask:0xf")
    A("s_nop 1")
    A(f"v_add_u32_dpp v{vS}, v{vS}, v{vS} quad_perm:[2,3,0,1] row_mask:0xf bank_mask:0xf")
    A(f"v_and_b32 v{vS+3}, 3, v{vLane}")
    A(f"v_cmp_eq_u32 vcc, 3, v{vS+3}")
    A(f"v_add_u32 v{vS+1}, 31, v{vS}")
    A(f"v_and_b32 v{vS+1}, 0xffffffe0, v{vS+1}")
    A(f"v_max_u32 v{vS+1}, {MINU*16}, v{vS+1}")
    A(f"v_sub_u32 v{vS+2}, v{vS+1}, v{vS}")
    A(f"v_cndmask_b32 v{vS+2}, 0, v{vS+2}, vcc")
    A(f"v_add_u32 v{vT+3}, v{vT+3}, v{vS+2}")
    A(f"v_mov_b32 v{vS}, v{vT+3}")
    wave_scan(A, vS)
    A(f"v_sub_u32 v{vS}, v{vS}, v{vT+3}")
    A(f"v_add_u32 v{vB+1}, v{vS}, v{vB}")
    A(f"v_add_u32 v{vB+2}, v{vS}, v{vT+1}")
    A(f"v_add_u32 v{vB+3}, v{vS}, v{vT+2}")
    A(f"v_mov_b32 v{vB}, v{vS}")
    A(f"ds_write_b128 v{vT}, v[{vB}:{vB+3}] offset:{L_BASE}")
    A(f"s_lshl_b32 s{sT0}, s{sW}, 2")
    A(f"v_readlane_b32 s{sT1}, v{vS}, {4*NG}")
    A(f"v_readfirstlane_b32 s{sP+4}, v{vT+4}")
    A(f"v_readlane_b32 s{sGB}, v{vS}, s{sT0}")
    A(f"v_readlane_b32 s{sNU}, v{vS+1}, s{sT0}")
    for i in range(8):
        A(f"s_mov_b64 exec, s[{sEX+2*i}:{sEX+2*i+1}]")
        A(f"s_cbranch_execz K2_RB{i}")
        A(f"ds_read_b32 v{vA+i}, v{vA+i} offset:{L_BASE}")
        A(f"K2_RB{i}:")
    A("s_mov_b64 exec, -1")
    A(f"s_cmp_lg_u32 s{sMode}, 0")
    A("s_cbranch_scc1 K2_OK")
    A(f"s_cmp_gt_u32 s{sT1}, {CAP}")
    A("s_cbranch_scc1 K2_GOSLOW")
    A(f"s_cmp_eq_u32 s{sP+4}, 0")
    A("s_cbranch_scc1 K2_OK")
    A("K2_GOSLOW:")
    A(f"s_mov_b32 s{sMode}, 1")
    A(f"s_mov_b32 s{sCM}, 7")
    A(f"s_max_u32 s{sP+4}, s{sP+4}, 1")
    A(f"s_add_u32 s{sP+4}, s{sP+4}, 31")
    A(f"s_lshr_b32 s{sP+4}, s{sP+4}, 5")
    A(f"s_lshl_b32 s{sNR}, s{sP+4}, 3")
    A("s_waitcnt vmcnt(0) lgkmcnt(0)")
    A("s_barrier")
    A("s_branch K2_ROUND")
    A("K2_OK:")
    A(f"s_lshl_b32 s{sT0}, s{sGB}, 2")
    A(f"s_add_u32 s{sT0}, s{sT0}, {L_META}")
    A(f"v_add_u32 v{vMI0}, s{sT0}, v{vMI0}")
    A(f"v_add_u32 v{vMC0}, s{sT0}, v{vMC0}")
    A(f"s_lshl_b32 s{sT0}, s{sGB}, 3")
    A(f"v_add_u32 v{vBL0}, s{sT0}, v{vBL0}")
    A(f"s_lshr_b32 s{sNU}, s{sNU}, 4")
    A(f"s_sub_u32 s{sNU}, s{sNU}, 2")
    A("s_waitcnt lgkmcnt(0)")
    for i in range(8):
        A(f"s_mov_b64 exec, s[{sEX+2*i}:{sEX+2*i+1}]")
        A(f"s_cbranch_execz K2_SC{i}")
        A(f"v_add_lshl_u32 v{vA+i}, v{vA+i}, v{vAcc+4*i+3}, 2")
        A(f"v_lshlrev_b32 v{vT}, 1, v{vA+i}")
        A(f"ds_write_b32 v{vA+i}, v{vAcc+4*i+2} offset:{L_META}")
        A(f"ds_write_b64 v{vT}, v[{vAcc+4*i}:{vAcc+4*i+1}] offset:{L_COEF}")
        A(f"K2_SC{i}:")
    A("s_mov_b64 exec, -1")
    A(f"s_mov_b32 s{sPh}, 0")
    A(f"s_mov_b32 s{sQ}, s{sQ0}")
    A(f"s_lshl_b32 s{sQn}, s{sQ0}, 7")
    A("s_waitcnt lgkmcnt(0)")
    A("s_barrier")
    A.stamp("main")
    if opt.stamps == 1:
        A.stamps = 2; A.stamp("mainrt"); A.stamps = 1

    def mads():
        A(f"v_mad_u32_u16 v{vD0}, v{vSrc}, s{s512}, v{vDOff}")
        A(f"v_mad_u32_u16 v{vD1}, v{vSrc+1}, s{s512}, v{vDOff}")

    def dma(slot, wait=None):
        A(f"s_add_u32 m0, s{sM0}, {slot*2048}")
        A(wait if wait else "s_nop 0")
        A(f"buffer_load_dwordx4 v{vD0}, s[{sX}:{sX+3}], s{sQn} offen lds")
        A(f"s_add_u32 m0, s{sM0}, {slot*2048+1024}")
        A("s_nop 0")
        A(f"buffer_load_dwordx4 v{vD1}, s[{sX}:{sX+3}], s{sQn} offen lds")

    def s2_addr(qreg):
        A(f"s_xor_b32 s{sT0}, s{sU}, s{qreg}")
        A(f"s_lshl_b32 s{sT1}, s{sT0}, 5")
        A(f"s_mul_i32 s{sT0}, s{sT0}, {ST}")
        A(f"s_add_u32 s{sT0}, s{sT0}, {L_SBUF}")
        A(f"v_xor_b32 v{vS2a}, s{sT1}, v{vSR}")
        A(f"v_add_u32 v{vS2a}, s{sT0}, v{vS2a}")
        A(f"v_xor_b32 v{vS2b}, 64, v{vS2a}")

    def load_w(qreg):
        A(f"s_lshl_b32 s{sT0}, s{qreg}, 11")
        A(f"v_add_u32 v{vT}, s{sT0}, v{vWo}")
        A(f"global_load_dwordx4 v[{vW}:{vW+3}], v{vT}, s[{sWS}:{sWS+1}]")
        A(f"global_load_dwordx4 v[{vW+4}:{vW+7}], v{vT}, s[{sWS}:{sWS+1}] offset:1024")

    def load_w3():
        A(f"s_add_u32 s{sT0}, s{sQ0}, 3")
        A(f"s_and_b32 s{sT0}, s{sT0}, 3")
        A(f"s_lshl_b32 s{sT0}, s{sT0}, 11")
        A(f"v_add_u32 v{vT+4}, s{sT0}, v{vWo}")
        A(f"global_load_dwordx4 v[{vW3}:{vW3+3}], v{vT+4}, s[{sWS}:{sWS+1}]")
        A(f"global_load_dwordx4 v[{vW3+4}:{vW3+7}], v{vT+4}, s[{sWS}:{sWS+1}] offset:1024")

    def s2_mfma(tl, w, s):
        A(f"v_mfma_f32_16x16x32_bf16 v[{vO+4*tl}:{vO+4*tl+3}], v[{w}:{w+3}], v[{s}:{s+3}], v[{vO+4*tl}:{vO+4*tl+3}]")
        A(f"v_mfma_f32_16x16x32_bf16 v[{vO+4*tl}:{vO+4*tl+3}], v[{w+4}:{w+7}], v[{s+4}:{s+7}], v[{vO+4*tl}:{vO+4*tl+3}]")

    def body(slot, u, mi, miu, mc, mcu, vm=2, s2m=None, s2r=None, bar=False, post=None):
        A("s_waitcnt lgkmcnt(0)")
        A(f"v_xor_b32_sdwa v{vB0}, v{vNl}, v{vMy} dst_sel:WORD_1 dst_unused:UNUSED_PRESERVE src0_sel:BYTE_2 src1_sel:WORD_0")
        A(f"v_xor_b32_sdwa v{vB1}, v{vNl+1}, v{vMy} dst_sel:WORD_1 dst_unused:UNUSED_PRESERVE src0_sel:BYTE_2 src1_sel:WORD_0")
        A(f"ds_read2_b32 v[{vSrc}:{vSrc+1}], v{mi} offset0:{16*miu} offset1:{16*miu+8}")
        if opt.bmode == 0:
            A(f"ds_read_b64_tr_b16 v[{vB}:{vB+1}], v{vB0} offset:{128*u}")
            A(f"ds_read_b64_tr_b16 v[{vB+2}:{vB+3}], v{vB1} offset:{128*u+64}")
        elif opt.bmode == 1:
            A(f"ds_read_b32 v{vT+5}, v{mi}")
            A(f"ds_read_b32 v{vT+6}, v{mi}")
        elif opt.bmode == 2:
            A(f"v_min_u32 v{vT+5}, 0x30000, v{vB0}")
            A(f"v_min_u32 v{vT+6}, 0x30000, v{vB1}")
            A(f"ds_read_b64_tr_b16 v[{vB}:{vB+1}], v{vT+5} offset:{128*u}")
            A(f"ds_read_b64_tr_b16 v[{vB+2}:{vB+3}], v{vT+6} offset:{128*u+64}")
        if s2m is not None:
            pass
        A(f"s_waitcnt vmcnt({vm})")
        A(f"ds_read_b64_tr_b16 v[{vA}:{vA+1}], v{vA0} offset:{slot*2048}")
        A(f"ds_read_b64_tr_b16 v[{vA+2}:{vA+3}], v{vA0} offset:{slot*2048+1024}")
        A(f"ds_read_b64_tr_b16 v[{vA+4}:{vA+5}], v{vA1} offset:{slot*2048}")
        A(f"ds_read_b64_tr_b16 v[{vA+6}:{vA+7}], v{vA1} offset:{slot*2048+1024}")
        if s2m is not None:
            s2_mfma(s2m, vW, vS)
        A("s_waitcnt lgkmcnt(6)")
        mads()
        dma(slot, "s_waitcnt lgkmcnt(0)")
        A(f"ds_read2_b32 v[{vNl}:{vNl+1}], v{mc} offset0:{16*mcu} offset1:{16*mcu+8}")
        if opt.mf == 1:
            A(f"v_mfma_f32_32x32x16_bf16 v[{vAcc}:{vAcc+15}], v[{vA}:{vA+3}], v[{vB}:{vB+3}], v[{vAcc}:{vAcc+15}]")
            A(f"v_mfma_f32_32x32x16_bf16 v[{vAcc+16}:{vAcc+31}], v[{vA+4}:{vA+7}], v[{vB}:{vB+3}], v[{vAcc+16}:{vAcc+31}]")
        elif opt.mf == 2:
            A(f"v_mfma_f32_32x32x16_bf16 v[{vAcc}:{vAcc+15}], v[{vB}:{vB+3}], v[{vA}:{vA+3}], v[{vAcc}:{vAcc+15}]")
            A(f"v_mfma_f32_32x32x16_bf16 v[{vAcc+16}:{vAcc+31}], v[{vB}:{vB+3}], v[{vA+4}:{vA+7}], v[{vAcc+16}:{vAcc+31}]")
        if bar:
            A("s_barrier")
        if s2r is not None:
            A(f"ds_read_b128 v[{vS}:{vS+3}], v{vS2a} offset:{s2r*2048}")
            A(f"ds_read_b128 v[{vS+4}:{vS+7}], v{vS2b} offset:{s2r*2048}")
        if post: post()

    def adv(n):
        A(f"v_add_u32 v{vMI}, {64*n}, v{vMI}")
        A(f"v_add_u32 v{vMC}, {64*n}, v{vMC}")
        A(f"v_add_u32 v{vB0}, {128*n}, v{vB0}")
        A(f"v_add_u32 v{vB1}, {128*n}, v{vB1}")

    A(f"s_cmp_ge_u32 s{sW}, {NG}")
    A("s_cbranch_scc1 K2_HELPER")
    A(f"ds_read2_b32 v[{vSrc}:{vSrc+1}], v{vMI0} offset0:0 offset1:8")
    A(f"ds_read2_b32 v[{vS}:{vS+1}], v{vMI0} offset0:16 offset1:24")
    A(f"ds_read2_b32 v[{vNl}:{vNl+1}], v{vMC0} offset0:0 offset1:8")
    A("s_waitcnt lgkmcnt(2)")
    mads()
    dma(0)
    A("s_waitcnt lgkmcnt(1)")
    A(f"v_mad_u32_u16 v{vD0}, v{vS}, s{s512}, v{vDOff}")
    A(f"v_mad_u32_u16 v{vD1}, v{vS+1}, s{s512}, v{vDOff}")
    dma(1)
    A("K2_PHASE:")
    for i in range(32):
        A(f"v_mov_b32 v{vAcc+i}, 0")
    A(f"v_mov_b32 v{vMI}, v{vMI0}")
    A(f"v_mov_b32 v{vMC}, v{vMC0}")
    A(f"v_mov_b32 v{vB0}, v{vBL0}")
    A(f"v_mov_b32 v{vB1}, v{vBL0}")
    A(f"s_mov_b32 s{sI}, 0")
    A(f"s_cmp_eq_u32 s{sPh}, 0")
    A("s_cbranch_scc1 K2_LOOP")
    for i in range(10):
        body(i & 1, i, vMI, i + 2, vMC, i + 1,
             vm=(4 if i == 0 else 2),
             s2m=(i - 2 if 2 <= i <= 8 else None),
             s2r=(i - 1 if 1 <= i <= 7 else None),
             bar=(i == 1 or i == 9))
    adv(10)
    A(f"s_mov_b32 s{sI}, 10")
    A(f"s_cmp_ge_u32 s{sI}, s{sNU}")
    A("s_cbranch_scc1 K2_TAIL")
    A("K2_LOOP:")
    body(0, 0, vMI, 2, vMC, 1)
    A(f"s_add_u32 s{sI}, s{sI}, 2")
    body(1, 1, vMI, 3, vMC, 2, post=lambda: adv(2))
    A(f"s_cmp_lt_u32 s{sI}, s{sNU}")
    A("s_cbranch_scc1 K2_LOOP")
    A("K2_TAIL:")
    A(f"s_add_u32 s{sQn}, s{sQ}, 1")
    A(f"s_and_b32 s{sQn}, s{sQn}, 3")
    A(f"s_lshl_b32 s{sQn}, s{sQn}, 7")
    A(f"s_cmp_eq_u32 s{sPh}, 3")
    A(f"s_cselect_b32 s{sQn}, 0x40000000, s{sQn}")
    body(0, 0, vMI0, 0, vMC, 1)
    body(1, 1, vMI0, 1, vMC0, 0)
    A(f"v_xor_b32 v{vT+1}, 16, v{vSW}")
    A(f"v_xor_b32 v{vT+2}, 32, v{vSW}")
    A(f"v_xor_b32 v{vT+3}, 48, v{vSW}")
    s2_addr(sQ)
    A(f"s_cmp_eq_u32 s{sPh}, 3")
    A("s_cbranch_scc1 K2_NOW")
    load_w(sQ)
    A(f"s_cmp_lg_u32 s{sPh}, 1")
    A("s_cbranch_scc1 K2_NOW")
    load_w3()
    A("K2_NOW:")
    A("s_nop 2")
    for d in range(16):
        A(f"v_cvt_pk_bf16_f32 v{vAcc+d}, v{vAcc+2*d}, v{vAcc+2*d+1}")
    A(f"ds_write_b128 v{vSW}, v[{vAcc}:{vAcc+3}]")
    A(f"ds_write_b128 v{vT+1}, v[{vAcc+4}:{vAcc+7}]")
    A(f"ds_write_b128 v{vT+2}, v[{vAcc+8}:{vAcc+11}]")
    A(f"ds_write_b128 v{vT+3}, v[{vAcc+12}:{vAcc+15}]")
    A.stamp_dyn("fl", 4, sPh, sT0)
    A(f"s_add_u32 s{sQ}, s{sQ}, 1")
    A(f"s_and_b32 s{sQ}, s{sQ}, 3")
    A(f"s_add_u32 s{sPh}, s{sPh}, 1")
    A(f"s_cmp_lt_u32 s{sPh}, 4")
    A("s_waitcnt lgkmcnt(0)")
    A("s_cbranch_scc1 K2_PHASE")
    A("s_branch K2_FINAL")

    def stage2_all(w):
        for half in range(2):
            tiles = range(0, 4) if half == 0 else range(4, 7)
            for j, tl in enumerate(tiles):
                A(f"ds_read_b128 v[{vAcc+8*j}:{vAcc+8*j+3}], v{vS2a} offset:{tl*2048}")
                A(f"ds_read_b128 v[{vAcc+8*j+4}:{vAcc+8*j+7}], v{vS2b} offset:{tl*2048}")
            n = 2 * len(tiles)
            for j, tl in enumerate(tiles):
                n -= 2
                A(f"s_waitcnt lgkmcnt({n})")
                s2_mfma(tl, w, vAcc + 8 * j)

    A("K2_HELPER:")
    load_w3()
    A("K2_HLOOP:")
    s2_addr(sQ)
    load_w(sQ)
    A("s_barrier")
    A("s_waitcnt vmcnt(0)")
    stage2_all(vW)
    A(f"s_add_u32 s{sQ}, s{sQ}, 1")
    A(f"s_and_b32 s{sQ}, s{sQ}, 3")
    A(f"s_add_u32 s{sPh}, s{sPh}, 1")
    A(f"s_cmp_lt_u32 s{sPh}, 3")
    A("s_barrier")
    A("s_cbranch_scc1 K2_HLOOP")
    s2_addr(sQ)
    A("K2_FINAL:")
    A("s_barrier")
    A.stamp("a3")
    if opt.stamps == 1:
        A.stamps = 2; A.stamp("a3rt"); A.stamps = 1
    stage2_all(vW3)
    A("s_waitcnt vmcnt(0)")
    A(f"s_cmp_eq_u32 s{sMode}, 0")
    A("s_cbranch_scc1 K2_EPI")
    A(f"s_add_u32 s{sRound}, s{sRound}, 1")
    A(f"s_cmp_ge_u32 s{sRound}, s{sNR}")
    A("s_cbranch_scc1 K2_EPI")
    A(f"s_and_b32 s{sK}, s{sRound}, 7")
    A(f"s_lshr_b32 s{sJB}, s{sRound}, 3")
    A(f"s_lshl_b32 s{sJB}, s{sJB}, 5")
    A("s_barrier")
    A("s_branch K2_ROUND")
    A("K2_EPI:")
    A.stamp("s2f")
    A(f"v_and_b32 v{vT}, 7, v{vLane}")
    A(f"v_bfe_u32 v{vT+1}, v{vLane}, 3, 1")
    A(f"v_mul_u32_u24 v{vT+1}, {GN}, v{vT+1}")
    A(f"v_add_u32 v{vT+1}, v{vT+1}, v{vT}")
    A(f"v_cmp_eq_u32 vcc, 7, v{vT}")
    A(f"v_lshrrev_b32 v{vT+2}, 5, v{vLane}")
    A(f"s_lshl_b32 s{sT0}, s{sW}, 1")
    A(f"v_add_u32 v{vT+2}, s{sT0}, v{vT+2}")
    A(f"v_bfe_u32 v{vT+3}, v{vLane}, 4, 1")
    A(f"v_lshlrev_b32 v{vT+3}, 3, v{vT+3}")
    A(f"v_mov_b32 v{vT+4}, 0x30000")
    A(f"v_add_u32 v{vT+3}, {L_STG}, v{vT+3}")
    A(f"v_cndmask_b32 v{vT+3}, v{vT+3}, v{vT+4}, vcc")
    A(f"s_mul_i32 s{sT0}, s{sCT}, 7168")
    A(f"v_lshl_add_u32 v{vT}, v{vLane}, 4, s{sT0}")
    for tl in range(7):
        A(f"v_add_u32 v{vT+4}, {14*tl}, v{vT+1}")
        A(f"v_and_b32 v{vT+5}, 7, v{vT+4}")
        A(f"v_xor_b32 v{vT+5}, v{vT+5}, v{vT+2}")
        A(f"v_lshl_add_u32 v{vA+tl}, v{vT+5}, 4, v{vT+3}")
        A(f"v_lshl_add_u32 v{vA+tl}, v{vT+4}, 9, v{vA+tl}")
    A(f"s_mov_b32 s{sT1}, 0xbfb8aa3b")
    A(f"s_cmp_lg_u32 s{sU}, 0")
    A("s_cbranch_scc1 K2_EPI1")
    for tl in range(7):
        o = vO + 4 * tl
        g = vAcc + 4 * tl
        for r in range(4):
            A(f"v_mul_f32 v{g+r}, s{sT1}, v{o+r}")
        for r in range(4):
            A(f"v_exp_f32 v{g+r}, v{g+r}")
        A("s_nop 0")
        for r in range(4):
            A(f"v_add_f32 v{g+r}, 1.0, v{g+r}")
        for r in range(4):
            A(f"v_rcp_f32 v{g+r}, v{g+r}")
        A("s_nop 0")
        A(f"ds_write_b128 v{vT}, v[{g}:{g+3}] offset:{tl*1024}")
    A("s_waitcnt lgkmcnt(0)")
    A("s_barrier")
    A("s_branch K2_STORE")
    A("K2_EPI1:")
    A("s_barrier")
    for tl in range(7):
        g = vAcc + 4 * tl
        A(f"ds_read_b128 v[{g}:{g+3}], v{vT} offset:{tl*1024}")
    for tl in range(7):
        o = vO + 4 * tl
        g = vAcc + 4 * tl
        A(f"s_waitcnt lgkmcnt({6-tl})")
        for r in range(4):
            A(f"v_mul_f32 v{o+r}, v{o+r}, v{g+r}")
    A("K2_STORE:")
    for tl in range(7):
        o = vO + 4 * tl
        A(f"v_cvt_pk_bf16_f32 v{o}, v{o}, v{o+1}")
        A(f"v_cvt_pk_bf16_f32 v{o+1}, v{o+2}, v{o+3}")
        A(f"ds_write_b64 v{vA+tl}, v[{o}:{o+1}]")
    A(f"v_bfe_u32 v{vT}, v0, 5, 3")
    A(f"v_xor_b32 v{vT}, v{vT}, v0")
    A(f"v_lshlrev_b32 v{vT}, 4, v{vT}")
    A(f"v_add_u32 v{vT}, {L_STG}, v{vT}")
    A(f"v_lshlrev_b32 v{vT+1}, 4, v0")
    A(f"s_mul_i32 s{sT0}, s{sB}, {BN*512}")
    A("s_waitcnt lgkmcnt(0)")
    A("s_barrier")
    A.stamp("tile")
    for kk in range(3):
        A(f"ds_read_b128 v[{vAcc+4*kk}:{vAcc+4*kk+3}], v{vT} offset:{kk*16384}")
    A(f"s_cmp_lg_u32 s{sW}, 0")
    A("s_cbranch_scc1 K2_ST3")
    A(f"ds_read_b128 v[{vAcc+12}:{vAcc+15}], v{vT} offset:{3*16384}")
    A(f"s_add_u32 s{sT1}, s{sT0}, {3*16384}")
    A("s_waitcnt lgkmcnt(0)")
    A(f"buffer_store_dwordx4 v[{vAcc+12}:{vAcc+15}], v{vT+1}, s[{sOUT}:{sOUT+3}], s{sT1} offen {opt.k2st}")
    A("K2_ST3:")
    for kk in range(3):
        A(f"s_waitcnt lgkmcnt({2-kk})")
        A(f"buffer_store_dwordx4 v[{vAcc+4*kk}:{vAcc+4*kk+3}], v{vT+1}, s[{sOUT}:{sOUT+3}], s{sT0} offen {opt.k2st}")
        A(f"s_add_u32 s{sT0}, s{sT0}, 16384")
    A.stamp("st")
    if opt.stamps:
        A("s_waitcnt vmcnt(0)")
    A.stamp("end")
    A.dump_stamps(sWS, 16, 0, vT, 0)
    A("K2_END:")
    A("s_endpgm")
    if opt.stamps: print("K2 stamps:", A.names)
    kd = f"""
.amdhsa_kernel {k}
  .amdhsa_next_free_vgpr 128
  .amdhsa_next_free_sgpr {102 if opt.stamps else 72}
  .amdhsa_accum_offset 128
  .amdhsa_group_segment_fixed_size 0
  .amdhsa_kernarg_size 96
  .amdhsa_user_sgpr_count 2
  .amdhsa_user_sgpr_kernarg_segment_ptr 1
  .amdhsa_system_sgpr_workgroup_id_x 1
  .amdhsa_float_denorm_mode_32 3
.end_amdhsa_kernel
"""
    return A.text(), kd


def main():
    ap = argparse.ArgumentParser()
    ap.add_argument("-o", default=f"cdna_kernels/{NAME}.s")
    ap.add_argument("--stamps", type=int, default=0)
    ap.add_argument("--rot", type=int, default=1)
    ap.add_argument("--pf", type=int, default=1)
    ap.add_argument("--pfn", type=int, default=782)
    ap.add_argument("--xk1", type=int, default=0)
    ap.add_argument("--nop", type=int, default=0)
    ap.add_argument("--bmode", type=int, default=0)
    ap.add_argument("--mf", type=int, default=1)
    ap.add_argument("--xk1e", type=int, default=0)
    ap.add_argument("--k1ld", default="nt")
    ap.add_argument("--k1st", default="sc1")
    ap.add_argument("--k1seg", default="")
    ap.add_argument("--k2st", default="")
    opt = ap.parse_args()
    hdr = open(f"cdna_kernels/{NAME}.s.ref").read().split("\n")
    head = [l for l in hdr if l.startswith(";") and "@launch" not in l and "Override launch" not in l and "grid=ceil" not in l]
    t1, kd1 = gen_k1(opt)
    t2, kd2 = gen_k2(opt)
    out = "\n".join(head) + "\n"
    out += f"; @launch kernel=tp_sort_kernel grid=({NCHUNK + K1_WWG},1,1) block=({K1_BS},1,1) lds={K1_LDS}\n"
    for _ in range(opt.nop):
        out += f"; @launch kernel=tp_nop_kernel grid=(1,1,1) block=(64,1,1) lds=0\n"
    out += f"; @launch kernel={NAME}_kernel grid=({NB},1,1) block=(1024,1,1) lds={K2_LDS}\n"
    out += '.amdgcn_target "amdgcn-amd-amdhsa--gfx950"\n.text\n'
    out += t1 + t2
    if opt.nop:
        out += ".globl tp_nop_kernel\n.p2align 8\n.type tp_nop_kernel,@function\ntp_nop_kernel:\n    s_endpgm\n"
        kd2 += ".p2align 6\n" + kd1.replace("tp_sort_kernel", "tp_nop_kernel")
    out += '.section .rodata,"a"\n.p2align 6\n' + kd1 + ".p2align 6\n" + kd2
    open(opt.o, "w").write(out)


if __name__ == "__main__":
    main()
```

```python
import sys, argparse

NAME = "standalone__tensor_product_equiv_equiformer__graph"
N = 25000
E = 800000
CH = 3200
NCHUNK = 250
BN = 98
NB = 256
NG = 14
GN = 7
K1_BS = 832
K1_WWG = 10
CAP = 3776
MINU = 14

WS_REC = 0
WS_SEG = 0x930000
WS_WF = 0x980000
WS_DBG = 0xA00000

L_COEF = 0
L_META = CAP * 8
L_HIST = L_META + CAP * 4
L_BASE = L_HIST + 1024
L_STG = L_BASE + 1024
L_SBUF = L_STG + NG * 4096
L_FLAG = L_SBUF + 4 * 112 * 128
K2_LDS = L_FLAG + 64
ST = 112 * 128
assert L_STG % 256 == 0 and L_SBUF % 256 == 0 and K2_LDS <= 163840

K1_HIST = 0
K1_BASE = 1024
K1_REC = 4096
K1_LDS = K1_REC + CH * 12


class Asm:
    def __init__(self, stamps=False, sbase=72):
        self.l = []
        self.stamps = stamps
        self.ns = 0
        self.sbase = sbase
        self.names = []
    def stamp(self, name):
        if not self.stamps: return
        if self.sbase + 2 * self.ns + 1 > 101: return
        r = self.sbase + 2 * self.ns
        self(f"s_memrealtime s[{r}:{r+1}]" if self.stamps == 2 else f"s_memtime s[{r}:{r+1}]")
        self.names.append(name)
        self.ns += 1
    def stamp_dyn(self, name, n, sidx, stmp):
        if not self.stamps: return
        lab = f"SD_{self.sbase}_{self.ns}"
        for i in range(n):
            self(f"s_cmp_lg_u32 s{sidx}, {i}")
            self(f"s_cbranch_scc1 {lab}_{i}")
            self.stamp(f"{name}{i}")
            self(f"{lab}_{i}:")
    def dump_stamps(self, ws, nwaves, extra_off, vt, vtid):
        if not self.stamps: return
        self("s_waitcnt lgkmcnt(0)")
        self("s_mov_b64 exec, -1")
        self(f"v_mov_b32 v{vt}, 0")
        for i in range(self.ns):
            self(f"v_writelane_b32 v{vt}, s{self.sbase + 2*i}, {i}")
        self(f"v_lshrrev_b32 v{vt+1}, 6, v{vtid}")
        self(f"s_mul_i32 s{self.sbase}, s2, {nwaves}")
        self(f"v_add_u32 v{vt+1}, s{self.sbase}, v{vt+1}")
        self(f"v_lshlrev_b32 v{vt+1}, 6, v{vt+1}")
        self(f"v_and_b32 v{vt+2}, 63, v{vtid}")
        self(f"v_lshl_add_u32 v{vt+1}, v{vt+2}, 2, v{vt+1}")
        self(f"v_add_u32 v{vt+1}, {WS_DBG + extra_off}, v{vt+1}")
        self(f"s_mov_b64 exec, 0xffff")
        self(f"global_store_dword v{vt+1}, v{vt}, s[{ws}:{ws+1}]")
    def __call__(self, s):
        for ln in s.strip("\n").split("\n"):
            self.l.append("    " + ln.strip() if not ln.strip().endswith(":") else ln.strip())
    def text(self):
        return "\n".join(self.l) + "\n"


def wave_scan(A, v):
    for sh in (1, 2, 4, 8):
        A("s_nop 1")
        A(f"v_add_u32_dpp v{v}, v{v}, v{v} row_shr:{sh} row_mask:0xf bank_mask:0xf bound_ctrl:0")
    A("s_nop 1")
    A(f"v_add_u32_dpp v{v}, v{v}, v{v} row_bcast:15 row_mask:0xa bank_mask:0xf")
    A("s_nop 1")
    A(f"v_add_u32_dpp v{v}, v{v}, v{v} row_bcast:31 row_mask:0xc bank_mask:0xf")


def srd(A, d, lo, hi, nbytes):
    A(f"s_mov_b32 s{d}, s{lo}")
    A(f"s_and_b32 s{d+1}, s{hi}, 0xffff")
    A(f"s_mov_b32 s{d+2}, {nbytes}")
    A(f"s_mov_b32 s{d+3}, 0x00020000")


def gen_k1(opt):
    A = Asm(opt.stamps, 40)
    k = "tp_sort_kernel"
    A(f".globl {k}\n.p2align 8\n.type {k},@function\n{k}:")
    A(f"s_cmp_ge_u32 s2, {NCHUNK + K1_WWG}")
    A("s_cbranch_scc1 K1_END")
    A("s_load_dwordx8 s[8:15], s[0:1], 0x0")
    A("s_load_dwordx8 s[16:23], s[0:1], 0x20")
    A("s_load_dwordx2 s[24:25], s[0:1], 0x40")
    A("s_load_dwordx2 s[26:27], s[0:1], 0x58")
    A(f"s_cmp_ge_u32 s2, {NCHUNK}")
    A("s_cbranch_scc1 K1_WEIGHTS")
    A.stamp("entry")
    A("v_lshlrev_b32 v1, 2, v0")
    A("v_mov_b32 v2, 0")
    A("ds_write_b32 v1, v2")
    A(f"s_mul_i32 s3, s2, {CH*4}")
    A("v_lshlrev_b32 v3, 4, v0")
    A("v_add_u32 v3, s3, v3")
    A("v_lshrrev_b32 v4, 1, v3")
    A("v_add_u32 v5, v3, v4")
    A(f"v_cmp_gt_u32 vcc, {CH//4}, v0")
    A("s_waitcnt lgkmcnt(0)")
    A("s_and_saveexec_b64 s[28:29], vcc")
    A("s_mov_b64 s[30:31], exec")
    lf = opt.k1ld
    A(f"global_load_dwordx4 v[8:11], v3, s[16:17] {lf}")
    A.stamp("issued")
    A("s_barrier")
    A(f"global_load_dwordx4 v[12:15], v3, s[14:15] {lf}")
    A(f"global_load_dwordx2 v[16:17], v4, s[12:13] {lf}")
    A(f"global_load_dwordx4 v[18:21], v5, s[10:11] {lf}")
    A(f"global_load_dwordx2 v[22:23], v5, s[10:11] offset:16 {lf}")
    A.stamp("bar1")
    A("s_mov_b32 s4, 42800")
    A("s_movk_i32 s5, 147")
    A("v_mov_b32 v60, 1")
    A("s_waitcnt vmcnt(4)")
    A.stamp("dst")
    for i in range(4):
        A(f"v_mul_u32_u24 v{24+i}, s4, v{8+i}")
        A(f"v_lshrrev_b32 v{24+i}, 22, v{24+i}")
        A(f"v_lshlrev_b32 v{28+i}, 2, v{24+i}")
        A(f"ds_add_rtn_u32 v{32+i}, v{28+i}, v60")
    for i in range(4):
        A(f"v_mul_u32_u24 v{36+i}, {BN}, v{24+i}")
        A(f"v_sub_u32 v{36+i}, v{8+i}, v{36+i}")
        A(f"v_mul_u32_u24 v{40+i}, s5, v{36+i}")
        A(f"v_lshrrev_b32 v{40+i}, 10, v{40+i}")
        A(f"v_mul_u32_u24 v{44+i}, {GN}, v{40+i}")
        A(f"v_sub_u32 v{44+i}, v{36+i}, v{44+i}")
        A(f"v_lshlrev_b32 v{44+i}, 18, v{44+i}")
        A(f"v_lshl_or_b32 v{44+i}, v{40+i}, 28, v{44+i}")
    A("s_mov_b64 exec, -1")
    A("v_and_b32 v1, 63, v0")
    A("v_lshlrev_b32 v1, 4, v1")
    A("s_waitcnt lgkmcnt(0)")
    A.stamp("prebar2")
    A("s_barrier")
    A.stamp("bar2")
    A(f"ds_read_b128 v[8:11], v1 offset:{K1_HIST}")
    A("s_waitcnt lgkmcnt(0)")
    A("v_add_u32 v48, v8, v9")
    A("v_add_u32 v49, v48, v10")
    A("v_add_u32 v50, v49, v11")
    A("v_mov_b32 v51, v50")
    wave_scan(A, 51)
    A("v_sub_u32 v52, v51, v50")
    A("v_add_u32 v53, v52, v8")
    A("v_add_u32 v54, v52, v48")
    A("v_add_u32 v55, v52, v49")
    A(f"ds_write_b128 v1, v[52:55] offset:{K1_BASE}")
    A("s_mov_b64 exec, s[30:31]")
    for i in range(4):
        A(f"ds_read_b32 v{24+i}, v{28+i} offset:{K1_BASE}")
    A("s_mov_b64 exec, -1")
    for i in range(4):
        A(f"v_lshl_or_b32 v{56+i}, v{8+i}, 16, v{52+i}")
    A("s_mov_b64 exec, s[30:31]")
    for i in range(4):
        A(f"s_waitcnt lgkmcnt({3-i})")
        A(f"v_add_u32 v{24+i}, v{24+i}, v{32+i}")
        A(f"v_mul_u32_u24 v{24+i}, 12, v{24+i}")
        A(f"v_add_u32 v{24+i}, {K1_REC}, v{24+i}")
    A("s_waitcnt vmcnt(3)")
    for i in range(4):
        A(f"v_mul_u32_u24 v{36+i}, 41, v{12+i}")
        A(f"v_lshrrev_b32 v{36+i}, 16, v{36+i}")
        A(f"v_lshl_or_b32 v{36+i}, v{36+i}, 24, v{12+i}")
        A(f"v_or_b32 v{36+i}, v{44+i}, v{36+i}")
        A(f"ds_write_b32 v{24+i}, v{36+i} offset:8")
    A("s_waitcnt vmcnt(0)")
    A.stamp("allld")
    A("s_mov_b32 s7, 0xffff0000")
    A("v_lshlrev_b32 v40, 16, v16")
    A("v_and_b32 v41, s7, v16")
    A("v_lshlrev_b32 v42, 16, v17")
    A("v_and_b32 v43, s7, v17")
    for i in range(4):
        for j in range(3):
            h = 3 * i + j
            reg = 18 + h // 2
            if h % 2 == 0:
                A(f"v_lshlrev_b32 v{44+j}, 16, v{reg}")
            else:
                A(f"v_and_b32 v{44+j}, s7, v{reg}")
            A(f"v_mul_f32 v{44+j}, v{40+i}, v{44+j}")
        A(f"v_cvt_pk_bf16_f32 v{48+2*i}, v{40+i}, v44")
        A(f"v_cvt_pk_bf16_f32 v{49+2*i}, v45, v46")
        A(f"ds_write2_b32 v{24+i}, v{48+2*i}, v{49+2*i} offset1:1")
    A("s_mov_b64 exec, -1")
    A("v_readfirstlane_b32 s6, v0")
    A("s_nop 3")
    A("s_cmp_lg_u32 s6, 768")
    A("s_cbranch_scc1 K1_NOSEG")
    A("s_lshl_b32 s3, s2, 2")
    A(f"s_add_u32 s3, s3, {WS_SEG}")
    A("v_lshl_add_u32 v2, v1, 8, s3")
    for i in range(4):
        A(f"global_store_dword v2, v{56+i}, s[26:27] offset:{i*1024} {opt.k1seg}")
    A("K1_NOSEG:")
    A("s_mov_b64 exec, -1")
    A("s_waitcnt lgkmcnt(0)")
    A.stamp("prebar3")
    A("s_barrier")
    A.stamp("bar3")
    A("v_lshlrev_b32 v1, 4, v0")
    A(f"s_mul_i32 s3, s2, {CH*12}")
    A("v_add_u32 v2, s3, v1")
    st = K1_BS * 16
    A(f"ds_read_b128 v[8:11], v1 offset:{K1_REC}")
    A(f"ds_read_b128 v[12:15], v1 offset:{K1_REC + st}")
    A(f"ds_read_b128 v[16:19], v1 offset:{K1_REC + 2*st}")
    A(f"v_add_u32 v3, {st}, v2")
    A(f"v_add_u32 v4, {2*st}, v2")
    A("s_waitcnt lgkmcnt(2)")
    A(f"global_store_dwordx4 v2, v[8:11], s[26:27] {opt.k1st}")
    A("s_waitcnt lgkmcnt(1)")
    A(f"global_store_dwordx4 v3, v[12:15], s[26:27] {opt.k1st}")
    A(f"v_cmp_gt_u32 vcc, {CH*12//16 - 2*K1_BS}, v0")
    A("s_and_saveexec_b64 s[28:29], vcc")
    A("s_cbranch_execz K1_FIN")
    A("s_waitcnt lgkmcnt(0)")
    A(f"global_store_dwordx4 v4, v[16:19], s[26:27] {opt.k1st}")
    A("K1_FIN:")
    if opt.xk1e:
        A("s_mov_b64 exec, -1")
        A(f"s_mul_i32 s3, s2, {400*128}")
        A("v_lshlrev_b32 v6, 7, v0")
        A("v_add_u32 v6, s3, v6")
        A(f"v_cmp_gt_u32 vcc, {opt.xk1e}, v0")
        A("s_and_saveexec_b64 s[28:29], vcc")
        A("s_cbranch_execz K1_NOPF2")
        A("global_load_dword v7, v6, s[8:9]")
        A("K1_NOPF2:")
        A("s_mov_b64 exec, s[28:29]")
    A.stamp("stored")
    if opt.stamps:
        A("s_waitcnt vmcnt(0)")
    A.stamp("end")
    A.dump_stamps(26, 13, 0x100000, 24, 0)
    A("s_endpgm")

    A("K1_WEIGHTS:")
    A("s_waitcnt lgkmcnt(0)")
    A("s_cmp_ge_u32 s2, 256")
    A("s_cbranch_scc1 K1_NOZ")
    A("v_cmp_gt_u32 vcc, 256, v0")
    A("s_and_saveexec_b64 s[28:29], vcc")
    A("s_cbranch_execz K1_NOZ2")
    A("s_lshl_b32 s3, s2, 2")
    A(f"s_add_u32 s3, s3, {WS_SEG}")
    A("v_lshl_add_u32 v2, v0, 10, s3")
    A("v_mov_b32 v3, 0")
    A(f"global_store_dword v2, v3, s[26:27] {opt.k1seg}")
    A("K1_NOZ2:")
    A("s_mov_b64 exec, s[28:29]")
    A("K1_NOZ:")
    A(f"s_sub_u32 s3, s2, {NCHUNK}")
    A(f"s_mul_i32 s3, s3, {K1_BS}")
    A("v_add_u32 v1, s3, v0")
    A("s_nop 0")
    A("v_readfirstlane_b32 s4, v1")
    A("s_nop 3")
    A("s_cmp_ge_u32 s4, 8192")
    A("s_cbranch_scc1 K1_END")
    A("s_lshr_b32 s5, s4, 11")
    A("s_bfe_u32 s6, s4, 0x20009")
    A("s_bfe_u32 s7, s4, 0x20007")
    A("s_bfe_u32 s28, s4, 0x10006")
    A("s_mov_b32 s29, 4")
    A("s_cmp_eq_u32 s5, s7")
    A("s_cselect_b32 s29, 3, s29")
    A("s_cmp_eq_u32 s7, 0")
    A("s_cselect_b32 s29, 2, s29")
    A("s_cselect_b32 s30, 0, 1")
    A("s_cmp_eq_u32 s5, 0")
    A("s_cselect_b32 s29, s30, s29")
    A("s_cmp_lt_u32 s29, 2")
    A("s_cselect_b32 s32, s20, s22")
    A("s_cselect_b32 s33, s21, s23")
    A("s_cselect_b32 s30, 0, 2")
    A("s_sub_u32 s30, s29, s30")
    A("s_lshl_b32 s30, s30, 13")
    A("v_and_b32 v2, 15, v0")
    A("v_bfe_u32 v3, v0, 4, 2")
    A("s_lshl_b32 s31, s28, 2")
    A("v_lshl_add_u32 v4, v3, 4, s31")
    A("s_lshl_b32 s34, s6, 5")
    A("s_add_u32 s34, s34, s30")
    A("v_lshlrev_b32 v5, 7, v4")
    A("v_lshl_add_u32 v5, v2, 1, v5")
    A("v_add_u32 v5, s34, v5")
    for e in range(8):
        off = (8 * (e >> 2) + (e & 3)) * 128
        A(f"global_load_ushort v{8+e}, v5, s[32:33] offset:{off}")
    A("s_lshl_b32 s34, s29, 7")
    A("v_lshl_add_u32 v6, v4, 1, s34")
    A("global_load_dwordx2 v[16:17], v6, s[18:19]")
    A("global_load_dwordx2 v[18:19], v6, s[18:19] offset:16")
    A("s_xor_b32 s35, s5, s7")
    A("s_mul_i32 s36, s5, 9")
    A("s_mul_i32 s37, s35, 3")
    A("s_add_u32 s36, s36, s37")
    A("s_add_u32 s36, s36, s7")
    A("s_sub_u32 s36, s36, 13")
    A("s_cmp_eq_u32 s29, 4")
    A("s_cselect_b32 s36, s36, 0")
    A("s_lshl_b32 s36, s36, 1")
    A("v_mov_b32 v7, s36")
    A("global_load_ushort v20, v7, s[24:25]")
    A("s_waitcnt vmcnt(0)")
    A("v_lshlrev_b32 v20, 16, v20")
    A("s_cmp_eq_u32 s29, 4")
    A("s_cselect_b64 vcc, -1, 0")
    A("v_mov_b32 v21, 1.0")
    A("v_cndmask_b32 v20, v21, v20, vcc")
    A("s_mov_b32 s7, 0xffff0000")
    for e in range(8):
        reg = 16 + e // 2
        if e % 2 == 0:
            A(f"v_lshlrev_b32 v22, 16, v{reg}")
        else:
            A(f"v_and_b32 v22, s7, v{reg}")
        A(f"v_lshlrev_b32 v{8+e}, 16, v{8+e}")
        A(f"v_mul_f32 v22, v22, v20")
        A(f"v_mul_f32 v{8+e}, v{8+e}, v22")
    for d in range(4):
        A(f"v_cvt_pk_bf16_f32 v{24+d}, v{8+2*d}, v{9+2*d}")
    A("v_lshlrev_b32 v1, 4, v1")
    A(f"v_add_u32 v1, {WS_WF}, v1")
    A("global_store_dwordx4 v1, v[24:27], s[26:27]")
    A("K1_END:")
    A("s_endpgm")
    kd = f"""
.amdhsa_kernel {k}
  .amdhsa_next_free_vgpr 64
  .amdhsa_next_free_sgpr {102 if opt.stamps else 40}
  .amdhsa_accum_offset 64
  .amdhsa_group_segment_fixed_size 0
  .amdhsa_kernarg_size 96
  .amdhsa_user_sgpr_count 2
  .amdhsa_user_sgpr_kernarg_segment_ptr 1
  .amdhsa_system_sgpr_workgroup_id_x 1
  .amdhsa_float_denorm_mode_32 3
.end_amdhsa_kernel
"""
    return A.text(), kd


def gen_k2(opt):
    A = Asm(opt.stamps, 72)
    k = f"{NAME}_kernel"
    sX, sREC, sOUT = 4, 8, 12
    sW, sNU, sI, sQ, sQn, sM0, s512, sB, sQ0, sPh = range(16, 26)
    sT0, sT1, sGB = 26, 27, 28
    sMode, sRound, sNR, sJB, sK, sCM = 30, 31, 32, 33, 34, 35
    sU, sCT, sWF = 36, 37, 38
    sEX = 40
    sWS = 56
    sP = 58
    (vDOff, vMI, vMC, vMI0, vMC0, vB0, vB1, vBL0, vA0, vA1, vMy, vD0, vD1, vSW, vSR, vLane, vS2a, vS2b, vWo) = range(1, 20)
    vSrc = 20
    vNl = 22
    vA = 24
    vB = 32
    vS = 36
    vT = 44
    vAcc = 52
    vO = 84
    vW = 112
    vW3 = 120
    vLim = vT + 6

    A(f".globl {k}\n.p2align 8\n.type {k},@function\n{k}:")
    A(f"s_cmp_ge_u32 s2, {NB}")
    A("s_cbranch_scc1 K2_END")
    A.stamp("entry")
    A(f"s_load_dwordx2 s[{sWS}:{sWS+1}], s[0:1], 0x58")
    A(f"s_load_dwordx2 s[{sP}:{sP+1}], s[0:1], 0x0")
    A(f"s_load_dwordx2 s[{sP+2}:{sP+3}], s[0:1], 0x48")
    A(f"v_lshrrev_b32 v{vT}, 6, v0")
    A(f"v_and_b32 v{vLane}, 63, v0")
    A(f"v_readfirstlane_b32 s{sW}, v{vT}")
    A(f"s_and_b32 s{sT0}, s2, 7")
    A(f"s_lshr_b32 s{sT1}, s2, 3")
    A(f"s_lshl_b32 s{sB}, s{sT0}, 5")
    A(f"s_add_u32 s{sB}, s{sB}, s{sT1}")
    if opt.rot == 2:
        A(f"s_mov_b32 s{sQ0}, 3")
    else:
        A(f"s_and_b32 s{sQ0}, s{sT0}, {3 if opt.rot else 0}")
    A(f"s_mov_b32 s{sMode}, 0")
    A(f"s_mov_b32 s{sRound}, 0")
    A(f"s_mov_b32 s{sJB}, 0")
    A(f"s_mov_b32 s{sK}, 0")
    A(f"s_mov_b32 s{sCM}, 0")
    A(f"s_movk_i32 s{s512}, 512")
    A(f"s_lshr_b32 s{sU}, s{sW}, 2")
    A(f"s_and_b32 s{sCT}, s{sW}, 3")
    A("s_waitcnt lgkmcnt(0)")

    A("K2_ROUND:")
    A(f"s_lshl_b32 s{sT0}, s{sB}, 10")
    A(f"s_add_u32 s{sT0}, s{sT0}, {WS_SEG}")
    A(f"v_and_b32 v{vT}, 0x3f0, v0")
    A(f"v_add_u32 v{vT+1}, s{sT0}, v{vT}")
    A(f"global_load_dwordx4 v[{vS}:{vS+3}], v{vT+1}, s[{sWS}:{sWS+1}]")
    srd(A, sX, sP, sP + 1, N * 512)
    srd(A, sOUT, sP + 2, sP + 3, N * 512)
    srd(A, sREC, sWS, sWS + 1, NCHUNK * CH * 12)
    A(f"v_cmp_gt_u32 vcc, {CAP*4//16}, v0")
    A(f"v_lshlrev_b32 v{vT+2}, 4, v0")
    A(f"v_mov_b32 v{vT+3}, 0")
    A(f"v_cndmask_b32 v{vA}, 0, -1, vcc")
    A(f"v_cndmask_b32 v{vA+1}, 0, -1, vcc")
    A(f"v_cndmask_b32 v{vA+2}, 0, -1, vcc")
    A(f"v_cndmask_b32 v{vA+3}, 0, -1, vcc")
    A(f"ds_write_b128 v{vT+2}, v[{vA}:{vA+3}] offset:{L_META}")
    A(f"v_mov_b32 v{vT+4}, {L_FLAG}")
    A(f"ds_write_b32 v{vT+4}, v{vT+3}")
    A(f"v_and_b32 v{vA}, 7, v{vLane}")
    A(f"v_bfe_u32 v{vA+1}, v{vLane}, 4, 1")
    A(f"v_lshlrev_b32 v{vA+2}, 2, v{vA+1}")
    A(f"v_xor_b32 v{vA}, v{vA}, v{vA+2}")
    A(f"v_lshlrev_b32 v{vDOff}, 4, v{vA}")
    A(f"v_lshrrev_b32 v{vA}, 5, v{vLane}")
    A(f"v_bfe_u32 v{vA+2}, v{vLane}, 2, 2")
    A(f"v_lshl_add_u32 v{vA+3}, v{vA}, 2, v{vA+2}")
    A(f"v_lshrrev_b32 v{vMI0}, 3, v{vLane}")
    A(f"v_lshlrev_b32 v{vMI0}, 2, v{vMI0}")
    A(f"v_lshlrev_b32 v{vMC0}, 2, v{vA+3}")
    A(f"v_lshlrev_b32 v{vBL0}, 3, v{vA+3}")
    A(f"v_and_b32 v{vA+4}, 3, v{vLane}")
    A(f"v_lshl_add_u32 v{vMy}, v{vA+1}, 2, v{vA+4}")
    A(f"v_lshlrev_b32 v{vMy}, 2, v{vMy}")
    A(f"s_lshl_b32 s{sM0}, s{sW}, 12")
    A(f"s_add_u32 s{sM0}, s{sM0}, {L_STG}")
    A(f"v_lshlrev_b32 v{vA0}, 7, v{vA+3}")
    A(f"v_bfe_u32 v{vA+5}, v{vLane}, 3, 1")
    A(f"v_lshl_add_u32 v{vA0}, v{vA+5}, 6, v{vA0}")
    A(f"v_lshl_add_u32 v{vA0}, v{vA+1}, 5, v{vA0}")
    A(f"v_lshl_add_u32 v{vA0}, v{vA+4}, 3, v{vA0}")
    A(f"v_add_u32 v{vA0}, s{sM0}, v{vA0}")
    A(f"v_xor_b32 v{vA1}, 64, v{vA0}")
    A(f"v_bfe_u32 v{vA+2}, v{vLane}, 2, 3")
    A(f"s_lshl_b32 s{sT0}, s{sW}, 3")
    A(f"v_add_u32 v{vA+2}, s{sT0}, v{vA+2}")
    A(f"v_bfe_u32 v{vA+3}, v{vA+2}, 1, 3")
    A(f"v_and_b32 v{vA+5}, 1, v{vA+2}")
    A(f"v_xor_b32 v{vA+3}, v{vA+3}, v{vA+5}")
    A(f"v_lshlrev_b32 v{vA+5}, 1, v{vA+4}")
    A(f"v_xor_b32 v{vA+3}, v{vA+3}, v{vA+5}")
    A(f"v_lshlrev_b32 v{vA+5}, 2, v{vA}")
    A(f"v_xor_b32 v{vA+3}, v{vA+3}, v{vA+5}")
    A(f"v_lshlrev_b32 v{vSW}, 4, v{vA+3}")
    A(f"v_lshl_add_u32 v{vSW}, v{vA+2}, 7, v{vSW}")
    A(f"v_mul_u32_u24 v{vA+5}, {ST}, v{vA+4}")
    A(f"v_add_u32 v{vSW}, v{vSW}, v{vA+5}")
    A(f"v_add_u32 v{vSW}, {L_SBUF}, v{vSW}")
    A(f"v_and_b32 v{vA}, 15, v{vLane}")
    A(f"v_lshrrev_b32 v{vA+1}, 4, v{vLane}")
    A(f"v_lshrrev_b32 v{vA+2}, 1, v{vA}")
    A(f"v_xor_b32 v{vA+1}, v{vA+1}, v{vA+2}")
    A(f"v_and_b32 v{vA+2}, 1, v{vA}")
    A(f"v_xor_b32 v{vA+1}, v{vA+1}, v{vA+2}")
    A(f"v_lshlrev_b32 v{vSR}, 4, v{vA+1}")
    A(f"v_lshl_add_u32 v{vSR}, v{vA}, 7, v{vSR}")
    A(f"s_lshl_b32 s{sWF}, s{sW}, 13")
    A(f"s_add_u32 s{sWF}, s{sWF}, {WS_WF}")
    A(f"v_lshl_add_u32 v{vWo}, v{vLane}, 4, s{sWF}")
    A(f"v_lshrrev_b32 v{vT}, 2, v{vT}")
    A(f"v_mul_u32_u24 v{vT+1}, {CH}, v{vT}")
    A(f"v_add_u32 v{vT+1}, v{vT+1}, v{vA}")
    A(f"v_add_u32 v{vT+1}, s{sJB}, v{vT+1}")
    A(f"v_add_u32 v{vT+2}, s{sJB}, v{vA}")
    A(f"s_cmp_lg_u32 s{sRound}, 0")
    A("s_cbranch_scc1 K2_NOZERO")
    for i in range(28):
        A(f"v_mov_b32 v{vO+i}, 0")
    A("K2_NOZERO:")
    A("s_waitcnt vmcnt(0)")
    A.stamp("seg")
    for r in range(4):
        A(f"v_lshrrev_b32 v{vS+4+r}, 16, v{vS+r}")
        A(f"v_and_b32 v{vS+r}, 0xffff, v{vS+r}")
        A(f"v_add_u32 v{vA+r}, v{vT+1}, v{vS+r}")
        A(f"v_mul_u32_u24 v{vA+r}, 12, v{vA+r}")
        A(f"v_add_u32 v{vT+5}, {r}, v{vT}")
        A(f"v_and_b32 v{vT+5}, s{sCM}, v{vT+5}")
        A(f"v_cmp_eq_u32 vcc, s{sK}, v{vT+5}")
        A(f"v_sub_u32 v{vT+6}, v{vS+4+r}, v{vT+2}")
        A("s_nop 0")
        A(f"v_cndmask_b32 v{vT+6}, 0, v{vT+6}, vcc")
        A(f"v_cmp_lt_i32 s[{sEX+2*r}:{sEX+2*r+1}], 0, v{vT+6}")
        A(f"v_cmp_lt_i32 s[{sEX+8+2*r}:{sEX+8+2*r+1}], 16, v{vT+6}")
    A(f"s_mov_b32 s{sT0}, {CH*12}")
    A(f"s_mov_b32 s{sT1}, {2*CH*12}")
    A(f"s_mov_b32 s{sGB}, {3*CH*12}")
    so = ["0", f"s{sT0}", f"s{sT1}", f"s{sGB}"]
    for i in range(8):
        r, it = i % 4, i // 4
        A(f"s_mov_b64 exec, s[{sEX+2*i}:{sEX+2*i+1}]")
        A(f"s_cbranch_execz K2_LD{i}")
        A(f"buffer_load_dwordx3 v[{vAcc+4*i}:{vAcc+4*i+2}], v{vA+r}, s[{sREC}:{sREC+3}], {so[r]} offen offset:{192*it}")
        A(f"K2_LD{i}:")
    A("s_mov_b64 exec, -1")
    def pf():
        A(f"s_lshr_b32 s{sT0}, s2, 3")
        A(f"s_mul_i32 s{sT0}, s{sT0}, {opt.pfn*512}")
        A(f"s_lshl_b32 s{sT1}, s{sQ0}, 7")
        A(f"s_add_u32 s{sT0}, s{sT0}, s{sT1}")
        A(f"v_lshrrev_b32 v{vT+5}, 1, v0")
        A(f"v_cmp_gt_u32 vcc, {opt.pfn - 512}, v{vT+5}")
        A(f"v_lshlrev_b32 v{vT+5}, 9, v{vT+5}")
        A(f"v_and_b32 v{vT+6}, 1, v0")
        A(f"v_lshl_add_u32 v{vT+5}, v{vT+6}, 6, v{vT+5}")
        A(f"buffer_load_dword v{vT+7}, v{vT+5}, s[{sX}:{sX+3}], s{sT0} offen")
        A(f"v_mov_b32 v{vT+6}, 0x40000000")
        A(f"v_cndmask_b32 v{vT+5}, v{vT+6}, v{vT+5}, vcc")
        A(f"s_add_u32 s{sT0}, s{sT0}, {512*512}")
        A(f"buffer_load_dword v{vT+7}, v{vT+5}, s[{sX}:{sX+3}], s{sT0} offen")
    if opt.pf == 1: pf()
    A("s_waitcnt lgkmcnt(0)")
    A("s_barrier")
    def pfm():
        A(f"s_mul_i32 s{sT0}, s2, {392*128}")
        A(f"v_cmp_gt_u32 vcc, 784, v0")
        A(f"v_lshlrev_b32 v{vT+5}, 6, v0")
        A(f"v_mov_b32 v{vT+6}, 0x40000000")
        A(f"v_cndmask_b32 v{vT+5}, v{vT+6}, v{vT+5}, vcc")
        A(f"buffer_load_dword v{vT+7}, v{vT+5}, s[{sX}:{sX+3}], s{sT0} offen")
    def pfs(nsl):
        A(f"s_mul_i32 s{sT0}, s2, {98*512}")
        A(f"v_and_b32 v{vT+5}, 127, v0")
        A(f"v_cmp_gt_u32 vcc, 98, v{vT+5}")
        A(f"s_movk_i32 s{sT1}, {128*nsl}")
        A(f"v_cmp_gt_u32 s[{sP+4}:{sP+5}], s{sT1}, v0")
        A(f"v_lshlrev_b32 v{vT+5}, 9, v{vT+5}")
        A(f"v_and_b32 v{vT+6}, 0x180, v0")
        A(f"v_add_u32 v{vT+5}, v{vT+5}, v{vT+6}")
        A(f"s_and_b64 vcc, vcc, s[{sP+4}:{sP+5}]")
        A(f"v_mov_b32 v{vT+6}, 0x40000000")
        A(f"v_cndmask_b32 v{vT+5}, v{vT+6}, v{vT+5}, vcc")
        A(f"buffer_load_dword v{vT+7}, v{vT+5}, s[{sX}:{sX+3}], s{sT0} offen")
    if opt.pf == 6: pfs(opt.nsl)
    if opt.pf == 3: pf()
    if opt.pf == 4: pfm()
    if opt.pf == 5: pf(); pfm()
    A(f"v_max_u32 v{vT+5}, v{vS+4}, v{vS+5}")
    A(f"v_max3_u32 v{vT+5}, v{vT+5}, v{vS+6}, v{vS+7}")
    A(f"v_cmp_lt_u32 vcc, 32, v{vT+5}")
    A(f"s_and_saveexec_b64 s[{sP+4}:{sP+5}], vcc")
    A("s_cbranch_execz K2_NOOVF")
    A(f"ds_max_u32 v{vT+4}, v{vT+5}")
    A("K2_NOOVF:")
    A("s_mov_b64 exec, -1")
    A(f"v_mov_b32 v{vT}, 1")
    A(f"s_waitcnt vmcnt({ {1:2,3:2,4:1,5:3,6:1}.get(opt.pf, 0) })")
    A.stamp("rec")
    for i in range(8):
        A(f"s_mov_b64 exec, s[{sEX+2*i}:{sEX+2*i+1}]")
        A(f"s_cbranch_execz K2_AT{i}")
        A(f"v_lshrrev_b32 v{vA+i}, 24, v{vAcc+4*i+2}")
        A(f"v_lshlrev_b32 v{vA+i}, 2, v{vA+i}")
        A(f"ds_add_rtn_u32 v{vAcc+4*i+3}, v{vA+i}, v{vT} offset:{L_HIST}")
        A(f"K2_AT{i}:")
    A("s_mov_b64 exec, -1")
    A("s_waitcnt lgkmcnt(0)")
    A("s_barrier")
    A.stamp("bar2")
    if opt.pf == 2: pf()
    A(f"v_lshlrev_b32 v{vT}, 4, v{vLane}")
    A(f"ds_read_b128 v[{vB}:{vB+3}], v{vT} offset:{L_HIST}")
    A(f"ds_read_b32 v{vT+4}, v{vT+4}")
    A("s_waitcnt lgkmcnt(0)")
    A(f"v_add_u32 v{vT+1}, v{vB}, v{vB+1}")
    A(f"v_add_u32 v{vT+2}, v{vT+1}, v{vB+2}")
    A(f"v_add_u32 v{vT+3}, v{vT+2}, v{vB+3}")
    A("s_nop 1")
    A(f"v_add_u32_dpp v{vS}, v{vT+3}, v{vT+3} quad_perm:[1,0,3,2] row_mask:0xf bank_mask:0xf")
    A("s_nop 1")
    A(f"v_add_u32_dpp v{vS}, v{vS}, v{vS} quad_perm:[2,3,0,1] row_mask:0xf bank_mask:0xf")
    A(f"v_and_b32 v{vS+3}, 3, v{vLane}")
    A(f"v_cmp_eq_u32 vcc, 3, v{vS+3}")
    A(f"v_add_u32 v{vS+1}, 31, v{vS}")
    A(f"v_and_b32 v{vS+1}, 0xffffffe0, v{vS+1}")
    A(f"v_max_u32 v{vS+1}, {MINU*16}, v{vS+1}")
    A(f"v_sub_u32 v{vS+2}, v{vS+1}, v{vS}")
    A(f"v_cndmask_b32 v{vS+2}, 0, v{vS+2}, vcc")
    A(f"v_add_u32 v{vT+3}, v{vT+3}, v{vS+2}")
    A(f"v_mov_b32 v{vS}, v{vT+3}")
    wave_scan(A, vS)
    A(f"v_sub_u32 v{vS}, v{vS}, v{vT+3}")
    A(f"v_add_u32 v{vB+1}, v{vS}, v{vB}")
    A(f"v_add_u32 v{vB+2}, v{vS}, v{vT+1}")
    A(f"v_add_u32 v{vB+3}, v{vS}, v{vT+2}")
    A(f"v_mov_b32 v{vB}, v{vS}")
    A(f"ds_write_b128 v{vT}, v[{vB}:{vB+3}] offset:{L_BASE}")
    A(f"s_lshl_b32 s{sT0}, s{sW}, 2")
    A(f"v_readlane_b32 s{sT1}, v{vS}, {4*NG}")
    A(f"v_readfirstlane_b32 s{sP+4}, v{vT+4}")
    A(f"v_readlane_b32 s{sGB}, v{vS}, s{sT0}")
    A(f"v_readlane_b32 s{sNU}, v{vS+1}, s{sT0}")
    for i in range(8):
        A(f"s_mov_b64 exec, s[{sEX+2*i}:{sEX+2*i+1}]")
        A(f"s_cbranch_execz K2_RB{i}")
        A(f"ds_read_b32 v{vA+i}, v{vA+i} offset:{L_BASE}")
        A(f"K2_RB{i}:")
    A("s_mov_b64 exec, -1")
    A(f"s_cmp_lg_u32 s{sMode}, 0")
    A("s_cbranch_scc1 K2_OK")
    A(f"s_cmp_gt_u32 s{sT1}, {CAP}")
    A("s_cbranch_scc1 K2_GOSLOW")
    A(f"s_cmp_eq_u32 s{sP+4}, 0")
    A("s_cbranch_scc1 K2_OK")
    A("K2_GOSLOW:")
    A(f"s_mov_b32 s{sMode}, 1")
    A(f"s_mov_b32 s{sCM}, 15")
    A(f"s_max_u32 s{sP+4}, s{sP+4}, 1")
    A(f"s_add_u32 s{sP+4}, s{sP+4}, 31")
    A(f"s_lshr_b32 s{sP+4}, s{sP+4}, 5")
    A(f"s_lshl_b32 s{sNR}, s{sP+4}, 4")
    A("s_waitcnt vmcnt(0) lgkmcnt(0)")
    A("s_barrier")
    A("s_branch K2_ROUND")
    A("K2_OK:")
    A(f"s_lshl_b32 s{sT0}, s{sGB}, 2")
    A(f"s_add_u32 s{sT0}, s{sT0}, {L_META}")
    A(f"v_add_u32 v{vMI0}, s{sT0}, v{vMI0}")
    A(f"v_add_u32 v{vMC0}, s{sT0}, v{vMC0}")
    A(f"s_lshl_b32 s{sT0}, s{sGB}, 3")
    A(f"v_add_u32 v{vBL0}, s{sT0}, v{vBL0}")
    A(f"s_lshr_b32 s{sNU}, s{sNU}, 4")
    A(f"s_sub_u32 s{sNU}, s{sNU}, 4")
    A("s_waitcnt lgkmcnt(0)")
    for i in range(8):
        A(f"s_mov_b64 exec, s[{sEX+2*i}:{sEX+2*i+1}]")
        A(f"s_cbranch_execz K2_SC{i}")
        A(f"v_add_lshl_u32 v{vA+i}, v{vA+i}, v{vAcc+4*i+3}, 2")
        A(f"v_lshlrev_b32 v{vT}, 1, v{vA+i}")
        A(f"ds_write_b32 v{vA+i}, v{vAcc+4*i+2} offset:{L_META}")
        A(f"ds_write_b64 v{vT}, v[{vAcc+4*i}:{vAcc+4*i+1}] offset:{L_COEF}")
        A(f"K2_SC{i}:")
    A("s_mov_b64 exec, -1")
    A(f"s_mov_b32 s{sPh}, 0")
    A(f"s_mov_b32 s{sQ}, s{sQ0}")
    A(f"s_lshl_b32 s{sQn}, s{sQ0}, 7")
    A("s_waitcnt lgkmcnt(0)")
    A("s_barrier")
    A.stamp("main")
    if opt.stamps == 1:
        A.stamps = 2; A.stamp("mainrt"); A.stamps = 1

    def mads():
        A(f"v_mad_u32_u16 v{vD0}, v{vSrc}, s{s512}, v{vDOff}")
        A(f"v_mad_u32_u16 v{vD1}, v{vSrc+1}, s{s512}, v{vDOff}")

    def dma(slot, wait=None, mask=False):
        if mask:
            A(f"v_cmp_gt_u32 vcc, v{vLim}, v{vD0}")
            A(f"v_cmp_gt_u32 s[{sP+4}:{sP+5}], v{vLim}, v{vD1}")
        A(f"s_add_u32 m0, s{sM0}, {slot*2048}")
        A(wait if wait else "s_nop 0")
        if mask: A("s_mov_b64 exec, vcc")
        A(f"buffer_load_dwordx4 v{vD0}, s[{sX}:{sX+3}], s{sQn} offen lds")
        A(f"s_add_u32 m0, s{sM0}, {slot*2048+1024}")
        A(f"s_mov_b64 exec, s[{sP+4}:{sP+5}]" if mask else "s_nop 0")
        A(f"buffer_load_dwordx4 v{vD1}, s[{sX}:{sX+3}], s{sQn} offen lds")
        if mask: A("s_mov_b64 exec, -1")

    def s2_addr(qreg):
        A(f"s_xor_b32 s{sT0}, s{sU}, s{qreg}")
        A(f"s_lshl_b32 s{sT1}, s{sT0}, 5")
        A(f"s_mul_i32 s{sT0}, s{sT0}, {ST}")
        A(f"s_add_u32 s{sT0}, s{sT0}, {L_SBUF}")
        A(f"v_xor_b32 v{vS2a}, s{sT1}, v{vSR}")
        A(f"v_add_u32 v{vS2a}, s{sT0}, v{vS2a}")
        A(f"v_xor_b32 v{vS2b}, 64, v{vS2a}")

    def load_w(qreg):
        A(f"s_lshl_b32 s{sT0}, s{qreg}, 11")
        A(f"v_add_u32 v{vT}, s{sT0}, v{vWo}")
        A(f"global_load_dwordx4 v[{vW}:{vW+3}], v{vT}, s[{sWS}:{sWS+1}]")
        A(f"global_load_dwordx4 v[{vW+4}:{vW+7}], v{vT}, s[{sWS}:{sWS+1}] offset:1024")

    def load_w3():
        A(f"s_add_u32 s{sT0}, s{sQ0}, 3")
        A(f"s_and_b32 s{sT0}, s{sT0}, 3")
        A(f"s_lshl_b32 s{sT0}, s{sT0}, 11")
        A(f"v_add_u32 v{vT+4}, s{sT0}, v{vWo}")
        A(f"global_load_dwordx4 v[{vW3}:{vW3+3}], v{vT+4}, s[{sWS}:{sWS+1}]")
        A(f"global_load_dwordx4 v[{vW3+4}:{vW3+7}], v{vT+4}, s[{sWS}:{sWS+1}] offset:1024")

    def s2_mfma(tl, w, s):
        A(f"v_mfma_f32_16x16x32_bf16 v[{vO+4*tl}:{vO+4*tl+3}], v[{w}:{w+3}], v[{s}:{s+3}], v[{vO+4*tl}:{vO+4*tl+3}]")
        A(f"v_mfma_f32_16x16x32_bf16 v[{vO+4*tl}:{vO+4*tl+3}], v[{w+4}:{w+7}], v[{s+4}:{s+7}], v[{vO+4*tl}:{vO+4*tl+3}]")

    def body(slot, u, mi, miu, mc, mcu, vm=2, s2m=None, s2r=None, bar=False, post=None, nodma=False, mask=False):
        A("s_waitcnt lgkmcnt(0)")
        A(f"v_xor_b32_sdwa v{vB0}, v{vNl}, v{vMy} dst_sel:WORD_1 dst_unused:UNUSED_PRESERVE src0_sel:BYTE_2 src1_sel:WORD_0")
        A(f"v_xor_b32_sdwa v{vB1}, v{vNl+1}, v{vMy} dst_sel:WORD_1 dst_unused:UNUSED_PRESERVE src0_sel:BYTE_2 src1_sel:WORD_0")
        if not nodma:
            A(f"ds_read2_b32 v[{vSrc}:{vSrc+1}], v{mi} offset0:{16*miu} offset1:{16*miu+8}")
        if opt.bmode == 0:
            A(f"ds_read_b64_tr_b16 v[{vB}:{vB+1}], v{vB0} offset:{128*u}")
            A(f"ds_read_b64_tr_b16 v[{vB+2}:{vB+3}], v{vB1} offset:{128*u+64}")
        elif opt.bmode == 1:
            A(f"ds_read_b32 v{vT+5}, v{mi}")
            A(f"ds_read_b32 v{vT+6}, v{mi}")
        elif opt.bmode == 2:
            A(f"v_min_u32 v{vT+5}, 0x30000, v{vB0}")
            A(f"v_min_u32 v{vT+6}, 0x30000, v{vB1}")
            A(f"ds_read_b64_tr_b16 v[{vB}:{vB+1}], v{vT+5} offset:{128*u}")
            A(f"ds_read_b64_tr_b16 v[{vB+2}:{vB+3}], v{vT+6} offset:{128*u+64}")
        if s2m is not None:
            pass
        A(f"s_waitcnt vmcnt({vm})")
        if not opt.noa:
            A(f"ds_read_b64_tr_b16 v[{vA}:{vA+1}], v{vA0} offset:{slot*2048}")
            A(f"ds_read_b64_tr_b16 v[{vA+2}:{vA+3}], v{vA0} offset:{slot*2048+1024}")
            A(f"ds_read_b64_tr_b16 v[{vA+4}:{vA+5}], v{vA1} offset:{slot*2048}")
            A(f"ds_read_b64_tr_b16 v[{vA+6}:{vA+7}], v{vA1} offset:{slot*2048+1024}")
        if s2m is not None and not opt.nos2:
            s2_mfma(s2m, vW, vS)
        if nodma:
            A("s_waitcnt lgkmcnt(0)")
        else:
            A("s_waitcnt lgkmcnt(6)" if not opt.noa else "s_waitcnt lgkmcnt(0)")
            mads()
            dma(slot, "s_waitcnt lgkmcnt(0)", mask)
        A(f"ds_read2_b32 v[{vNl}:{vNl+1}], v{mc} offset0:{16*mcu} offset1:{16*mcu+8}")
        if opt.mf == 1:
            A(f"v_mfma_f32_32x32x16_bf16 v[{vAcc}:{vAcc+15}], v[{vA}:{vA+3}], v[{vB}:{vB+3}], v[{vAcc}:{vAcc+15}]")
            A(f"v_mfma_f32_32x32x16_bf16 v[{vAcc+16}:{vAcc+31}], v[{vA+4}:{vA+7}], v[{vB}:{vB+3}], v[{vAcc+16}:{vAcc+31}]")
        elif opt.mf == 3:
            A(f"v_mfma_f32_32x32x16_bf16 v[{vAcc}:{vAcc+15}], v[{vA}:{vA+3}], v[{vB}:{vB+3}], v[{vAcc}:{vAcc+15}]")
        elif opt.mf == 4:
            A(f"v_mfma_f32_16x16x32_bf16 v[{vAcc}:{vAcc+3}], v[{vA}:{vA+3}], v[{vB}:{vB+3}], v[{vAcc}:{vAcc+3}]")
            A(f"v_mfma_f32_16x16x32_bf16 v[{vAcc+16}:{vAcc+19}], v[{vA+4}:{vA+7}], v[{vB}:{vB+3}], v[{vAcc+16}:{vAcc+19}]")
        elif opt.mf == 5:
            A(f"v_mfma_f32_16x16x32_bf16 v[{vAcc}:{vAcc+3}], v[{vA}:{vA+3}], v[{vB}:{vB+3}], v[{vAcc}:{vAcc+3}]")
        elif opt.mf == 6:
            for z in range(4):
                A(f"v_mfma_f32_16x16x32_bf16 v[{vAcc+4*z}:{vAcc+4*z+3}], v[{vA+4*(z&1)}:{vA+4*(z&1)+3}], v[{vB}:{vB+3}], v[{vAcc+4*z}:{vAcc+4*z+3}]")
        elif opt.mf == 2:
            A(f"v_mfma_f32_32x32x16_bf16 v[{vAcc}:{vAcc+15}], v[{vB}:{vB+3}], v[{vA}:{vA+3}], v[{vAcc}:{vAcc+15}]")
            A(f"v_mfma_f32_32x32x16_bf16 v[{vAcc+16}:{vAcc+31}], v[{vB}:{vB+3}], v[{vA+4}:{vA+7}], v[{vAcc+16}:{vAcc+31}]")
        if bar and not opt.nobar:
            A("s_barrier")
        if s2r is not None and not opt.nos2:
            A(f"ds_read_b128 v[{vS}:{vS+3}], v{vS2a} offset:{s2r*2048}")
            A(f"ds_read_b128 v[{vS+4}:{vS+7}], v{vS2b} offset:{s2r*2048}")
        if post: post()

    def adv(n):
        A(f"v_add_u32 v{vMI}, {64*n}, v{vMI}")
        A(f"v_add_u32 v{vMC}, {64*n}, v{vMC}")
        A(f"v_add_u32 v{vB0}, {128*n}, v{vB0}")
        A(f"v_add_u32 v{vB1}, {128*n}, v{vB1}")

    A(f"s_cmp_ge_u32 s{sW}, {NG}")
    A("s_cbranch_scc1 K2_HELPER")
    A(f"v_cmp_eq_u32 vcc, 0, v{vLane}")
    A(f"v_mov_b32 v{vLim}, 0x1000000")
    A("s_nop 0")
    A(f"v_cndmask_b32 v{vLim}, v{vLim}, -1, vcc")
    A(f"ds_read2_b32 v[{vSrc}:{vSrc+1}], v{vMI0} offset0:0 offset1:8")
    A(f"ds_read2_b32 v[{vS}:{vS+1}], v{vMI0} offset0:16 offset1:24")
    A(f"ds_read2_b32 v[{vNl}:{vNl+1}], v{vMC0} offset0:0 offset1:8")
    A("s_waitcnt lgkmcnt(2)")
    mads()
    dma(0)
    A("s_waitcnt lgkmcnt(1)")
    A(f"v_mad_u32_u16 v{vD0}, v{vS}, s{s512}, v{vDOff}")
    A(f"v_mad_u32_u16 v{vD1}, v{vS+1}, s{s512}, v{vDOff}")
    dma(1)
    A("K2_PHASE:")
    for i in range(32):
        A(f"v_mov_b32 v{vAcc+i}, 0")
    A(f"v_mov_b32 v{vMI}, v{vMI0}")
    A(f"v_mov_b32 v{vMC}, v{vMC0}")
    A(f"v_mov_b32 v{vB0}, v{vBL0}")
    A(f"v_mov_b32 v{vB1}, v{vBL0}")
    A(f"s_mov_b32 s{sI}, 0")
    A(f"s_cmp_eq_u32 s{sPh}, 0")
    A("s_cbranch_scc1 K2_LOOP")
    for i in range(10):
        body(i & 1, i, vMI, i + 2, vMC, i + 1,
             vm=(4 if i == 0 else 2),
             s2m=(i - 2 if 2 <= i <= 8 else None),
             s2r=(i - 1 if 1 <= i <= 7 else None),
             bar=(i == opt.bara or i == 9))
    adv(10)
    A(f"s_mov_b32 s{sI}, 10")
    A(f"s_cmp_ge_u32 s{sI}, s{sNU}")
    A("s_cbranch_scc1 K2_TAIL")
    A("K2_LOOP:")
    body(0, 0, vMI, 2, vMC, 1)
    A(f"s_add_u32 s{sI}, s{sI}, 2")
    body(1, 1, vMI, 3, vMC, 2, post=lambda: adv(2))
    A(f"s_cmp_lt_u32 s{sI}, s{sNU}")
    A("s_cbranch_scc1 K2_LOOP")
    A("K2_TAIL:")
    body(0, 0, vMI, 2, vMC, 1, mask=bool(opt.mask))
    body(1, 1, vMI, 3, vMC, 2, mask=bool(opt.mask))
    A(f"s_add_u32 s{sQn}, s{sQ}, 1")
    A(f"s_and_b32 s{sQn}, s{sQn}, 3")
    A(f"s_lshl_b32 s{sQn}, s{sQn}, 7")
    A(f"s_cmp_eq_u32 s{sPh}, 3")
    A("s_cbranch_scc1 K2_TAIL3")
    body(0, 2, vMI0, 0, vMC, 3)
    body(1, 3, vMI0, 1, vMC0, 0)
    A("s_branch K2_FLUSH")
    A("K2_TAIL3:")
    body(0, 2, vMI0, 0, vMC, 3, nodma=True)
    body(1, 3, vMI0, 1, vMC0, 0, vm=0, nodma=True)
    A("K2_FLUSH:")
    A(f"v_xor_b32 v{vT+1}, 16, v{vSW}")
    A(f"v_xor_b32 v{vT+2}, 32, v{vSW}")
    A(f"v_xor_b32 v{vT+3}, 48, v{vSW}")
    s2_addr(sQ)
    A(f"s_cmp_eq_u32 s{sPh}, 3")
    A("s_cbranch_scc1 K2_NOW")
    load_w(sQ)
    A(f"s_cmp_lg_u32 s{sPh}, 1")
    A("s_cbranch_scc1 K2_NOW")
    load_w3()
    A("K2_NOW:")
    A("s_nop 2")
    for d in range(16):
        A(f"v_cvt_pk_bf16_f32 v{vAcc+d}, v{vAcc+2*d}, v{vAcc+2*d+1}")
    A(f"ds_write_b128 v{vSW}, v[{vAcc}:{vAcc+3}]")
    A(f"ds_write_b128 v{vT+1}, v[{vAcc+4}:{vAcc+7}]")
    A(f"ds_write_b128 v{vT+2}, v[{vAcc+8}:{vAcc+11}]")
    A(f"ds_write_b128 v{vT+3}, v[{vAcc+12}:{vAcc+15}]")
    A.stamp_dyn("fl", 4, sPh, sT0)
    A(f"s_add_u32 s{sQ}, s{sQ}, 1")
    A(f"s_and_b32 s{sQ}, s{sQ}, 3")
    A(f"s_add_u32 s{sPh}, s{sPh}, 1")
    A(f"s_cmp_lt_u32 s{sPh}, 4")
    A("s_waitcnt lgkmcnt(0)")
    A("s_cbranch_scc1 K2_PHASE")
    A("s_branch K2_FINAL")

    def stage2_all(w):
        for half in range(2):
            tiles = range(0, 4) if half == 0 else range(4, 7)
            for j, tl in enumerate(tiles):
                A(f"ds_read_b128 v[{vAcc+8*j}:{vAcc+8*j+3}], v{vS2a} offset:{tl*2048}")
                A(f"ds_read_b128 v[{vAcc+8*j+4}:{vAcc+8*j+7}], v{vS2b} offset:{tl*2048}")
            n = 2 * len(tiles)
            for j, tl in enumerate(tiles):
                n -= 2
                A(f"s_waitcnt lgkmcnt({n})")
                s2_mfma(tl, w, vAcc + 8 * j)

    A("K2_HELPER:")
    load_w3()
    A("K2_HLOOP:")
    if opt.pf == 6 and opt.sub:
        A(f"s_add_u32 s{sT1}, s{sPh}, 1")
        A(f"s_bfe_u32 s{sT0}, s2, 0x20003")
        A(f"s_cmp_lg_u32 s{sT0}, s{sT1}")
        A("s_cbranch_scc1 K2_HNOPF")
        A(f"s_and_b32 s{sT0}, s2, 7")
        A(f"s_lshl_b32 s{sT0}, s{sT0}, 3")
        A(f"s_lshr_b32 s{sGB}, s2, 5")
        A(f"s_add_u32 s{sT0}, s{sT0}, s{sGB}")
        A(f"s_mul_i32 s{sT0}, s{sT0}, {391*512}")
        A(f"s_lshl_b32 s{sT1}, s{sT1}, 7")
        A(f"s_add_u32 s{sT0}, s{sT0}, s{sT1}")
        A(f"v_and_b32 v{vT+5}, 127, v0")
        A(f"v_cmp_gt_u32 vcc, 7, v{vT+5}")
        A(f"v_lshlrev_b32 v{vT+5}, 9, v{vT+5}")
        for kk in range(3):
            A(f"buffer_load_dword v{vT+7}, v{vT+5}, s[{sX}:{sX+3}], s{sT0} offen")
            A(f"s_add_u32 s{sT0}, s{sT0}, {128*512}")
        A(f"v_mov_b32 v{vT+6}, 0x40000000")
        A(f"v_cndmask_b32 v{vT+5}, v{vT+6}, v{vT+5}, vcc")
        A(f"buffer_load_dword v{vT+7}, v{vT+5}, s[{sX}:{sX+3}], s{sT0} offen")
        A("K2_HNOPF:")
    elif opt.pf == 6:
        A(f"s_add_u32 s{sT1}, s{sPh}, {opt.nsl}")
        A(f"s_cmp_gt_u32 s{sT1}, 3")
        A("s_cbranch_scc1 K2_HNOPF")
        A(f"s_lshl_b32 s{sT1}, s{sT1}, 7")
        A(f"s_mul_i32 s{sT0}, s2, {98*512}")
        A(f"s_add_u32 s{sT0}, s{sT0}, s{sT1}")
        A(f"v_and_b32 v{vT+5}, 127, v0")
        A(f"v_cmp_gt_u32 vcc, 98, v{vT+5}")
        A(f"v_lshlrev_b32 v{vT+5}, 9, v{vT+5}")
        A(f"v_mov_b32 v{vT+6}, 0x40000000")
        A(f"v_cndmask_b32 v{vT+5}, v{vT+6}, v{vT+5}, vcc")
        A(f"buffer_load_dword v{vT+7}, v{vT+5}, s[{sX}:{sX+3}], s{sT0} offen")
        A("K2_HNOPF:")
    s2_addr(sQ)
    load_w(sQ)
    if not opt.nobar: A("s_barrier")
    A("s_waitcnt vmcnt(0)")
    stage2_all(vW)
    A(f"s_add_u32 s{sQ}, s{sQ}, 1")
    A(f"s_and_b32 s{sQ}, s{sQ}, 3")
    A(f"s_add_u32 s{sPh}, s{sPh}, 1")
    A(f"s_cmp_lt_u32 s{sPh}, 3")
    if not opt.nobar: A("s_barrier")
    A("s_cbranch_scc1 K2_HLOOP")
    s2_addr(sQ)
    A("K2_FINAL:")
    A(f"v_and_b32 v{vT}, 7, v{vLane}")
    A(f"v_and_b32 v{vT+1}, 2, v{vLane}")
    A(f"v_lshl_or_b32 v{vT}, v{vT+1}, 2, v{vT}")
    A(f"v_lshrrev_b32 v{vT+2}, 5, v{vLane}")
    A(f"s_lshl_b32 s{sT0}, s{sW}, 1")
    A(f"v_add_u32 v{vT+2}, s{sT0}, v{vT+2}")
    A(f"v_xor_b32 v{vT}, v{vT}, v{vT+2}")
    A(f"v_bfe_u32 v{vT+3}, v{vLane}, 4, 1")
    A(f"v_lshlrev_b32 v{vT+3}, 3, v{vT+3}")
    A(f"v_lshl_add_u32 v{vA}, v{vT}, 4, v{vT+3}")
    A(f"v_and_b32 v{vT+1}, 15, v{vLane}")
    A(f"v_lshl_add_u32 v{vA}, v{vT+1}, 9, v{vA}")
    A(f"v_add_u32 v{vA}, {L_STG}, v{vA}")
    A(f"v_lshrrev_b32 v{vT}, 3, v0")
    A(f"v_mul_u32_u24 v{vT+3}, 147, v{vT}")
    A(f"v_lshrrev_b32 v{vT+3}, 10, v{vT+3}")
    A(f"v_add_u32 v{vT+3}, v{vT+3}, v{vT}")
    A(f"v_xor_b32 v{vT+1}, v{vT+3}, v0")
    A(f"v_and_b32 v{vT+1}, 7, v{vT+1}")
    A(f"v_and_b32 v{vT+2}, 2, v{vT+3}")
    A(f"v_lshl_or_b32 v{vT+1}, v{vT+2}, 2, v{vT+1}")
    A(f"v_lshlrev_b32 v{vT+1}, 4, v{vT+1}")
    A(f"v_lshl_add_u32 v{vB}, v{vT+3}, 9, v{vT+1}")
    A(f"v_add_u32 v{vB}, {L_STG}, v{vB}")
    A(f"v_xor_b32 v{vB+1}, 128, v{vB}")
    A(f"v_and_b32 v{vT+1}, 7, v0")
    A(f"v_lshlrev_b32 v{vT+1}, 4, v{vT+1}")
    A(f"v_lshl_add_u32 v{vB+2}, v{vT}, 9, v{vT+1}")
    A("s_barrier")
    A.stamp("a3")
    if opt.stamps == 1:
        A.stamps = 2; A.stamp("a3rt"); A.stamps = 1
    stage2_all(vW3)
    A(f"s_cmp_eq_u32 s{sMode}, 0")
    A("s_cbranch_scc1 K2_EPI")
    A(f"s_add_u32 s{sRound}, s{sRound}, 1")
    A(f"s_cmp_ge_u32 s{sRound}, s{sNR}")
    A("s_cbranch_scc1 K2_EPI")
    A(f"s_and_b32 s{sK}, s{sRound}, 15")
    A(f"s_lshr_b32 s{sJB}, s{sRound}, 4")
    A(f"s_lshl_b32 s{sJB}, s{sJB}, 5")
    A("s_waitcnt vmcnt(0)")
    A("s_barrier")
    A("s_branch K2_ROUND")
    A("K2_EPI:")
    A.stamp("s2f")
    A(f"s_mul_i32 s{sT0}, s{sB}, {BN*512}")
    A(f"s_mov_b32 s{sT1}, 0xbfb8aa3b")
    A(f"s_mov_b32 s{sGB}, 0xffff0000")
    A(f"v_cmp_gt_u32 vcc, {BN*8}, v0")
    for tl in range(7):
        o = vO + 4 * tl
        if tl == 6: A("s_nop 1")
        A(f"v_cvt_pk_bf16_f32 v{o}, v{o}, v{o+1}")
        A(f"v_cvt_pk_bf16_f32 v{o+1}, v{o+2}, v{o+3}")
        A(f"ds_write_b64 v{vA}, v[{o}:{o+1}] offset:{tl*8192}")
    A("s_waitcnt lgkmcnt(0)")
    A("s_barrier")
    A.stamp("tile")
    A(f"s_and_saveexec_b64 s[{sP+4}:{sP+5}], vcc")
    A("s_cbranch_execz K2_DONE")
    d0 = vAcc
    g = vAcc + 16
    tt = vAcc + 24
    A(f"ds_read_b128 v[{d0}:{d0+3}], v{vB}")
    A(f"ds_read_b128 v[{d0+4}:{d0+7}], v{vB+1}")
    A(f"ds_read_b128 v[{d0+8}:{d0+11}], v{vB} offset:256")
    A(f"ds_read_b128 v[{d0+12}:{d0+15}], v{vB+1} offset:256")
    A("s_waitcnt lgkmcnt(3)")
    A(f"buffer_store_dwordx4 v[{d0}:{d0+3}], v{vB+2}, s[{sOUT}:{sOUT+3}], s{sT0} offen {opt.k2st}")
    for j in range(4):
        A(f"v_lshlrev_b32 v{g+2*j}, 16, v{d0+j}")
        A(f"v_and_b32 v{g+2*j+1}, s{sGB}, v{d0+j}")
    for j in range(8):
        A(f"v_mul_f32 v{g+j}, s{sT1}, v{g+j}")
    for j in range(8):
        A(f"v_exp_f32 v{g+j}, v{g+j}")
    for j in range(8):
        A(f"v_add_f32 v{g+j}, 1.0, v{g+j}")
    for j in range(8):
        A(f"v_rcp_f32 v{g+j}, v{g+j}")
    for u in range(1, 4):
        d = d0 + 4 * u
        A(f"s_waitcnt lgkmcnt({3-u})")
        for j in range(4):
            A(f"v_lshlrev_b32 v{tt+2*j}, 16, v{d+j}")
            A(f"v_and_b32 v{tt+2*j+1}, s{sGB}, v{d+j}")
        for j in range(4):
            A(f"v_pk_mul_f32 v[{tt+2*j}:{tt+2*j+1}], v[{tt+2*j}:{tt+2*j+1}], v[{g+2*j}:{g+2*j+1}]")
        for j in range(4):
            A(f"v_cvt_pk_bf16_f32 v{d+j}, v{tt+2*j}, v{tt+2*j+1}")
        A(f"buffer_store_dwordx4 v[{d}:{d+3}], v{vB+2}, s[{sOUT}:{sOUT+3}], s{sT0} offen offset:{128*u} {opt.k2st}")
    A("K2_DONE:")
    A("s_mov_b64 exec, -1")
    A.stamp("st")
    if opt.stamps:
        A("s_waitcnt vmcnt(0)")
    A.stamp("end")
    A.dump_stamps(sWS, 16, 0, vT, 0)
    A("K2_END:")
    A("s_endpgm")
    if opt.stamps: print("K2 stamps:", A.names)
    kd = f"""
.amdhsa_kernel {k}
  .amdhsa_next_free_vgpr 128
  .amdhsa_next_free_sgpr {102 if opt.stamps else 72}
  .amdhsa_accum_offset 128
  .amdhsa_group_segment_fixed_size 0
  .amdhsa_kernarg_size 96
  .amdhsa_user_sgpr_count 2
  .amdhsa_user_sgpr_kernarg_segment_ptr 1
  .amdhsa_system_sgpr_workgroup_id_x 1
  .amdhsa_float_denorm_mode_32 3
.end_amdhsa_kernel
"""
    return A.text(), kd


def main():
    ap = argparse.ArgumentParser()
    ap.add_argument("-o", default=f"cdna_kernels/{NAME}.s")
    ap.add_argument("--stamps", type=int, default=0)
    ap.add_argument("--rot", type=int, default=0)
    ap.add_argument("--pf", type=int, default=6)
    ap.add_argument("--pfn", type=int, default=782)
    ap.add_argument("--xk1", type=int, default=0)
    ap.add_argument("--mask", type=int, default=1)
    ap.add_argument("--noa", type=int, default=0)
    ap.add_argument("--nos2", type=int, default=0)
    ap.add_argument("--sub", type=int, default=1)
    ap.add_argument("--nsl", type=int, default=1)
    ap.add_argument("--nobar", type=int, default=0)
    ap.add_argument("--bara", type=int, default=1)
    ap.add_argument("--nop", type=int, default=0)
    ap.add_argument("--bmode", type=int, default=0)
    ap.add_argument("--mf", type=int, default=1)
    ap.add_argument("--xk1e", type=int, default=0)
    ap.add_argument("--k1ld", default="nt")
    ap.add_argument("--k1st", default="sc1")
    ap.add_argument("--k1seg", default="")
    ap.add_argument("--k2st", default="sc1")
    opt = ap.parse_args()
    hdr = open(f"cdna_kernels/{NAME}.s.ref").read().split("\n")
    head = [l for l in hdr if l.startswith(";") and "@launch" not in l and "Override launch" not in l and "grid=ceil" not in l]
    t1, kd1 = gen_k1(opt)
    t2, kd2 = gen_k2(opt)
    out = "\n".join(head) + "\n"
    out += f"; @launch kernel=tp_sort_kernel grid=({NCHUNK + K1_WWG},1,1) block=({K1_BS},1,1) lds={K1_LDS}\n"
    for _ in range(opt.nop):
        out += f"; @launch kernel=tp_nop_kernel grid=(1,1,1) block=(64,1,1) lds=0\n"
    out += f"; @launch kernel={NAME}_kernel grid=({NB},1,1) block=(1024,1,1) lds={K2_LDS}\n"
    out += '.amdgcn_target "amdgcn-amd-amdhsa--gfx950"\n.text\n'
    out += t1 + t2
    if opt.nop:
        out += ".globl tp_nop_kernel\n.p2align 8\n.type tp_nop_kernel,@function\ntp_nop_kernel:\n    s_endpgm\n"
        kd2 += ".p2align 6\n" + kd1.replace("tp_sort_kernel", "tp_nop_kernel")
    out += '.section .rodata,"a"\n.p2align 6\n' + kd1 + ".p2align 6\n" + kd2
    open(opt.o, "w").write(out)


if __name__ == "__main__":
    main()
```

```python
import sys, argparse

NAME = "standalone__tensor_product_equiv_equiformer__graph"
N = 25000
E = 800000
CH = 3200
NCHUNK = 250
BN = 98
NB = 256
NG = 14
GN = 7
K1_BS = 832
K1_WWG = 10
CAP = 3776
MINU = 14

WS_REC = 0
WS_SEG = 0x930000
WS_WF = 0x980000
WS_DBG = 0xA00000

L_COEF = 0
L_META = CAP * 8
L_HIST = L_META + CAP * 4
L_BASE = L_HIST + 1024
L_STG = L_BASE + 1024
L_SBUF = L_STG + NG * 4096
L_FLAG = L_SBUF + 4 * 112 * 128
K2_LDS = L_FLAG + 64
ST = 112 * 128
assert L_STG % 256 == 0 and L_SBUF % 256 == 0 and K2_LDS <= 163840

K1_HIST = 0
K1_BASE = 1024
K1_REC = 4096
K1_LDS = K1_REC + CH * 12


class Asm:
    def __init__(self, stamps=False, sbase=72):
        self.l = []
        self.stamps = stamps
        self.ns = 0
        self.sbase = sbase
        self.names = []
    def stamp(self, name):
        if not self.stamps: return
        if self.sbase + 2 * self.ns + 1 > 101: return
        r = self.sbase + 2 * self.ns
        self(f"s_memrealtime s[{r}:{r+1}]" if self.stamps == 2 else f"s_memtime s[{r}:{r+1}]")
        self.names.append(name)
        self.ns += 1
    def stamp_dyn(self, name, n, sidx, stmp):
        if not self.stamps: return
        lab = f"SD_{self.sbase}_{self.ns}"
        for i in range(n):
            self(f"s_cmp_lg_u32 s{sidx}, {i}")
            self(f"s_cbranch_scc1 {lab}_{i}")
            self.stamp(f"{name}{i}")
            self(f"{lab}_{i}:")
    def dump_stamps(self, ws, nwaves, extra_off, vt, vtid):
        if not self.stamps: return
        self("s_waitcnt lgkmcnt(0)")
        self("s_mov_b64 exec, -1")
        self(f"v_mov_b32 v{vt}, 0")
        for i in range(self.ns):
            self(f"v_writelane_b32 v{vt}, s{self.sbase + 2*i}, {i}")
        self(f"v_lshrrev_b32 v{vt+1}, 6, v{vtid}")
        self(f"s_mul_i32 s{self.sbase}, s2, {nwaves}")
        self(f"v_add_u32 v{vt+1}, s{self.sbase}, v{vt+1}")
        self(f"v_lshlrev_b32 v{vt+1}, 6, v{vt+1}")
        self(f"v_and_b32 v{vt+2}, 63, v{vtid}")
        self(f"v_lshl_add_u32 v{vt+1}, v{vt+2}, 2, v{vt+1}")
        self(f"v_add_u32 v{vt+1}, {WS_DBG + extra_off}, v{vt+1}")
        self(f"s_mov_b64 exec, 0xffff")
        self(f"global_store_dword v{vt+1}, v{vt}, s[{ws}:{ws+1}]")
    def __call__(self, s):
        for ln in s.strip("\n").split("\n"):
            self.l.append("    " + ln.strip() if not ln.strip().endswith(":") else ln.strip())
    def text(self):
        return "\n".join(self.l) + "\n"


def wave_scan(A, v):
    for sh in (1, 2, 4, 8):
        A("s_nop 1")
        A(f"v_add_u32_dpp v{v}, v{v}, v{v} row_shr:{sh} row_mask:0xf bank_mask:0xf bound_ctrl:0")
    A("s_nop 1")
    A(f"v_add_u32_dpp v{v}, v{v}, v{v} row_bcast:15 row_mask:0xa bank_mask:0xf")
    A("s_nop 1")
    A(f"v_add_u32_dpp v{v}, v{v}, v{v} row_bcast:31 row_mask:0xc bank_mask:0xf")


def srd(A, d, lo, hi, nbytes):
    A(f"s_mov_b32 s{d}, s{lo}")
    A(f"s_and_b32 s{d+1}, s{hi}, 0xffff")
    A(f"s_mov_b32 s{d+2}, {nbytes}")
    A(f"s_mov_b32 s{d+3}, 0x00020000")


def gen_k1(opt):
    A = Asm(opt.stamps, 40)
    k = "tp_sort_kernel"
    A(f".globl {k}\n.p2align 8\n.type {k},@function\n{k}:")
    A(f"s_cmp_ge_u32 s2, {NCHUNK + K1_WWG}")
    A("s_cbranch_scc1 K1_END")
    A("s_load_dwordx8 s[8:15], s[0:1], 0x0")
    A("s_load_dwordx8 s[16:23], s[0:1], 0x20")
    A("s_load_dwordx2 s[24:25], s[0:1], 0x40")
    A("s_load_dwordx2 s[26:27], s[0:1], 0x58")
    A(f"s_cmp_ge_u32 s2, {NCHUNK}")
    A("s_cbranch_scc1 K1_WEIGHTS")
    A.stamp("entry")
    if opt.cpf1:
        A("s_getpc_b64 s[34:35]")
        A("v_lshlrev_b32 v6, 7, v0")
        A("v_min_u32 v6, K1_WEIGHTS-tp_sort_kernel-64, v6")
        A("global_load_dword v7, v6, s[34:35]")
    A("v_lshlrev_b32 v1, 2, v0")
    A("v_mov_b32 v2, 0")
    A("ds_write_b32 v1, v2")
    A(f"s_mul_i32 s3, s2, {CH*4}")
    A("v_lshlrev_b32 v3, 4, v0")
    A("v_add_u32 v3, s3, v3")
    A("v_lshrrev_b32 v4, 1, v3")
    A("v_add_u32 v5, v3, v4")
    A(f"v_cmp_gt_u32 vcc, {CH//4}, v0")
    A("s_waitcnt lgkmcnt(0)")
    A("s_and_saveexec_b64 s[28:29], vcc")
    A("s_mov_b64 s[30:31], exec")
    lf = opt.k1ld
    A(f"global_load_dwordx4 v[8:11], v3, s[16:17] {lf}")
    A.stamp("issued")
    A("s_barrier")
    A(f"global_load_dwordx4 v[12:15], v3, s[14:15] {lf}")
    A(f"global_load_dwordx2 v[16:17], v4, s[12:13] {lf}")
    A(f"global_load_dwordx4 v[18:21], v5, s[10:11] {lf}")
    A(f"global_load_dwordx2 v[22:23], v5, s[10:11] offset:16 {lf}")
    A.stamp("bar1")
    A("s_mov_b32 s4, 42800")
    A("s_movk_i32 s5, 147")
    A("v_mov_b32 v60, 1")
    A("s_waitcnt vmcnt(4)")
    A.stamp("dst")
    for i in range(4):
        A(f"v_mul_u32_u24 v{24+i}, s4, v{8+i}")
        A(f"v_lshrrev_b32 v{24+i}, 22, v{24+i}")
        A(f"v_lshlrev_b32 v{28+i}, 2, v{24+i}")
        A(f"ds_add_rtn_u32 v{32+i}, v{28+i}, v60")
    for i in range(4):
        A(f"v_mul_u32_u24 v{36+i}, {BN}, v{24+i}")
        A(f"v_sub_u32 v{36+i}, v{8+i}, v{36+i}")
        A(f"v_mul_u32_u24 v{40+i}, s5, v{36+i}")
        A(f"v_lshrrev_b32 v{40+i}, 10, v{40+i}")
        A(f"v_mul_u32_u24 v{44+i}, {GN}, v{40+i}")
        A(f"v_sub_u32 v{44+i}, v{36+i}, v{44+i}")
        A(f"v_lshlrev_b32 v{44+i}, 18, v{44+i}")
        A(f"v_lshl_or_b32 v{44+i}, v{40+i}, 28, v{44+i}")
    A("s_mov_b64 exec, -1")
    A("v_and_b32 v1, 63, v0")
    A("v_lshlrev_b32 v1, 4, v1")
    A("s_waitcnt lgkmcnt(0)")
    A.stamp("prebar2")
    A("s_barrier")
    A.stamp("bar2")
    A(f"ds_read_b128 v[8:11], v1 offset:{K1_HIST}")
    A("s_waitcnt lgkmcnt(0)")
    A("v_add_u32 v48, v8, v9")
    A("v_add_u32 v49, v48, v10")
    A("v_add_u32 v50, v49, v11")
    A("v_mov_b32 v51, v50")
    wave_scan(A, 51)
    A("v_sub_u32 v52, v51, v50")
    A("v_add_u32 v53, v52, v8")
    A("v_add_u32 v54, v52, v48")
    A("v_add_u32 v55, v52, v49")
    A(f"ds_write_b128 v1, v[52:55] offset:{K1_BASE}")
    A("s_mov_b64 exec, s[30:31]")
    for i in range(4):
        A(f"ds_read_b32 v{24+i}, v{28+i} offset:{K1_BASE}")
    A("s_mov_b64 exec, -1")
    for i in range(4):
        A(f"v_lshl_or_b32 v{56+i}, v{8+i}, 16, v{52+i}")
    A("s_mov_b64 exec, s[30:31]")
    for i in range(4):
        A(f"s_waitcnt lgkmcnt({3-i})")
        A(f"v_add_u32 v{24+i}, v{24+i}, v{32+i}")
        A(f"v_mul_u32_u24 v{24+i}, 12, v{24+i}")
        A(f"v_add_u32 v{24+i}, {K1_REC}, v{24+i}")
    A("s_waitcnt vmcnt(3)")
    for i in range(4):
        A(f"v_mul_u32_u24 v{36+i}, 41, v{12+i}")
        A(f"v_lshrrev_b32 v{36+i}, 16, v{36+i}")
        A(f"v_lshl_or_b32 v{36+i}, v{36+i}, 24, v{12+i}")
        A(f"v_or_b32 v{36+i}, v{44+i}, v{36+i}")
        A(f"ds_write_b32 v{24+i}, v{36+i} offset:8")
    A("s_waitcnt vmcnt(0)")
    A.stamp("allld")
    A("s_mov_b32 s7, 0xffff0000")
    A("v_lshlrev_b32 v40, 16, v16")
    A("v_and_b32 v41, s7, v16")
    A("v_lshlrev_b32 v42, 16, v17")
    A("v_and_b32 v43, s7, v17")
    for i in range(4):
        for j in range(3):
            h = 3 * i + j
            reg = 18 + h // 2
            if h % 2 == 0:
                A(f"v_lshlrev_b32 v{44+j}, 16, v{reg}")
            else:
                A(f"v_and_b32 v{44+j}, s7, v{reg}")
            A(f"v_mul_f32 v{44+j}, v{40+i}, v{44+j}")
        A(f"v_cvt_pk_bf16_f32 v{48+2*i}, v{40+i}, v44")
        A(f"v_cvt_pk_bf16_f32 v{49+2*i}, v45, v46")
        A(f"ds_write2_b32 v{24+i}, v{48+2*i}, v{49+2*i} offset1:1")
    A("s_mov_b64 exec, -1")
    A("v_readfirstlane_b32 s6, v0")
    A("s_nop 3")
    A("s_cmp_lg_u32 s6, 768")
    A("s_cbranch_scc1 K1_NOSEG")
    A("s_lshl_b32 s3, s2, 2")
    A(f"s_add_u32 s3, s3, {WS_SEG}")
    A("v_lshl_add_u32 v2, v1, 8, s3")
    for i in range(4):
        A(f"global_store_dword v2, v{56+i}, s[26:27] offset:{i*1024} {opt.k1seg}")
    if opt.cpf:
        A("s_getpc_b64 s[34:35]")
        A("K1_PC:")
        A(f"s_add_u32 s34, s34, {NAME}_kernel-K1_PC")
        A("s_addc_u32 s35, s35, 0")
        A("v_lshlrev_b32 v6, 3, v1")
        A("v_min_u32 v61, K2_CODE_END-%s_kernel-4, v6" % NAME)
        A("global_load_dword v7, v61, s[34:35]")
        A("v_add_u32 v6, 8192, v6")
        A("v_min_u32 v61, K2_CODE_END-%s_kernel-4, v6" % NAME)
        A("global_load_dword v7, v61, s[34:35]")
    A("K1_NOSEG:")
    A("s_mov_b64 exec, -1")
    A("s_waitcnt lgkmcnt(0)")
    A.stamp("prebar3")
    A("s_barrier")
    A.stamp("bar3")
    A("v_lshlrev_b32 v1, 4, v0")
    A(f"s_mul_i32 s3, s2, {CH*12}")
    A("v_add_u32 v2, s3, v1")
    st = K1_BS * 16
    A(f"ds_read_b128 v[8:11], v1 offset:{K1_REC}")
    A(f"ds_read_b128 v[12:15], v1 offset:{K1_REC + st}")
    A(f"ds_read_b128 v[16:19], v1 offset:{K1_REC + 2*st}")
    A(f"v_add_u32 v3, {st}, v2")
    A(f"v_add_u32 v4, {2*st}, v2")
    A("s_waitcnt lgkmcnt(2)")
    A(f"global_store_dwordx4 v2, v[8:11], s[26:27] {opt.k1st}")
    A("s_waitcnt lgkmcnt(1)")
    A(f"global_store_dwordx4 v3, v[12:15], s[26:27] {opt.k1st}")
    A(f"v_cmp_gt_u32 vcc, {CH*12//16 - 2*K1_BS}, v0")
    A("s_and_saveexec_b64 s[28:29], vcc")
    A("s_cbranch_execz K1_FIN")
    A("s_waitcnt lgkmcnt(0)")
    A(f"global_store_dwordx4 v4, v[16:19], s[26:27] {opt.k1st}")
    A("K1_FIN:")
    if opt.xk1e:
        A("s_mov_b64 exec, -1")
        A(f"s_mul_i32 s3, s2, {400*128}")
        A("v_lshlrev_b32 v6, 7, v0")
        A("v_add_u32 v6, s3, v6")
        A(f"v_cmp_gt_u32 vcc, {opt.xk1e}, v0")
        A("s_and_saveexec_b64 s[28:29], vcc")
        A("s_cbranch_execz K1_NOPF2")
        A("global_load_dword v7, v6, s[8:9]")
        A("K1_NOPF2:")
        A("s_mov_b64 exec, s[28:29]")
    A.stamp("stored")
    if opt.stamps:
        A("s_waitcnt vmcnt(0)")
    A.stamp("end")
    A.dump_stamps(26, 13, 0x100000, 24, 0)
    A("s_endpgm")

    A("K1_WEIGHTS:")
    A("s_waitcnt lgkmcnt(0)")
    A("s_cmp_ge_u32 s2, 256")
    A("s_cbranch_scc1 K1_NOZ")
    A("v_cmp_gt_u32 vcc, 256, v0")
    A("s_and_saveexec_b64 s[28:29], vcc")
    A("s_cbranch_execz K1_NOZ2")
    A("s_lshl_b32 s3, s2, 2")
    A(f"s_add_u32 s3, s3, {WS_SEG}")
    A("v_lshl_add_u32 v2, v0, 10, s3")
    A("v_mov_b32 v3, 0")
    A(f"global_store_dword v2, v3, s[26:27] {opt.k1seg}")
    A("K1_NOZ2:")
    A("s_mov_b64 exec, s[28:29]")
    A("K1_NOZ:")
    A(f"s_sub_u32 s3, s2, {NCHUNK}")
    A(f"s_mul_i32 s3, s3, {K1_BS}")
    A("v_add_u32 v1, s3, v0")
    A("s_nop 0")
    A("v_readfirstlane_b32 s4, v1")
    A("s_nop 3")
    A("s_cmp_ge_u32 s4, 8192")
    A("s_cbranch_scc1 K1_END")
    A("s_lshr_b32 s5, s4, 11")
    A("s_bfe_u32 s6, s4, 0x20009")
    A("s_bfe_u32 s7, s4, 0x20007")
    A("s_bfe_u32 s28, s4, 0x10006")
    A("s_mov_b32 s29, 4")
    A("s_cmp_eq_u32 s5, s7")
    A("s_cselect_b32 s29, 3, s29")
    A("s_cmp_eq_u32 s7, 0")
    A("s_cselect_b32 s29, 2, s29")
    A("s_cselect_b32 s30, 0, 1")
    A("s_cmp_eq_u32 s5, 0")
    A("s_cselect_b32 s29, s30, s29")
    A("s_cmp_lt_u32 s29, 2")
    A("s_cselect_b32 s32, s20, s22")
    A("s_cselect_b32 s33, s21, s23")
    A("s_cselect_b32 s30, 0, 2")
    A("s_sub_u32 s30, s29, s30")
    A("s_lshl_b32 s30, s30, 13")
    A("v_and_b32 v2, 15, v0")
    A("v_bfe_u32 v3, v0, 4, 2")
    A("s_lshl_b32 s31, s28, 2")
    A("v_lshl_add_u32 v4, v3, 4, s31")
    A("s_lshl_b32 s34, s6, 5")
    A("s_add_u32 s34, s34, s30")
    A("v_lshlrev_b32 v5, 7, v4")
    A("v_lshl_add_u32 v5, v2, 1, v5")
    A("v_add_u32 v5, s34, v5")
    for e in range(8):
        off = (8 * (e >> 2) + (e & 3)) * 128
        A(f"global_load_ushort v{8+e}, v5, s[32:33] offset:{off}")
    A("s_lshl_b32 s34, s29, 7")
    A("v_lshl_add_u32 v6, v4, 1, s34")
    A("global_load_dwordx2 v[16:17], v6, s[18:19]")
    A("global_load_dwordx2 v[18:19], v6, s[18:19] offset:16")
    A("s_xor_b32 s35, s5, s7")
    A("s_mul_i32 s36, s5, 9")
    A("s_mul_i32 s37, s35, 3")
    A("s_add_u32 s36, s36, s37")
    A("s_add_u32 s36, s36, s7")
    A("s_sub_u32 s36, s36, 13")
    A("s_cmp_eq_u32 s29, 4")
    A("s_cselect_b32 s36, s36, 0")
    A("s_lshl_b32 s36, s36, 1")
    A("v_mov_b32 v7, s36")
    A("global_load_ushort v20, v7, s[24:25]")
    A("s_waitcnt vmcnt(0)")
    A("v_lshlrev_b32 v20, 16, v20")
    A("s_cmp_eq_u32 s29, 4")
    A("s_cselect_b64 vcc, -1, 0")
    A("v_mov_b32 v21, 1.0")
    A("v_cndmask_b32 v20, v21, v20, vcc")
    A("s_mov_b32 s7, 0xffff0000")
    for e in range(8):
        reg = 16 + e // 2
        if e % 2 == 0:
            A(f"v_lshlrev_b32 v22, 16, v{reg}")
        else:
            A(f"v_and_b32 v22, s7, v{reg}")
        A(f"v_lshlrev_b32 v{8+e}, 16, v{8+e}")
        A(f"v_mul_f32 v22, v22, v20")
        A(f"v_mul_f32 v{8+e}, v{8+e}, v22")
    for d in range(4):
        A(f"v_cvt_pk_bf16_f32 v{24+d}, v{8+2*d}, v{9+2*d}")
    A("v_lshlrev_b32 v1, 4, v1")
    A(f"v_add_u32 v1, {WS_WF}, v1")
    A("global_store_dwordx4 v1, v[24:27], s[26:27]")
    A("K1_END:")
    A("s_endpgm")
    kd = f"""
.amdhsa_kernel {k}
  .amdhsa_next_free_vgpr 64
  .amdhsa_next_free_sgpr {102 if opt.stamps else 40}
  .amdhsa_accum_offset 64
  .amdhsa_group_segment_fixed_size 0
  .amdhsa_kernarg_size 96
  .amdhsa_user_sgpr_count 2
  .amdhsa_user_sgpr_kernarg_segment_ptr 1
  .amdhsa_system_sgpr_workgroup_id_x 1
  .amdhsa_float_denorm_mode_32 3
.end_amdhsa_kernel
"""
    return A.text(), kd


def gen_k2(opt):
    A = Asm(opt.stamps, 72)
    k = f"{NAME}_kernel"
    sX, sREC, sOUT = 4, 8, 12
    sW, sNU, sI, sQ, sQn, sM0, s512, sB, sQ0, sPh = range(16, 26)
    sT0, sT1, sGB = 26, 27, 28
    sMode, sRound, sNR, sJB, sK, sCM = 30, 31, 32, 33, 34, 35
    sU, sCT, sWF = 36, 37, 38
    sEX = 40
    sWS = 56
    sP = 58
    (vDOff, vMI, vMC, vMI0, vMC0, vB0, vB1, vBL0, vA0, vA1, vMy, vD0, vD1, vSW, vSR, vLane, vS2a, vS2b, vWo) = range(1, 20)
    vSrc = 20
    vNl = 22
    vA = 24
    vB = 32
    vS = 36
    vT = 44
    vAcc = 52
    vO = 84
    vW = 112
    vW3 = 120
    vLim = vT + 6

    A(f".globl {k}\n.p2align 8\n.type {k},@function\n{k}:")
    A(f"s_cmp_ge_u32 s2, {NB}")
    A("s_cbranch_scc1 K2_END")
    A.stamp("entry")
    A(f"s_load_dwordx2 s[{sWS}:{sWS+1}], s[0:1], 0x58")
    A(f"s_load_dwordx2 s[{sP}:{sP+1}], s[0:1], 0x0")
    A(f"s_load_dwordx2 s[{sP+2}:{sP+3}], s[0:1], 0x48")
    A(f"v_lshrrev_b32 v{vT}, 6, v0")
    A(f"v_and_b32 v{vLane}, 63, v0")
    A(f"v_readfirstlane_b32 s{sW}, v{vT}")
    A(f"s_and_b32 s{sT0}, s2, 7")
    A(f"s_lshr_b32 s{sT1}, s2, 3")
    A(f"s_lshl_b32 s{sB}, s{sT0}, 5")
    A(f"s_add_u32 s{sB}, s{sB}, s{sT1}")
    if opt.rot == 2:
        A(f"s_mov_b32 s{sQ0}, 3")
    else:
        A(f"s_and_b32 s{sQ0}, s{sT0}, {3 if opt.rot else 0}")
    A(f"s_mov_b32 s{sMode}, 0")
    A(f"s_mov_b32 s{sRound}, 0")
    A(f"s_mov_b32 s{sJB}, 0")
    A(f"s_mov_b32 s{sK}, 0")
    A(f"s_mov_b32 s{sCM}, 0")
    A(f"s_movk_i32 s{s512}, 512")
    A(f"s_lshr_b32 s{sU}, s{sW}, 2")
    A(f"s_and_b32 s{sCT}, s{sW}, 3")
    A("s_waitcnt lgkmcnt(0)")

    A("K2_ROUND:")
    A(f"s_lshl_b32 s{sT0}, s{sB}, 10")
    A(f"s_add_u32 s{sT0}, s{sT0}, {WS_SEG}")
    A(f"v_and_b32 v{vT}, 0x3f0, v0")
    A(f"v_add_u32 v{vT+1}, s{sT0}, v{vT}")
    A(f"global_load_dwordx4 v[{vS}:{vS+3}], v{vT+1}, s[{sWS}:{sWS+1}]")
    srd(A, sX, sP, sP + 1, N * 512)
    srd(A, sOUT, sP + 2, sP + 3, N * 512)
    srd(A, sREC, sWS, sWS + 1, NCHUNK * CH * 12)
    A(f"v_cmp_gt_u32 vcc, {CAP*4//16}, v0")
    A(f"v_lshlrev_b32 v{vT+2}, 4, v0")
    A(f"v_mov_b32 v{vT+3}, 0")
    A(f"v_cndmask_b32 v{vA}, 0, -1, vcc")
    A(f"v_cndmask_b32 v{vA+1}, 0, -1, vcc")
    A(f"v_cndmask_b32 v{vA+2}, 0, -1, vcc")
    A(f"v_cndmask_b32 v{vA+3}, 0, -1, vcc")
    A(f"ds_write_b128 v{vT+2}, v[{vA}:{vA+3}] offset:{L_META}")
    A(f"v_mov_b32 v{vT+4}, {L_FLAG}")
    A(f"ds_write_b32 v{vT+4}, v{vT+3}")
    A(f"v_and_b32 v{vA}, 7, v{vLane}")
    A(f"v_bfe_u32 v{vA+1}, v{vLane}, 4, 1")
    A(f"v_lshlrev_b32 v{vA+2}, 2, v{vA+1}")
    A(f"v_xor_b32 v{vA}, v{vA}, v{vA+2}")
    A(f"v_lshlrev_b32 v{vDOff}, 4, v{vA}")
    A(f"v_lshrrev_b32 v{vA}, 5, v{vLane}")
    A(f"v_bfe_u32 v{vA+2}, v{vLane}, 2, 2")
    A(f"v_lshl_add_u32 v{vA+3}, v{vA}, 2, v{vA+2}")
    A(f"v_lshrrev_b32 v{vMI0}, 3, v{vLane}")
    A(f"v_lshlrev_b32 v{vMI0}, 2, v{vMI0}")
    A(f"v_lshlrev_b32 v{vMC0}, 2, v{vA+3}")
    A(f"v_lshlrev_b32 v{vBL0}, 3, v{vA+3}")
    A(f"v_and_b32 v{vA+4}, 3, v{vLane}")
    A(f"v_lshl_add_u32 v{vMy}, v{vA+1}, 2, v{vA+4}")
    A(f"v_lshlrev_b32 v{vMy}, 2, v{vMy}")
    A(f"s_lshl_b32 s{sM0}, s{sW}, 12")
    A(f"s_add_u32 s{sM0}, s{sM0}, {L_STG}")
    A(f"v_lshlrev_b32 v{vA0}, 7, v{vA+3}")
    A(f"v_bfe_u32 v{vA+5}, v{vLane}, 3, 1")
    A(f"v_lshl_add_u32 v{vA0}, v{vA+5}, 6, v{vA0}")
    A(f"v_lshl_add_u32 v{vA0}, v{vA+1}, 5, v{vA0}")
    A(f"v_lshl_add_u32 v{vA0}, v{vA+4}, 3, v{vA0}")
    A(f"v_add_u32 v{vA0}, s{sM0}, v{vA0}")
    A(f"v_xor_b32 v{vA1}, 64, v{vA0}")
    A(f"v_bfe_u32 v{vA+2}, v{vLane}, 2, 3")
    A(f"s_lshl_b32 s{sT0}, s{sW}, 3")
    A(f"v_add_u32 v{vA+2}, s{sT0}, v{vA+2}")
    A(f"v_bfe_u32 v{vA+3}, v{vA+2}, 1, 3")
    A(f"v_and_b32 v{vA+5}, 1, v{vA+2}")
    A(f"v_xor_b32 v{vA+3}, v{vA+3}, v{vA+5}")
    A(f"v_lshlrev_b32 v{vA+5}, 1, v{vA+4}")
    A(f"v_xor_b32 v{vA+3}, v{vA+3}, v{vA+5}")
    A(f"v_lshlrev_b32 v{vA+5}, 2, v{vA}")
    A(f"v_xor_b32 v{vA+3}, v{vA+3}, v{vA+5}")
    A(f"v_lshlrev_b32 v{vSW}, 4, v{vA+3}")
    A(f"v_lshl_add_u32 v{vSW}, v{vA+2}, 7, v{vSW}")
    A(f"v_mul_u32_u24 v{vA+5}, {ST}, v{vA+4}")
    A(f"v_add_u32 v{vSW}, v{vSW}, v{vA+5}")
    A(f"v_add_u32 v{vSW}, {L_SBUF}, v{vSW}")
    A(f"v_and_b32 v{vA}, 15, v{vLane}")
    A(f"v_lshrrev_b32 v{vA+1}, 4, v{vLane}")
    A(f"v_lshrrev_b32 v{vA+2}, 1, v{vA}")
    A(f"v_xor_b32 v{vA+1}, v{vA+1}, v{vA+2}")
    A(f"v_and_b32 v{vA+2}, 1, v{vA}")
    A(f"v_xor_b32 v{vA+1}, v{vA+1}, v{vA+2}")
    A(f"v_lshlrev_b32 v{vSR}, 4, v{vA+1}")
    A(f"v_lshl_add_u32 v{vSR}, v{vA}, 7, v{vSR}")
    A(f"s_lshl_b32 s{sWF}, s{sW}, 13")
    A(f"s_add_u32 s{sWF}, s{sWF}, {WS_WF}")
    A(f"v_lshl_add_u32 v{vWo}, v{vLane}, 4, s{sWF}")
    A(f"v_lshrrev_b32 v{vT}, 2, v{vT}")
    A(f"v_mul_u32_u24 v{vT+1}, {CH}, v{vT}")
    A(f"v_add_u32 v{vT+1}, v{vT+1}, v{vA}")
    A(f"v_add_u32 v{vT+1}, s{sJB}, v{vT+1}")
    A(f"v_add_u32 v{vT+2}, s{sJB}, v{vA}")
    A(f"s_cmp_lg_u32 s{sRound}, 0")
    A("s_cbranch_scc1 K2_NOZERO")
    for i in range(28):
        A(f"v_mov_b32 v{vO+i}, 0")
    A("K2_NOZERO:")
    A("s_waitcnt vmcnt(0)")
    A.stamp("seg")
    for r in range(4):
        A(f"v_lshrrev_b32 v{vS+4+r}, 16, v{vS+r}")
        A(f"v_and_b32 v{vS+r}, 0xffff, v{vS+r}")
        A(f"v_add_u32 v{vA+r}, v{vT+1}, v{vS+r}")
        A(f"v_mul_u32_u24 v{vA+r}, 12, v{vA+r}")
        A(f"v_add_u32 v{vT+5}, {r}, v{vT}")
        A(f"v_and_b32 v{vT+5}, s{sCM}, v{vT+5}")
        A(f"v_cmp_eq_u32 vcc, s{sK}, v{vT+5}")
        A(f"v_sub_u32 v{vT+6}, v{vS+4+r}, v{vT+2}")
        A("s_nop 0")
        A(f"v_cndmask_b32 v{vT+6}, 0, v{vT+6}, vcc")
        A(f"v_cmp_lt_i32 s[{sEX+2*r}:{sEX+2*r+1}], 0, v{vT+6}")
        A(f"v_cmp_lt_i32 s[{sEX+8+2*r}:{sEX+8+2*r+1}], 16, v{vT+6}")
    A(f"s_mov_b32 s{sT0}, {CH*12}")
    A(f"s_mov_b32 s{sT1}, {2*CH*12}")
    A(f"s_mov_b32 s{sGB}, {3*CH*12}")
    so = ["0", f"s{sT0}", f"s{sT1}", f"s{sGB}"]
    for i in range(8):
        r, it = i % 4, i // 4
        A(f"s_mov_b64 exec, s[{sEX+2*i}:{sEX+2*i+1}]")
        A(f"s_cbranch_execz K2_LD{i}")
        A(f"buffer_load_dwordx3 v[{vAcc+4*i}:{vAcc+4*i+2}], v{vA+r}, s[{sREC}:{sREC+3}], {so[r]} offen offset:{192*it}")
        A(f"K2_LD{i}:")
    A("s_mov_b64 exec, -1")
    def pf():
        A(f"s_lshr_b32 s{sT0}, s2, 3")
        A(f"s_mul_i32 s{sT0}, s{sT0}, {opt.pfn*512}")
        A(f"s_lshl_b32 s{sT1}, s{sQ0}, 7")
        A(f"s_add_u32 s{sT0}, s{sT0}, s{sT1}")
        A(f"v_lshrrev_b32 v{vT+5}, 1, v0")
        A(f"v_cmp_gt_u32 vcc, {opt.pfn - 512}, v{vT+5}")
        A(f"v_lshlrev_b32 v{vT+5}, 9, v{vT+5}")
        A(f"v_and_b32 v{vT+6}, 1, v0")
        A(f"v_lshl_add_u32 v{vT+5}, v{vT+6}, 6, v{vT+5}")
        A(f"buffer_load_dword v{vT+7}, v{vT+5}, s[{sX}:{sX+3}], s{sT0} offen")
        A(f"v_mov_b32 v{vT+6}, 0x40000000")
        A(f"v_cndmask_b32 v{vT+5}, v{vT+6}, v{vT+5}, vcc")
        A(f"s_add_u32 s{sT0}, s{sT0}, {512*512}")
        A(f"buffer_load_dword v{vT+7}, v{vT+5}, s[{sX}:{sX+3}], s{sT0} offen")
    if opt.pf == 1: pf()
    A("s_waitcnt lgkmcnt(0)")
    A("s_barrier")
    def pfm():
        A(f"s_mul_i32 s{sT0}, s2, {392*128}")
        A(f"v_cmp_gt_u32 vcc, 784, v0")
        A(f"v_lshlrev_b32 v{vT+5}, 6, v0")
        A(f"v_mov_b32 v{vT+6}, 0x40000000")
        A(f"v_cndmask_b32 v{vT+5}, v{vT+6}, v{vT+5}, vcc")
        A(f"buffer_load_dword v{vT+7}, v{vT+5}, s[{sX}:{sX+3}], s{sT0} offen")
    def pfs(nsl):
        A(f"s_mul_i32 s{sT0}, s2, {98*512}")
        A(f"v_and_b32 v{vT+5}, 127, v0")
        A(f"v_cmp_gt_u32 vcc, 98, v{vT+5}")
        A(f"s_movk_i32 s{sT1}, {128*nsl}")
        A(f"v_cmp_gt_u32 s[{sP+4}:{sP+5}], s{sT1}, v0")
        A(f"v_lshlrev_b32 v{vT+5}, 9, v{vT+5}")
        A(f"v_and_b32 v{vT+6}, 0x180, v0")
        A(f"v_add_u32 v{vT+5}, v{vT+5}, v{vT+6}")
        A(f"s_and_b64 vcc, vcc, s[{sP+4}:{sP+5}]")
        A(f"v_mov_b32 v{vT+6}, 0x40000000")
        A(f"v_cndmask_b32 v{vT+5}, v{vT+6}, v{vT+5}, vcc")
        A(f"buffer_load_dword v{vT+7}, v{vT+5}, s[{sX}:{sX+3}], s{sT0} offen")
    if opt.pf == 6: pfs(opt.nsl)
    if opt.pf == 3: pf()
    if opt.pf == 4: pfm()
    if opt.pf == 5: pf(); pfm()
    A(f"v_max_u32 v{vT+5}, v{vS+4}, v{vS+5}")
    A(f"v_max3_u32 v{vT+5}, v{vT+5}, v{vS+6}, v{vS+7}")
    A(f"v_cmp_lt_u32 vcc, 32, v{vT+5}")
    A(f"s_and_saveexec_b64 s[{sP+4}:{sP+5}], vcc")
    A("s_cbranch_execz K2_NOOVF")
    A(f"ds_max_u32 v{vT+4}, v{vT+5}")
    A("K2_NOOVF:")
    A("s_mov_b64 exec, -1")
    A(f"v_mov_b32 v{vT}, 1")
    A(f"s_waitcnt vmcnt({ {1:2,3:2,4:1,5:3,6:1}.get(opt.pf, 0) })")
    A.stamp("rec")
    for i in range(8):
        A(f"s_mov_b64 exec, s[{sEX+2*i}:{sEX+2*i+1}]")
        A(f"s_cbranch_execz K2_AT{i}")
        A(f"v_lshrrev_b32 v{vA+i}, 24, v{vAcc+4*i+2}")
        A(f"v_lshlrev_b32 v{vA+i}, 2, v{vA+i}")
        A(f"ds_add_rtn_u32 v{vAcc+4*i+3}, v{vA+i}, v{vT} offset:{L_HIST}")
        A(f"K2_AT{i}:")
    A("s_mov_b64 exec, -1")
    A("s_waitcnt lgkmcnt(0)")
    A("s_barrier")
    A.stamp("bar2")
    if opt.pf == 2: pf()
    A(f"v_lshlrev_b32 v{vT}, 4, v{vLane}")
    A(f"ds_read_b128 v[{vB}:{vB+3}], v{vT} offset:{L_HIST}")
    A(f"ds_read_b32 v{vT+4}, v{vT+4}")
    A("s_waitcnt lgkmcnt(0)")
    A(f"v_add_u32 v{vT+1}, v{vB}, v{vB+1}")
    A(f"v_add_u32 v{vT+2}, v{vT+1}, v{vB+2}")
    A(f"v_add_u32 v{vT+3}, v{vT+2}, v{vB+3}")
    A("s_nop 1")
    A(f"v_add_u32_dpp v{vS}, v{vT+3}, v{vT+3} quad_perm:[1,0,3,2] row_mask:0xf bank_mask:0xf")
    A("s_nop 1")
    A(f"v_add_u32_dpp v{vS}, v{vS}, v{vS} quad_perm:[2,3,0,1] row_mask:0xf bank_mask:0xf")
    A(f"v_and_b32 v{vS+3}, 3, v{vLane}")
    A(f"v_cmp_eq_u32 vcc, 3, v{vS+3}")
    A(f"v_add_u32 v{vS+1}, 31, v{vS}")
    A(f"v_and_b32 v{vS+1}, 0xffffffe0, v{vS+1}")
    A(f"v_max_u32 v{vS+1}, {MINU*16}, v{vS+1}")
    A(f"v_sub_u32 v{vS+2}, v{vS+1}, v{vS}")
    A(f"v_cndmask_b32 v{vS+2}, 0, v{vS+2}, vcc")
    A(f"v_add_u32 v{vT+3}, v{vT+3}, v{vS+2}")
    A(f"v_mov_b32 v{vS}, v{vT+3}")
    wave_scan(A, vS)
    A(f"v_sub_u32 v{vS}, v{vS}, v{vT+3}")
    A(f"v_add_u32 v{vB+1}, v{vS}, v{vB}")
    A(f"v_add_u32 v{vB+2}, v{vS}, v{vT+1}")
    A(f"v_add_u32 v{vB+3}, v{vS}, v{vT+2}")
    A(f"v_mov_b32 v{vB}, v{vS}")
    A(f"ds_write_b128 v{vT}, v[{vB}:{vB+3}] offset:{L_BASE}")
    A(f"s_lshl_b32 s{sT0}, s{sW}, 2")
    A(f"v_readlane_b32 s{sT1}, v{vS}, {4*NG}")
    A(f"v_readfirstlane_b32 s{sP+4}, v{vT+4}")
    A(f"v_readlane_b32 s{sGB}, v{vS}, s{sT0}")
    A(f"v_readlane_b32 s{sNU}, v{vS+1}, s{sT0}")
    for i in range(8):
        A(f"s_mov_b64 exec, s[{sEX+2*i}:{sEX+2*i+1}]")
        A(f"s_cbranch_execz K2_RB{i}")
        A(f"ds_read_b32 v{vA+i}, v{vA+i} offset:{L_BASE}")
        A(f"K2_RB{i}:")
    A("s_mov_b64 exec, -1")
    A(f"s_cmp_lg_u32 s{sMode}, 0")
    A("s_cbranch_scc1 K2_OK")
    A(f"s_cmp_gt_u32 s{sT1}, {CAP}")
    A("s_cbranch_scc1 K2_GOSLOW")
    A(f"s_cmp_eq_u32 s{sP+4}, 0")
    A("s_cbranch_scc1 K2_OK")
    A("K2_GOSLOW:")
    A(f"s_mov_b32 s{sMode}, 1")
    A(f"s_mov_b32 s{sCM}, 15")
    A(f"s_max_u32 s{sP+4}, s{sP+4}, 1")
    A(f"s_add_u32 s{sP+4}, s{sP+4}, 31")
    A(f"s_lshr_b32 s{sP+4}, s{sP+4}, 5")
    A(f"s_lshl_b32 s{sNR}, s{sP+4}, 4")
    A("s_waitcnt vmcnt(0) lgkmcnt(0)")
    A("s_barrier")
    A("s_branch K2_ROUND")
    A("K2_OK:")
    A(f"s_lshl_b32 s{sT0}, s{sGB}, 2")
    A(f"s_add_u32 s{sT0}, s{sT0}, {L_META}")
    A(f"v_add_u32 v{vMI0}, s{sT0}, v{vMI0}")
    A(f"v_add_u32 v{vMC0}, s{sT0}, v{vMC0}")
    A(f"s_lshl_b32 s{sT0}, s{sGB}, 3")
    A(f"v_add_u32 v{vBL0}, s{sT0}, v{vBL0}")
    A(f"s_lshr_b32 s{sNU}, s{sNU}, 4")
    A(f"s_sub_u32 s{sNU}, s{sNU}, 4")
    A("s_waitcnt lgkmcnt(0)")
    for i in range(8):
        A(f"s_mov_b64 exec, s[{sEX+2*i}:{sEX+2*i+1}]")
        A(f"s_cbranch_execz K2_SC{i}")
        A(f"v_add_lshl_u32 v{vA+i}, v{vA+i}, v{vAcc+4*i+3}, 2")
        A(f"v_lshlrev_b32 v{vT}, 1, v{vA+i}")
        A(f"ds_write_b32 v{vA+i}, v{vAcc+4*i+2} offset:{L_META}")
        A(f"ds_write_b64 v{vT}, v[{vAcc+4*i}:{vAcc+4*i+1}] offset:{L_COEF}")
        A(f"K2_SC{i}:")
    A("s_mov_b64 exec, -1")
    A(f"s_mov_b32 s{sPh}, 0")
    A(f"s_mov_b32 s{sQ}, s{sQ0}")
    A(f"s_lshl_b32 s{sQn}, s{sQ0}, 7")
    A("s_waitcnt lgkmcnt(0)")
    A("s_barrier")
    A.stamp("main")
    if opt.stamps == 1:
        A.stamps = 2; A.stamp("mainrt"); A.stamps = 1

    def mads():
        A(f"v_mad_u32_u16 v{vD0}, v{vSrc}, s{s512}, v{vDOff}")
        A(f"v_mad_u32_u16 v{vD1}, v{vSrc+1}, s{s512}, v{vDOff}")

    def dma(slot, wait=None, mask=False):
        if mask:
            A(f"v_cmp_gt_u32 vcc, v{vLim}, v{vD0}")
            A(f"v_cmp_gt_u32 s[{sP+4}:{sP+5}], v{vLim}, v{vD1}")
        A(f"s_add_u32 m0, s{sM0}, {slot*2048}")
        A(wait if wait else "s_nop 0")
        if mask: A("s_mov_b64 exec, vcc")
        A(f"buffer_load_dwordx4 v{vD0}, s[{sX}:{sX+3}], s{sQn} offen lds")
        A(f"s_add_u32 m0, s{sM0}, {slot*2048+1024}")
        A(f"s_mov_b64 exec, s[{sP+4}:{sP+5}]" if mask else "s_nop 0")
        A(f"buffer_load_dwordx4 v{vD1}, s[{sX}:{sX+3}], s{sQn} offen lds")
        if mask: A("s_mov_b64 exec, -1")

    def s2_addr(qreg):
        A(f"s_xor_b32 s{sT0}, s{sU}, s{qreg}")
        A(f"s_lshl_b32 s{sT1}, s{sT0}, 5")
        A(f"s_mul_i32 s{sT0}, s{sT0}, {ST}")
        A(f"s_add_u32 s{sT0}, s{sT0}, {L_SBUF}")
        A(f"v_xor_b32 v{vS2a}, s{sT1}, v{vSR}")
        A(f"v_add_u32 v{vS2a}, s{sT0}, v{vS2a}")
        A(f"v_xor_b32 v{vS2b}, 64, v{vS2a}")

    def load_w(qreg):
        A(f"s_lshl_b32 s{sT0}, s{qreg}, 11")
        A(f"v_add_u32 v{vT}, s{sT0}, v{vWo}")
        A(f"global_load_dwordx4 v[{vW}:{vW+3}], v{vT}, s[{sWS}:{sWS+1}]")
        A(f"global_load_dwordx4 v[{vW+4}:{vW+7}], v{vT}, s[{sWS}:{sWS+1}] offset:1024")

    def load_w3():
        A(f"s_add_u32 s{sT0}, s{sQ0}, 3")
        A(f"s_and_b32 s{sT0}, s{sT0}, 3")
        A(f"s_lshl_b32 s{sT0}, s{sT0}, 11")
        A(f"v_add_u32 v{vT+4}, s{sT0}, v{vWo}")
        A(f"global_load_dwordx4 v[{vW3}:{vW3+3}], v{vT+4}, s[{sWS}:{sWS+1}]")
        A(f"global_load_dwordx4 v[{vW3+4}:{vW3+7}], v{vT+4}, s[{sWS}:{sWS+1}] offset:1024")

    def s2_mfma(tl, w, s):
        A(f"v_mfma_f32_16x16x32_bf16 v[{vO+4*tl}:{vO+4*tl+3}], v[{w}:{w+3}], v[{s}:{s+3}], v[{vO+4*tl}:{vO+4*tl+3}]")
        A(f"v_mfma_f32_16x16x32_bf16 v[{vO+4*tl}:{vO+4*tl+3}], v[{w+4}:{w+7}], v[{s+4}:{s+7}], v[{vO+4*tl}:{vO+4*tl+3}]")

    def body(slot, u, mi, miu, mc, mcu, vm=2, s2m=None, s2r=None, bar=False, post=None, nodma=False, mask=False):
        A("s_waitcnt lgkmcnt(0)")
        A(f"v_xor_b32_sdwa v{vB0}, v{vNl}, v{vMy} dst_sel:WORD_1 dst_unused:UNUSED_PRESERVE src0_sel:BYTE_2 src1_sel:WORD_0")
        A(f"v_xor_b32_sdwa v{vB1}, v{vNl+1}, v{vMy} dst_sel:WORD_1 dst_unused:UNUSED_PRESERVE src0_sel:BYTE_2 src1_sel:WORD_0")
        if not nodma:
            A(f"ds_read2_b32 v[{vSrc}:{vSrc+1}], v{mi} offset0:{16*miu} offset1:{16*miu+8}")
        if opt.bmode == 0:
            A(f"ds_read_b64_tr_b16 v[{vB}:{vB+1}], v{vB0} offset:{128*u}")
            A(f"ds_read_b64_tr_b16 v[{vB+2}:{vB+3}], v{vB1} offset:{128*u+64}")
        elif opt.bmode == 1:
            A(f"ds_read_b32 v{vT+5}, v{mi}")
            A(f"ds_read_b32 v{vT+6}, v{mi}")
        elif opt.bmode == 2:
            A(f"v_min_u32 v{vT+5}, 0x30000, v{vB0}")
            A(f"v_min_u32 v{vT+6}, 0x30000, v{vB1}")
            A(f"ds_read_b64_tr_b16 v[{vB}:{vB+1}], v{vT+5} offset:{128*u}")
            A(f"ds_read_b64_tr_b16 v[{vB+2}:{vB+3}], v{vT+6} offset:{128*u+64}")
        if s2m is not None:
            pass
        A(f"s_waitcnt vmcnt({vm})")
        if not opt.noa:
            A(f"ds_read_b64_tr_b16 v[{vA}:{vA+1}], v{vA0} offset:{slot*2048}")
            A(f"ds_read_b64_tr_b16 v[{vA+2}:{vA+3}], v{vA0} offset:{slot*2048+1024}")
            A(f"ds_read_b64_tr_b16 v[{vA+4}:{vA+5}], v{vA1} offset:{slot*2048}")
            A(f"ds_read_b64_tr_b16 v[{vA+6}:{vA+7}], v{vA1} offset:{slot*2048+1024}")
        if s2m is not None and not opt.nos2:
            s2_mfma(s2m, vW, vS)
        if nodma:
            A("s_waitcnt lgkmcnt(0)")
        else:
            A("s_waitcnt lgkmcnt(6)" if not opt.noa else "s_waitcnt lgkmcnt(0)")
            mads()
            dma(slot, "s_waitcnt lgkmcnt(0)", mask)
        A(f"ds_read2_b32 v[{vNl}:{vNl+1}], v{mc} offset0:{16*mcu} offset1:{16*mcu+8}")
        if opt.mf == 1:
            A(f"v_mfma_f32_32x32x16_bf16 v[{vAcc}:{vAcc+15}], v[{vA}:{vA+3}], v[{vB}:{vB+3}], v[{vAcc}:{vAcc+15}]")
            A(f"v_mfma_f32_32x32x16_bf16 v[{vAcc+16}:{vAcc+31}], v[{vA+4}:{vA+7}], v[{vB}:{vB+3}], v[{vAcc+16}:{vAcc+31}]")
        elif opt.mf == 3:
            A(f"v_mfma_f32_32x32x16_bf16 v[{vAcc}:{vAcc+15}], v[{vA}:{vA+3}], v[{vB}:{vB+3}], v[{vAcc}:{vAcc+15}]")
        elif opt.mf == 4:
            A(f"v_mfma_f32_16x16x32_bf16 v[{vAcc}:{vAcc+3}], v[{vA}:{vA+3}], v[{vB}:{vB+3}], v[{vAcc}:{vAcc+3}]")
            A(f"v_mfma_f32_16x16x32_bf16 v[{vAcc+16}:{vAcc+19}], v[{vA+4}:{vA+7}], v[{vB}:{vB+3}], v[{vAcc+16}:{vAcc+19}]")
        elif opt.mf == 5:
            A(f"v_mfma_f32_16x16x32_bf16 v[{vAcc}:{vAcc+3}], v[{vA}:{vA+3}], v[{vB}:{vB+3}], v[{vAcc}:{vAcc+3}]")
        elif opt.mf == 6:
            for z in range(4):
                A(f"v_mfma_f32_16x16x32_bf16 v[{vAcc+4*z}:{vAcc+4*z+3}], v[{vA+4*(z&1)}:{vA+4*(z&1)+3}], v[{vB}:{vB+3}], v[{vAcc+4*z}:{vAcc+4*z+3}]")
        elif opt.mf == 2:
            A(f"v_mfma_f32_32x32x16_bf16 v[{vAcc}:{vAcc+15}], v[{vB}:{vB+3}], v[{vA}:{vA+3}], v[{vAcc}:{vAcc+15}]")
            A(f"v_mfma_f32_32x32x16_bf16 v[{vAcc+16}:{vAcc+31}], v[{vB}:{vB+3}], v[{vA+4}:{vA+7}], v[{vAcc+16}:{vAcc+31}]")
        if bar and not opt.nobar:
            A("s_barrier")
        if s2r is not None and not opt.nos2:
            A(f"ds_read_b128 v[{vS}:{vS+3}], v{vS2a} offset:{s2r*2048}")
            A(f"ds_read_b128 v[{vS+4}:{vS+7}], v{vS2b} offset:{s2r*2048}")
        if post: post()

    def adv(n):
        A(f"v_add_u32 v{vMI}, {64*n}, v{vMI}")
        A(f"v_add_u32 v{vMC}, {64*n}, v{vMC}")
        A(f"v_add_u32 v{vB0}, {128*n}, v{vB0}")
        A(f"v_add_u32 v{vB1}, {128*n}, v{vB1}")

    A(f"s_cmp_ge_u32 s{sW}, {NG}")
    A("s_cbranch_scc1 K2_HELPER")
    A(f"v_cmp_eq_u32 vcc, 0, v{vLane}")
    A(f"v_mov_b32 v{vLim}, 0x1000000")
    A("s_nop 0")
    A(f"v_cndmask_b32 v{vLim}, v{vLim}, -1, vcc")
    A(f"ds_read2_b32 v[{vSrc}:{vSrc+1}], v{vMI0} offset0:0 offset1:8")
    A(f"ds_read2_b32 v[{vS}:{vS+1}], v{vMI0} offset0:16 offset1:24")
    A(f"ds_read2_b32 v[{vNl}:{vNl+1}], v{vMC0} offset0:0 offset1:8")
    A("s_waitcnt lgkmcnt(2)")
    mads()
    dma(0)
    A("s_waitcnt lgkmcnt(1)")
    A(f"v_mad_u32_u16 v{vD0}, v{vS}, s{s512}, v{vDOff}")
    A(f"v_mad_u32_u16 v{vD1}, v{vS+1}, s{s512}, v{vDOff}")
    dma(1)
    A("K2_PHASE:")
    for i in range(32):
        A(f"v_mov_b32 v{vAcc+i}, 0")
    A(f"v_mov_b32 v{vMI}, v{vMI0}")
    A(f"v_mov_b32 v{vMC}, v{vMC0}")
    A(f"v_mov_b32 v{vB0}, v{vBL0}")
    A(f"v_mov_b32 v{vB1}, v{vBL0}")
    A(f"s_mov_b32 s{sI}, 0")
    A(f"s_cmp_eq_u32 s{sPh}, 0")
    A("s_cbranch_scc1 K2_LOOP")
    for i in range(10):
        body(i & 1, i, vMI, i + 2, vMC, i + 1,
             vm=(4 if i == 0 else 2),
             s2m=(i - 2 if 2 <= i <= 8 else None),
             s2r=(i - 1 if 1 <= i <= 7 else None),
             bar=(i == opt.bara or i == 9))
    adv(10)
    A(f"s_mov_b32 s{sI}, 10")
    A(f"s_cmp_ge_u32 s{sI}, s{sNU}")
    A("s_cbranch_scc1 K2_TAIL")
    A("K2_LOOP:")
    body(0, 0, vMI, 2, vMC, 1)
    A(f"s_add_u32 s{sI}, s{sI}, 2")
    body(1, 1, vMI, 3, vMC, 2, post=lambda: adv(2))
    A(f"s_cmp_lt_u32 s{sI}, s{sNU}")
    A("s_cbranch_scc1 K2_LOOP")
    A("K2_TAIL:")
    body(0, 0, vMI, 2, vMC, 1, mask=bool(opt.mask))
    body(1, 1, vMI, 3, vMC, 2, mask=bool(opt.mask))
    A(f"s_add_u32 s{sQn}, s{sQ}, 1")
    A(f"s_and_b32 s{sQn}, s{sQn}, 3")
    A(f"s_lshl_b32 s{sQn}, s{sQn}, 7")
    A(f"s_cmp_eq_u32 s{sPh}, 3")
    A("s_cbranch_scc1 K2_TAIL3")
    body(0, 2, vMI0, 0, vMC, 3)
    body(1, 3, vMI0, 1, vMC0, 0)
    A("s_branch K2_FLUSH")
    A("K2_TAIL3:")
    body(0, 2, vMI0, 0, vMC, 3, nodma=True)
    body(1, 3, vMI0, 1, vMC0, 0, vm=0, nodma=True)
    A("K2_FLUSH:")
    A(f"v_xor_b32 v{vT+1}, 16, v{vSW}")
    A(f"v_xor_b32 v{vT+2}, 32, v{vSW}")
    A(f"v_xor_b32 v{vT+3}, 48, v{vSW}")
    s2_addr(sQ)
    A(f"s_cmp_eq_u32 s{sPh}, 3")
    A("s_cbranch_scc1 K2_NOW")
    load_w(sQ)
    A(f"s_cmp_lg_u32 s{sPh}, 1")
    A("s_cbranch_scc1 K2_NOW")
    load_w3()
    A("K2_NOW:")
    A("s_nop 2")
    for d in range(16):
        A(f"v_cvt_pk_bf16_f32 v{vAcc+d}, v{vAcc+2*d}, v{vAcc+2*d+1}")
    A(f"ds_write_b128 v{vSW}, v[{vAcc}:{vAcc+3}]")
    A(f"ds_write_b128 v{vT+1}, v[{vAcc+4}:{vAcc+7}]")
    A(f"ds_write_b128 v{vT+2}, v[{vAcc+8}:{vAcc+11}]")
    A(f"ds_write_b128 v{vT+3}, v[{vAcc+12}:{vAcc+15}]")
    A.stamp_dyn("fl", 4, sPh, sT0)
    A(f"s_add_u32 s{sQ}, s{sQ}, 1")
    A(f"s_and_b32 s{sQ}, s{sQ}, 3")
    A(f"s_add_u32 s{sPh}, s{sPh}, 1")
    A(f"s_cmp_lt_u32 s{sPh}, 4")
    A("s_waitcnt lgkmcnt(0)")
    A("s_cbranch_scc1 K2_PHASE")
    A("s_branch K2_FINAL")

    def stage2_all(w):
        for half in range(2):
            tiles = range(0, 4) if half == 0 else range(4, 7)
            for j, tl in enumerate(tiles):
                A(f"ds_read_b128 v[{vAcc+8*j}:{vAcc+8*j+3}], v{vS2a} offset:{tl*2048}")
                A(f"ds_read_b128 v[{vAcc+8*j+4}:{vAcc+8*j+7}], v{vS2b} offset:{tl*2048}")
            n = 2 * len(tiles)
            for j, tl in enumerate(tiles):
                n -= 2
                A(f"s_waitcnt lgkmcnt({n})")
                s2_mfma(tl, w, vAcc + 8 * j)

    A("K2_HELPER:")
    load_w3()
    if opt.opf:
        A(f"s_mul_i32 s{sT0}, s{sB}, {BN*512}")
        A(f"v_and_b32 v{vT+5}, 1, v{vLane}")
        A(f"v_mul_u32_u24 v{vT+5}, {BN*512-4}, v{vT+5}")
        A(f"buffer_load_dword v{vT+7}, v{vT+5}, s[{sOUT}:{sOUT+3}], s{sT0} offen")
    A("K2_HLOOP:")
    if opt.pf == 6 and opt.sub:
        A(f"s_add_u32 s{sT1}, s{sPh}, 1")
        A(f"s_bfe_u32 s{sT0}, s2, 0x20003")
        A(f"s_cmp_lg_u32 s{sT0}, s{sT1}")
        A("s_cbranch_scc1 K2_HNOPF")
        A(f"s_and_b32 s{sT0}, s2, 7")
        A(f"s_lshl_b32 s{sT0}, s{sT0}, 3")
        A(f"s_lshr_b32 s{sGB}, s2, 5")
        A(f"s_add_u32 s{sT0}, s{sT0}, s{sGB}")
        A(f"s_mul_i32 s{sT0}, s{sT0}, {391*512}")
        A(f"s_lshl_b32 s{sT1}, s{sT1}, 7")
        A(f"s_add_u32 s{sT0}, s{sT0}, s{sT1}")
        A(f"v_and_b32 v{vT+5}, 127, v0")
        A(f"v_cmp_gt_u32 vcc, 7, v{vT+5}")
        A(f"v_lshlrev_b32 v{vT+5}, 9, v{vT+5}")
        for kk in range(3):
            A(f"buffer_load_dword v{vT+7}, v{vT+5}, s[{sX}:{sX+3}], s{sT0} offen")
            A(f"s_add_u32 s{sT0}, s{sT0}, {128*512}")
        A(f"v_mov_b32 v{vT+6}, 0x40000000")
        A(f"v_cndmask_b32 v{vT+5}, v{vT+6}, v{vT+5}, vcc")
        A(f"buffer_load_dword v{vT+7}, v{vT+5}, s[{sX}:{sX+3}], s{sT0} offen")
        A("K2_HNOPF:")
    elif opt.pf == 6:
        A(f"s_add_u32 s{sT1}, s{sPh}, {opt.nsl}")
        A(f"s_cmp_gt_u32 s{sT1}, 3")
        A("s_cbranch_scc1 K2_HNOPF")
        A(f"s_lshl_b32 s{sT1}, s{sT1}, 7")
        A(f"s_mul_i32 s{sT0}, s2, {98*512}")
        A(f"s_add_u32 s{sT0}, s{sT0}, s{sT1}")
        A(f"v_and_b32 v{vT+5}, 127, v0")
        A(f"v_cmp_gt_u32 vcc, 98, v{vT+5}")
        A(f"v_lshlrev_b32 v{vT+5}, 9, v{vT+5}")
        A(f"v_mov_b32 v{vT+6}, 0x40000000")
        A(f"v_cndmask_b32 v{vT+5}, v{vT+6}, v{vT+5}, vcc")
        A(f"buffer_load_dword v{vT+7}, v{vT+5}, s[{sX}:{sX+3}], s{sT0} offen")
        A("K2_HNOPF:")
    s2_addr(sQ)
    load_w(sQ)
    if not opt.nobar: A("s_barrier")
    A("s_waitcnt vmcnt(0)")
    stage2_all(vW)
    A(f"s_add_u32 s{sQ}, s{sQ}, 1")
    A(f"s_and_b32 s{sQ}, s{sQ}, 3")
    A(f"s_add_u32 s{sPh}, s{sPh}, 1")
    A(f"s_cmp_lt_u32 s{sPh}, 3")
    if not opt.nobar: A("s_barrier")
    A("s_cbranch_scc1 K2_HLOOP")
    s2_addr(sQ)
    A("K2_FINAL:")
    A(f"v_and_b32 v{vT}, 7, v{vLane}")
    A(f"v_and_b32 v{vT+1}, 2, v{vLane}")
    A(f"v_lshl_or_b32 v{vT}, v{vT+1}, 2, v{vT}")
    A(f"v_lshrrev_b32 v{vT+2}, 5, v{vLane}")
    A(f"s_lshl_b32 s{sT0}, s{sW}, 1")
    A(f"v_add_u32 v{vT+2}, s{sT0}, v{vT+2}")
    A(f"v_xor_b32 v{vT}, v{vT}, v{vT+2}")
    A(f"v_bfe_u32 v{vT+3}, v{vLane}, 4, 1")
    A(f"v_lshlrev_b32 v{vT+3}, 3, v{vT+3}")
    A(f"v_lshl_add_u32 v{vA}, v{vT}, 4, v{vT+3}")
    A(f"v_and_b32 v{vT+1}, 15, v{vLane}")
    A(f"v_lshl_add_u32 v{vA}, v{vT+1}, 9, v{vA}")
    A(f"v_add_u32 v{vA}, {L_STG}, v{vA}")
    A(f"v_lshrrev_b32 v{vT}, 3, v0")
    A(f"v_mul_u32_u24 v{vT+3}, 147, v{vT}")
    A(f"v_lshrrev_b32 v{vT+3}, 10, v{vT+3}")
    A(f"v_add_u32 v{vT+3}, v{vT+3}, v{vT}")
    A(f"v_xor_b32 v{vT+1}, v{vT+3}, v0")
    A(f"v_and_b32 v{vT+1}, 7, v{vT+1}")
    A(f"v_and_b32 v{vT+2}, 2, v{vT+3}")
    A(f"v_lshl_or_b32 v{vT+1}, v{vT+2}, 2, v{vT+1}")
    A(f"v_lshlrev_b32 v{vT+1}, 4, v{vT+1}")
    A(f"v_lshl_add_u32 v{vB}, v{vT+3}, 9, v{vT+1}")
    A(f"v_add_u32 v{vB}, {L_STG}, v{vB}")
    A(f"v_xor_b32 v{vB+1}, 128, v{vB}")
    A(f"v_and_b32 v{vT+1}, 7, v0")
    A(f"v_lshlrev_b32 v{vT+1}, 4, v{vT+1}")
    A(f"v_lshl_add_u32 v{vB+2}, v{vT}, 9, v{vT+1}")
    A("s_barrier")
    A.stamp("a3")
    if opt.stamps == 1:
        A.stamps = 2; A.stamp("a3rt"); A.stamps = 1
    stage2_all(vW3)
    A(f"s_cmp_eq_u32 s{sMode}, 0")
    A("s_cbranch_scc1 K2_EPI")
    A(f"s_add_u32 s{sRound}, s{sRound}, 1")
    A(f"s_cmp_ge_u32 s{sRound}, s{sNR}")
    A("s_cbranch_scc1 K2_EPI")
    A(f"s_and_b32 s{sK}, s{sRound}, 15")
    A(f"s_lshr_b32 s{sJB}, s{sRound}, 4")
    A(f"s_lshl_b32 s{sJB}, s{sJB}, 5")
    A("s_waitcnt vmcnt(0)")
    A("s_barrier")
    A("s_branch K2_ROUND")
    A("K2_EPI:")
    A.stamp("s2f")
    A(f"s_mul_i32 s{sT0}, s{sB}, {BN*512}")
    A(f"s_mov_b32 s{sT1}, 0xbfb8aa3b")
    A(f"s_mov_b32 s{sGB}, 0xffff0000")
    A(f"v_cmp_gt_u32 vcc, {BN*8}, v0")
    for tl in range(7):
        o = vO + 4 * tl
        if tl == 6: A("s_nop 1")
        A(f"v_cvt_pk_bf16_f32 v{o}, v{o}, v{o+1}")
        A(f"v_cvt_pk_bf16_f32 v{o+1}, v{o+2}, v{o+3}")
        A(f"ds_write_b64 v{vA}, v[{o}:{o+1}] offset:{tl*8192}")
    A("s_waitcnt lgkmcnt(0)")
    A("s_barrier")
    A.stamp("tile")
    A(f"s_and_saveexec_b64 s[{sP+4}:{sP+5}], vcc")
    A("s_cbranch_execz K2_DONE")
    d0 = vAcc
    g = vAcc + 16
    tt = vAcc + 24
    A(f"ds_read_b128 v[{d0}:{d0+3}], v{vB}")
    A(f"ds_read_b128 v[{d0+4}:{d0+7}], v{vB+1}")
    A(f"ds_read_b128 v[{d0+8}:{d0+11}], v{vB} offset:256")
    A(f"ds_read_b128 v[{d0+12}:{d0+15}], v{vB+1} offset:256")
    A("s_waitcnt lgkmcnt(3)")
    A(f"buffer_store_dwordx4 v[{d0}:{d0+3}], v{vB+2}, s[{sOUT}:{sOUT+3}], s{sT0} offen {opt.k2st}")
    for j in range(4):
        A(f"v_lshlrev_b32 v{g+2*j}, 16, v{d0+j}")
        A(f"v_and_b32 v{g+2*j+1}, s{sGB}, v{d0+j}")
    for j in range(8):
        A(f"v_mul_f32 v{g+j}, s{sT1}, v{g+j}")
    for j in range(8):
        A(f"v_exp_f32 v{g+j}, v{g+j}")
    for j in range(8):
        A(f"v_add_f32 v{g+j}, 1.0, v{g+j}")
    for j in range(8):
        A(f"v_rcp_f32 v{g+j}, v{g+j}")
    for u in range(1, 4):
        d = d0 + 4 * u
        A(f"s_waitcnt lgkmcnt({3-u})")
        for j in range(4):
            A(f"v_lshlrev_b32 v{tt+2*j}, 16, v{d+j}")
            A(f"v_and_b32 v{tt+2*j+1}, s{sGB}, v{d+j}")
        for j in range(4):
            A(f"v_pk_mul_f32 v[{tt+2*j}:{tt+2*j+1}], v[{tt+2*j}:{tt+2*j+1}], v[{g+2*j}:{g+2*j+1}]")
        for j in range(4):
            A(f"v_cvt_pk_bf16_f32 v{d+j}, v{tt+2*j}, v{tt+2*j+1}")
        A(f"buffer_store_dwordx4 v[{d}:{d+3}], v{vB+2}, s[{sOUT}:{sOUT+3}], s{sT0} offen offset:{128*u} {opt.k2st}")
    A("K2_DONE:")
    A("s_mov_b64 exec, -1")
    A.stamp("st")
    if opt.stamps:
        A("s_waitcnt vmcnt(0)")
    A.stamp("end")
    A.dump_stamps(sWS, 16, 0, vT, 0)
    A("K2_END:")
    A("s_endpgm")
    A("K2_CODE_END:")
    if opt.stamps: print("K2 stamps:", A.names)
    kd = f"""
.amdhsa_kernel {k}
  .amdhsa_next_free_vgpr 128
  .amdhsa_next_free_sgpr {102 if opt.stamps else 72}
  .amdhsa_accum_offset 128
  .amdhsa_group_segment_fixed_size 0
  .amdhsa_kernarg_size 96
  .amdhsa_user_sgpr_count 2
  .amdhsa_user_sgpr_kernarg_segment_ptr 1
  .amdhsa_system_sgpr_workgroup_id_x 1
  .amdhsa_float_denorm_mode_32 3
.end_amdhsa_kernel
"""
    return A.text(), kd


def main():
    ap = argparse.ArgumentParser()
    ap.add_argument("-o", default=f"cdna_kernels/{NAME}.s")
    ap.add_argument("--stamps", type=int, default=0)
    ap.add_argument("--rot", type=int, default=0)
    ap.add_argument("--pf", type=int, default=6)
    ap.add_argument("--pfn", type=int, default=782)
    ap.add_argument("--xk1", type=int, default=0)
    ap.add_argument("--cpf1", type=int, default=0)
    ap.add_argument("--opf", type=int, default=0)
    ap.add_argument("--cpf", type=int, default=0)
    ap.add_argument("--mask", type=int, default=0)
    ap.add_argument("--noa", type=int, default=0)
    ap.add_argument("--nos2", type=int, default=0)
    ap.add_argument("--sub", type=int, default=1)
    ap.add_argument("--nsl", type=int, default=1)
    ap.add_argument("--nobar", type=int, default=0)
    ap.add_argument("--bara", type=int, default=1)
    ap.add_argument("--nop", type=int, default=0)
    ap.add_argument("--bmode", type=int, default=0)
    ap.add_argument("--mf", type=int, default=1)
    ap.add_argument("--xk1e", type=int, default=0)
    ap.add_argument("--k1ld", default="nt")
    ap.add_argument("--k1st", default="sc1")
    ap.add_argument("--k1seg", default="")
    ap.add_argument("--k2st", default="sc1")
    opt = ap.parse_args()
    hdr = open(f"cdna_kernels/{NAME}.s.ref").read().split("\n")
    head = [l for l in hdr if l.startswith(";") and "@launch" not in l and "Override launch" not in l and "grid=ceil" not in l]
    t1, kd1 = gen_k1(opt)
    t2, kd2 = gen_k2(opt)
    out = "\n".join(head) + "\n"
    out += f"; @launch kernel=tp_sort_kernel grid=({NCHUNK + K1_WWG},1,1) block=({K1_BS},1,1) lds={K1_LDS}\n"
    for _ in range(opt.nop):
        out += f"; @launch kernel=tp_nop_kernel grid=(1,1,1) block=(64,1,1) lds=0\n"
    out += f"; @launch kernel={NAME}_kernel grid=({NB},1,1) block=(1024,1,1) lds={K2_LDS}\n"
    out += '.amdgcn_target "amdgcn-amd-amdhsa--gfx950"\n.text\n'
    out += t1 + t2
    if opt.nop:
        out += ".globl tp_nop_kernel\n.p2align 8\n.type tp_nop_kernel,@function\ntp_nop_kernel:\n    s_endpgm\n"
        kd2 += ".p2align 6\n" + kd1.replace("tp_sort_kernel", "tp_nop_kernel")
    out += '.section .rodata,"a"\n.p2align 6\n' + kd1 + ".p2align 6\n" + kd2
    open(opt.o, "w").write(out)


if __name__ == "__main__":
    main()
```

```python
import sys, argparse

NAME = "standalone__tensor_product_equiv_equiformer__graph"
N = 25000
E = 800000
CH = 3200
NCHUNK = 250
BN = 98
NB = 256
NG = 14
GN = 7
K1_BS = 832
K1_WWG = 10
CAP = 3776
MINU = 14

WS_REC = 0
WS_SEG = 0x930000
WS_WF = 0x9C0000
WS_DBG = 0xA00000

L_COEF = 0
L_META = CAP * 8
L_HIST = L_META + CAP * 4
L_BASE = L_HIST + 1024
L_STG = L_BASE + 1024
L_SBUF = L_STG + NG * 4096
L_FLAG = L_SBUF + 4 * 112 * 128
L_TAG = L_FLAG + 16
K2_LDS = L_FLAG + 64
ST = 112 * 128
assert L_STG % 256 == 0 and L_SBUF % 256 == 0 and K2_LDS <= 163840

K1_HIST = 0
K1_BASE = 1024
K1_REC = 4096
K1_LDS = K1_REC + CH * 12


class Asm:
    def __init__(self, stamps=False, sbase=72):
        self.l = []
        self.stamps = stamps
        self.ns = 0
        self.sbase = sbase
        self.names = []
    def stamp(self, name):
        if not self.stamps: return
        if self.sbase + 2 * self.ns + 1 > 101: return
        r = self.sbase + 2 * self.ns
        self(f"s_memrealtime s[{r}:{r+1}]" if self.stamps == 2 else f"s_memtime s[{r}:{r+1}]")
        self.names.append(name)
        self.ns += 1
    def stamp_dyn(self, name, n, sidx, stmp):
        if not self.stamps: return
        lab = f"SD_{self.sbase}_{self.ns}"
        for i in range(n):
            self(f"s_cmp_lg_u32 s{sidx}, {i}")
            self(f"s_cbranch_scc1 {lab}_{i}")
            self.stamp(f"{name}{i}")
            self(f"{lab}_{i}:")
    def dump_stamps(self, ws, nwaves, extra_off, vt, vtid):
        if not self.stamps: return
        self("s_waitcnt lgkmcnt(0)")
        self("s_mov_b64 exec, -1")
        self(f"v_mov_b32 v{vt}, 0")
        for i in range(self.ns):
            self(f"v_writelane_b32 v{vt}, s{self.sbase + 2*i}, {i}")
        self(f"v_lshrrev_b32 v{vt+1}, 6, v{vtid}")
        self(f"s_mul_i32 s{self.sbase}, s2, {nwaves}")
        self(f"v_add_u32 v{vt+1}, s{self.sbase}, v{vt+1}")
        self(f"v_lshlrev_b32 v{vt+1}, 6, v{vt+1}")
        self(f"v_and_b32 v{vt+2}, 63, v{vtid}")
        self(f"v_lshl_add_u32 v{vt+1}, v{vt+2}, 2, v{vt+1}")
        self(f"v_add_u32 v{vt+1}, {WS_DBG + extra_off}, v{vt+1}")
        self(f"s_mov_b64 exec, 0xffff")
        self(f"global_store_dword v{vt+1}, v{vt}, s[{ws}:{ws+1}]")
    def __call__(self, s):
        for ln in s.strip("\n").split("\n"):
            self.l.append("    " + ln.strip() if not ln.strip().endswith(":") else ln.strip())
    def text(self):
        return "\n".join(self.l) + "\n"


def wave_scan(A, v):
    for sh in (1, 2, 4, 8):
        A("s_nop 1")
        A(f"v_add_u32_dpp v{v}, v{v}, v{v} row_shr:{sh} row_mask:0xf bank_mask:0xf bound_ctrl:0")
    A("s_nop 1")
    A(f"v_add_u32_dpp v{v}, v{v}, v{v} row_bcast:15 row_mask:0xa bank_mask:0xf")
    A("s_nop 1")
    A(f"v_add_u32_dpp v{v}, v{v}, v{v} row_bcast:31 row_mask:0xc bank_mask:0xf")


def srd(A, d, lo, hi, nbytes):
    A(f"s_mov_b32 s{d}, s{lo}")
    A(f"s_and_b32 s{d+1}, s{hi}, 0xffff")
    A(f"s_mov_b32 s{d+2}, {nbytes}")
    A(f"s_mov_b32 s{d+3}, 0x00020000")


SPIN = 400000

def emit_tag_poll(A, lab):
    A("s_mov_b32 s36, 0")
    A("v_mov_b32 v62, 0")
    A("global_load_dword v63, v62, s[38:39]")
    A(f"s_branch {lab}_W")
    A(f"{lab}_L:")
    A("global_load_dword v63, v62, s[38:39] sc1")
    A(f"{lab}_W:")
    A("s_waitcnt vmcnt(0)")
    A("v_readfirstlane_b32 s37, v63")
    A("s_add_u32 s36, s36, 1")
    A(f"s_cmp_gt_u32 s36, {SPIN}")
    A("s_cbranch_scc1 K2_END")
    A("s_cmp_lg_u32 s37, 0")
    A(f"s_cbranch_scc1 {lab}_D")
    A("s_sleep 1")
    A(f"s_branch {lab}_L")
    A(f"{lab}_D:")
    A(f"v_mov_b32 v62, {L_TAG}")
    A("ds_write_b32 v62, v63")


def emit_publish(A, opt):
    A(f"v_mov_b32 v62, {L_TAG}")
    A("ds_read_b32 v49, v62")
    A("s_lshl_b32 s3, s2, 11")
    A(f"s_add_u32 s3, s3, {WS_SEG}")
    A("v_lshl_add_u32 v2, v1, 1, s3")
    A("v_mov_b32 v48, v56")
    A("v_mov_b32 v50, v57")
    A("v_mov_b32 v52, v58")
    A("v_mov_b32 v54, v59")
    A("s_waitcnt lgkmcnt(0)")
    A("v_mov_b32 v51, v49")
    A("v_mov_b32 v53, v49")
    A("v_mov_b32 v55, v49")
    A("global_store_dwordx4 v2, v[48:51], s[26:27] sc1")
    A("global_store_dwordx4 v2, v[52:55], s[26:27] offset:16 sc1")


def emit_scan(A):
    A(f"ds_read_b128 v[8:11], v1 offset:{K1_HIST}")
    A("s_waitcnt lgkmcnt(0)")
    A("v_add_u32 v48, v8, v9")
    A("v_add_u32 v49, v48, v10")
    A("v_add_u32 v50, v49, v11")
    A("v_mov_b32 v51, v50")
    wave_scan(A, 51)
    A("v_sub_u32 v52, v51, v50")
    A("v_add_u32 v53, v52, v8")
    A("v_add_u32 v54, v52, v48")
    A("v_add_u32 v55, v52, v49")


def emit_front(A, opt):
    A("s_load_dwordx8 s[8:15], s[0:1], 0x0")
    A("s_load_dwordx8 s[16:23], s[0:1], 0x20")
    A("s_load_dwordx2 s[24:25], s[0:1], 0x40")
    A("s_load_dwordx2 s[26:27], s[0:1], 0x58")
    A("s_load_dwordx2 s[38:39], s[0:1], 0x50")
    A("v_readfirstlane_b32 s6, v0")
    A("v_lshlrev_b32 v1, 2, v0")
    A("v_mov_b32 v2, 0")
    A(f"s_cmp_ge_u32 s2, {NCHUNK}")
    A("s_cbranch_scc1 K1_WEIGHTS")
    A("ds_write_b32 v1, v2")
    A("s_cmp_ge_u32 s6, 832")
    A("s_cbranch_scc1 K1_AUX")
    A(f"s_mul_i32 s3, s2, {CH*4}")
    A("v_lshlrev_b32 v3, 4, v0")
    A("v_add_u32 v3, s3, v3")
    A("v_lshrrev_b32 v4, 1, v3")
    A("v_add_u32 v5, v3, v4")
    A(f"v_cmp_gt_u32 vcc, {CH//4}, v0")
    A("s_waitcnt lgkmcnt(0)")
    A("s_and_saveexec_b64 s[28:29], vcc")
    A("s_mov_b64 s[30:31], exec")
    lf = opt.k1ld
    A(f"global_load_dwordx4 v[8:11], v3, s[16:17] {lf}")
    A("s_barrier")
    A(f"global_load_dwordx4 v[12:15], v3, s[14:15] {lf}")
    A(f"global_load_dwordx2 v[16:17], v4, s[12:13] {lf}")
    A(f"global_load_dwordx4 v[18:21], v5, s[10:11] {lf}")
    A(f"global_load_dwordx2 v[22:23], v5, s[10:11] offset:16 {lf}")
    A("s_mov_b32 s4, 42800")
    A("s_movk_i32 s5, 147")
    A("v_mov_b32 v60, 1")
    A("s_waitcnt vmcnt(4)")
    for i in range(4):
        A(f"v_mul_u32_u24 v{24+i}, s4, v{8+i}")
        A(f"v_lshrrev_b32 v{24+i}, 22, v{24+i}")
        A(f"v_lshlrev_b32 v{28+i}, 2, v{24+i}")
        A(f"ds_add_rtn_u32 v{32+i}, v{28+i}, v60")
    for i in range(4):
        A(f"v_mul_u32_u24 v{36+i}, {BN}, v{24+i}")
        A(f"v_sub_u32 v{36+i}, v{8+i}, v{36+i}")
        A(f"v_mul_u32_u24 v{40+i}, s5, v{36+i}")
        A(f"v_lshrrev_b32 v{40+i}, 10, v{40+i}")
        A(f"v_mul_u32_u24 v{44+i}, {GN}, v{40+i}")
        A(f"v_sub_u32 v{44+i}, v{36+i}, v{44+i}")
        A(f"v_lshlrev_b32 v{44+i}, 18, v{44+i}")
        A(f"v_lshl_or_b32 v{44+i}, v{40+i}, 28, v{44+i}")
    A("s_mov_b64 exec, -1")
    A("v_and_b32 v1, 63, v0")
    A("v_lshlrev_b32 v1, 4, v1")
    A("s_waitcnt lgkmcnt(0)")
    A("s_barrier")
    emit_scan(A)
    A(f"ds_write_b128 v1, v[52:55] offset:{K1_BASE}")
    A("s_mov_b64 exec, s[30:31]")
    for i in range(4):
        A(f"ds_read_b32 v{24+i}, v{28+i} offset:{K1_BASE}")
    for i in range(4):
        A(f"s_waitcnt lgkmcnt({3-i})")
        A(f"v_add_u32 v{24+i}, v{24+i}, v{32+i}")
        A(f"v_mul_u32_u24 v{24+i}, 12, v{24+i}")
        A(f"v_add_u32 v{24+i}, {K1_REC}, v{24+i}")
    A("s_waitcnt vmcnt(3)")
    for i in range(4):
        A(f"v_mul_u32_u24 v{36+i}, 41, v{12+i}")
        A(f"v_lshrrev_b32 v{36+i}, 16, v{36+i}")
        A(f"v_lshl_or_b32 v{36+i}, v{36+i}, 24, v{12+i}")
        A(f"v_or_b32 v{36+i}, v{44+i}, v{36+i}")
        A(f"ds_write_b32 v{24+i}, v{36+i} offset:8")
    A("s_waitcnt vmcnt(0)")
    A("s_mov_b32 s7, 0xffff0000")
    A("v_lshlrev_b32 v40, 16, v16")
    A("v_and_b32 v41, s7, v16")
    A("v_lshlrev_b32 v42, 16, v17")
    A("v_and_b32 v43, s7, v17")
    for i in range(4):
        for j in range(3):
            h = 3 * i + j
            reg = 18 + h // 2
            if h % 2 == 0:
                A(f"v_lshlrev_b32 v{44+j}, 16, v{reg}")
            else:
                A(f"v_and_b32 v{44+j}, s7, v{reg}")
            A(f"v_mul_f32 v{44+j}, v{40+i}, v{44+j}")
        A(f"v_cvt_pk_bf16_f32 v{48+2*i}, v{40+i}, v44")
        A(f"v_cvt_pk_bf16_f32 v{49+2*i}, v45, v46")
        A(f"ds_write2_b32 v{24+i}, v{48+2*i}, v{49+2*i} offset1:1")
    A("s_mov_b64 exec, -1")
    A("s_branch K1_JOIN")

    A("K1_AUX:")
    A("v_and_b32 v1, 63, v0")
    A("v_lshlrev_b32 v1, 4, v1")
    A("s_waitcnt lgkmcnt(0)")
    A("s_cmp_lg_u32 s6, 960")
    A("s_cbranch_scc1 K1_AUX1")
    A("s_cmp_lg_u32 s2, 0")
    A("s_cbranch_scc1 K1_AUX1")
    A("s_memrealtime s[36:37]")
    A("s_waitcnt lgkmcnt(0)")
    A("s_or_b32 s36, s36, 1")
    A("v_mov_b32 v63, s36")
    A("s_mov_b64 exec, 1")
    A("global_store_dword v2, v63, s[38:39] sc1")
    A("s_mov_b64 exec, -1")
    A("K1_AUX1:")
    A("s_barrier")
    A("s_barrier")
    A("s_cmp_lg_u32 s6, 960")
    A("s_cbranch_scc1 K1_AUX2")
    emit_tag_poll(A, "K1_TP")
    A("s_branch K1_JOIN")
    A("K1_AUX2:")
    A("s_cmp_lg_u32 s6, 832")
    A("s_cbranch_scc1 K1_JOIN")
    emit_scan(A)
    for i in range(4):
        A(f"v_lshl_or_b32 v{56+i}, v{8+i}, 16, v{52+i}")
    A("K1_JOIN:")
    A("v_lshlrev_b32 v6, 4, v0")
    A(f"s_mul_i32 s3, s2, {CH*12}")
    A("v_add_u32 v2, s3, v6")
    A("v_add_u32 v3, 16384, v2")
    A("v_add_u32 v4, 32768, v2")
    A(f"v_cmp_gt_u32 vcc, {CH*12//16 - 2048}, v0")
    A("s_waitcnt lgkmcnt(0)")
    A("s_barrier")
    A.stamp("bar3")
    A(f"ds_read_b128 v[8:11], v6 offset:{K1_REC}")
    A(f"ds_read_b128 v[12:15], v6 offset:{K1_REC + 16384}")
    A(f"ds_read_b128 v[16:19], v6 offset:{K1_REC + 32768}")
    A("s_waitcnt lgkmcnt(2)")
    A(f"global_store_dwordx4 v2, v[8:11], s[26:27] sc1")
    A("s_waitcnt lgkmcnt(1)")
    A(f"global_store_dwordx4 v3, v[12:15], s[26:27] sc1")
    A("s_and_saveexec_b64 s[28:29], vcc")
    A("s_cbranch_execz K1_FIN")
    A("s_waitcnt lgkmcnt(0)")
    A(f"global_store_dwordx4 v4, v[16:19], s[26:27] sc1")
    A("K1_FIN:")
    A("s_mov_b64 exec, -1")
    A("s_branch K1_PUB")

    A("K1_WEIGHTS:")
    A("s_waitcnt lgkmcnt(0)")
    A(f"s_sub_u32 s3, s2, {NCHUNK}")
    A("s_lshl_b32 s3, s3, 10")
    A("s_add_u32 s4, s3, s6")
    A("v_add_u32 v1, s3, v0")
    A("K1_WLOOP:")
    A("s_lshr_b32 s5, s4, 11")
    A("s_bfe_u32 s40, s4, 0x20009")
    A("s_bfe_u32 s7, s4, 0x20007")
    A("s_bfe_u32 s28, s4, 0x10006")
    A("s_mov_b32 s29, 4")
    A("s_cmp_eq_u32 s5, s7")
    A("s_cselect_b32 s29, 3, s29")
    A("s_cmp_eq_u32 s7, 0")
    A("s_cselect_b32 s29, 2, s29")
    A("s_cselect_b32 s30, 0, 1")
    A("s_cmp_eq_u32 s5, 0")
    A("s_cselect_b32 s29, s30, s29")
    A("s_cmp_lt_u32 s29, 2")
    A("s_cselect_b32 s32, s20, s22")
    A("s_cselect_b32 s33, s21, s23")
    A("s_cselect_b32 s30, 0, 2")
    A("s_sub_u32 s30, s29, s30")
    A("s_lshl_b32 s30, s30, 13")
    A("v_and_b32 v2, 15, v0")
    A("v_bfe_u32 v3, v0, 4, 2")
    A("s_lshl_b32 s31, s28, 2")
    A("v_lshl_add_u32 v4, v3, 4, s31")
    A("s_lshl_b32 s34, s40, 5")
    A("s_add_u32 s34, s34, s30")
    A("v_lshlrev_b32 v5, 7, v4")
    A("v_lshl_add_u32 v5, v2, 1, v5")
    A("v_add_u32 v5, s34, v5")
    for e in range(8):
        off = (8 * (e >> 2) + (e & 3)) * 128
        A(f"global_load_ushort v{8+e}, v5, s[32:33] offset:{off}")
    A("s_lshl_b32 s34, s29, 7")
    A("v_lshl_add_u32 v6, v4, 1, s34")
    A("global_load_dwordx2 v[16:17], v6, s[18:19]")
    A("global_load_dwordx2 v[18:19], v6, s[18:19] offset:16")
    A("s_xor_b32 s35, s5, s7")
    A("s_mul_i32 s36, s5, 9")
    A("s_mul_i32 s37, s35, 3")
    A("s_add_u32 s36, s36, s37")
    A("s_add_u32 s36, s36, s7")
    A("s_sub_u32 s36, s36, 13")
    A("s_cmp_eq_u32 s29, 4")
    A("s_cselect_b32 s36, s36, 0")
    A("s_lshl_b32 s36, s36, 1")
    A("v_mov_b32 v7, s36")
    A("global_load_ushort v20, v7, s[24:25]")
    A("s_waitcnt vmcnt(0)")
    A("v_lshlrev_b32 v20, 16, v20")
    A("s_cmp_eq_u32 s29, 4")
    A("s_cselect_b64 vcc, -1, 0")
    A("v_mov_b32 v21, 1.0")
    A("v_cndmask_b32 v20, v21, v20, vcc")
    A("s_mov_b32 s7, 0xffff0000")
    for e in range(8):
        reg = 16 + e // 2
        if e % 2 == 0:
            A(f"v_lshlrev_b32 v22, 16, v{reg}")
        else:
            A(f"v_and_b32 v22, s7, v{reg}")
        A(f"v_lshlrev_b32 v{8+e}, 16, v{8+e}")
        A(f"v_mul_f32 v22, v22, v20")
        A(f"v_mul_f32 v{8+e}, v{8+e}, v22")
    for d in range(4):
        A(f"v_cvt_pk_bf16_f32 v{24+d}, v{8+2*d}, v{9+2*d}")
    A("v_lshlrev_b32 v28, 4, v1")
    A(f"v_add_u32 v28, {WS_WF}, v28")
    A("global_store_dwordx4 v28, v[24:27], s[26:27] sc1")
    A("s_add_u32 s4, s4, 6144")
    A("v_add_u32 v1, 6144, v1")
    A("s_cmp_lt_u32 s4, 8192")
    A("s_cbranch_scc1 K1_WLOOP")
    A("v_and_b32 v1, 63, v0")
    A("v_lshlrev_b32 v1, 4, v1")
    for i in range(4):
        A(f"v_mov_b32 v{56+i}, 0")
    A("s_cmp_lg_u32 s6, 960")
    A("s_cbranch_scc1 K1_PUB")
    emit_tag_poll(A, "K1_TW")

    A("K1_PUB:")
    A("s_waitcnt vmcnt(0) lgkmcnt(0)")
    A("s_barrier")
    A.stamp("pub")
    A("s_cmp_lg_u32 s6, 832")
    A("s_cbranch_scc1 K1_DONE")
    emit_publish(A, opt)
    A("K1_DONE:")


def gen_k2(opt):
    A = Asm(opt.stamps, 72)
    k = f"{NAME}_kernel"
    sX, sREC, sOUT = 4, 8, 12
    sW, sNU, sI, sQ, sQn, sM0, s512, sB, sQ0, sPh = range(16, 26)
    sT0, sT1, sGB = 26, 27, 28
    sMode, sRound, sNR, sJB, sK, sCM = 30, 31, 32, 33, 34, 35
    sU, sCT, sWF, sTag = 36, 37, 38, 39
    sEX = 40
    sWS = 56
    sP = 58
    (vDOff, vMI, vMC, vMI0, vMC0, vB0, vB1, vBL0, vA0, vA1, vMy, vD0, vD1, vSW, vSR, vLane, vS2a, vS2b, vWo) = range(1, 20)
    vSrc = 20
    vNl = 22
    vA = 24
    vB = 32
    vS = 36
    vT = 44
    vAcc = 52
    vO = 84
    vW = 112
    vW3 = 120
    vLim = vT + 6

    A(f".globl {k}\n.p2align 8\n.type {k},@function\n{k}:")
    A(f"s_cmp_ge_u32 s2, {NB}")
    A("s_cbranch_scc1 K2_END")
    A.stamp("entry")
    emit_front(A, opt)
    A(f"v_mov_b32 v{vT+1}, {L_TAG}")
    A(f"ds_read_b32 v{vT+1}, v{vT+1}")
    A(f"s_load_dwordx2 s[{sWS}:{sWS+1}], s[0:1], 0x58")
    A(f"s_load_dwordx2 s[{sP}:{sP+1}], s[0:1], 0x0")
    A(f"s_load_dwordx2 s[{sP+2}:{sP+3}], s[0:1], 0x48")
    A(f"v_lshrrev_b32 v{vT}, 6, v0")
    A(f"v_and_b32 v{vLane}, 63, v0")
    A(f"v_readfirstlane_b32 s{sW}, v{vT}")
    A(f"s_and_b32 s{sT0}, s2, 7")
    A(f"s_lshr_b32 s{sT1}, s2, 3")
    A(f"s_lshl_b32 s{sB}, s{sT0}, 5")
    A(f"s_add_u32 s{sB}, s{sB}, s{sT1}")
    if opt.rot == 2:
        A(f"s_mov_b32 s{sQ0}, 3")
    else:
        A(f"s_and_b32 s{sQ0}, s{sT0}, {3 if opt.rot else 0}")
    A(f"s_mov_b32 s{sMode}, 0")
    A(f"s_mov_b32 s{sRound}, 0")
    A(f"s_mov_b32 s{sJB}, 0")
    A(f"s_mov_b32 s{sK}, 0")
    A(f"s_mov_b32 s{sCM}, 0")
    A(f"s_movk_i32 s{s512}, 512")
    A(f"s_lshr_b32 s{sU}, s{sW}, 2")
    A(f"s_and_b32 s{sCT}, s{sW}, 3")
    A("s_waitcnt lgkmcnt(0)")
    A(f"v_readfirstlane_b32 s{sTag}, v{vT+1}")

    A("K2_ROUND:")
    A(f"s_lshl_b32 s{sT0}, s{sB}, 3")
    A(f"s_add_u32 s{sT0}, s{sT0}, {WS_SEG}")
    A(f"v_and_b32 v{vT}, 0x3f0, v0")
    A(f"v_lshl_add_u32 v{vSrc}, v{vT}, 9, s{sT0}")
    A(f"v_add_u32 v{vSrc+1}, 4096, v{vSrc}")
    srd(A, sX, sP, sP + 1, N * 512)
    srd(A, sOUT, sP + 2, sP + 3, N * 512)
    srd(A, sREC, sWS, sWS + 1, NCHUNK * CH * 12)
    A(f"v_cmp_gt_u32 vcc, {CAP*4//16}, v0")
    A(f"v_lshlrev_b32 v{vT+2}, 4, v0")
    A(f"v_mov_b32 v{vT+3}, 0")
    A(f"v_cndmask_b32 v{vA}, 0, -1, vcc")
    A(f"v_cndmask_b32 v{vA+1}, 0, -1, vcc")
    A(f"v_cndmask_b32 v{vA+2}, 0, -1, vcc")
    A(f"v_cndmask_b32 v{vA+3}, 0, -1, vcc")
    A(f"ds_write_b128 v{vT+2}, v[{vA}:{vA+3}] offset:{L_META}")
    A(f"v_mov_b32 v{vT+4}, {L_FLAG}")
    A(f"ds_write_b32 v{vT+4}, v{vT+3}")
    A(f"v_and_b32 v{vA}, 7, v{vLane}")
    A(f"v_bfe_u32 v{vA+1}, v{vLane}, 4, 1")
    A(f"v_lshlrev_b32 v{vA+2}, 2, v{vA+1}")
    A(f"v_xor_b32 v{vA}, v{vA}, v{vA+2}")
    A(f"v_lshlrev_b32 v{vDOff}, 4, v{vA}")
    A(f"v_lshrrev_b32 v{vA}, 5, v{vLane}")
    A(f"v_bfe_u32 v{vA+2}, v{vLane}, 2, 2")
    A(f"v_lshl_add_u32 v{vA+3}, v{vA}, 2, v{vA+2}")
    A(f"v_lshrrev_b32 v{vMI0}, 3, v{vLane}")
    A(f"v_lshlrev_b32 v{vMI0}, 2, v{vMI0}")
    A(f"v_lshlrev_b32 v{vMC0}, 2, v{vA+3}")
    A(f"v_lshlrev_b32 v{vBL0}, 3, v{vA+3}")
    A(f"v_and_b32 v{vA+4}, 3, v{vLane}")
    A(f"v_lshl_add_u32 v{vMy}, v{vA+1}, 2, v{vA+4}")
    A(f"v_lshlrev_b32 v{vMy}, 2, v{vMy}")
    A(f"s_lshl_b32 s{sM0}, s{sW}, 12")
    A(f"s_add_u32 s{sM0}, s{sM0}, {L_STG}")
    A(f"v_lshlrev_b32 v{vA0}, 7, v{vA+3}")
    A(f"v_bfe_u32 v{vA+5}, v{vLane}, 3, 1")
    A(f"v_lshl_add_u32 v{vA0}, v{vA+5}, 6, v{vA0}")
    A(f"v_lshl_add_u32 v{vA0}, v{vA+1}, 5, v{vA0}")
    A(f"v_lshl_add_u32 v{vA0}, v{vA+4}, 3, v{vA0}")
    A(f"v_add_u32 v{vA0}, s{sM0}, v{vA0}")
    A(f"v_xor_b32 v{vA1}, 64, v{vA0}")
    A(f"v_bfe_u32 v{vA+2}, v{vLane}, 2, 3")
    A(f"s_lshl_b32 s{sT0}, s{sW}, 3")
    A(f"v_add_u32 v{vA+2}, s{sT0}, v{vA+2}")
    A(f"v_bfe_u32 v{vA+3}, v{vA+2}, 1, 3")
    A(f"v_and_b32 v{vA+5}, 1, v{vA+2}")
    A(f"v_xor_b32 v{vA+3}, v{vA+3}, v{vA+5}")
    A(f"v_lshlrev_b32 v{vA+5}, 1, v{vA+4}")
    A(f"v_xor_b32 v{vA+3}, v{vA+3}, v{vA+5}")
    A(f"v_lshlrev_b32 v{vA+5}, 2, v{vA}")
    A(f"v_xor_b32 v{vA+3}, v{vA+3}, v{vA+5}")
    A(f"v_lshlrev_b32 v{vSW}, 4, v{vA+3}")
    A(f"v_lshl_add_u32 v{vSW}, v{vA+2}, 7, v{vSW}")
    A(f"v_mul_u32_u24 v{vA+5}, {ST}, v{vA+4}")
    A(f"v_add_u32 v{vSW}, v{vSW}, v{vA+5}")
    A(f"v_add_u32 v{vSW}, {L_SBUF}, v{vSW}")
    A(f"v_and_b32 v{vA}, 15, v{vLane}")
    A(f"v_lshrrev_b32 v{vA+1}, 4, v{vLane}")
    A(f"v_lshrrev_b32 v{vA+2}, 1, v{vA}")
    A(f"v_xor_b32 v{vA+1}, v{vA+1}, v{vA+2}")
    A(f"v_and_b32 v{vA+2}, 1, v{vA}")
    A(f"v_xor_b32 v{vA+1}, v{vA+1}, v{vA+2}")
    A(f"v_lshlrev_b32 v{vSR}, 4, v{vA+1}")
    A(f"v_lshl_add_u32 v{vSR}, v{vA}, 7, v{vSR}")
    A(f"s_lshl_b32 s{sWF}, s{sW}, 13")
    A(f"s_add_u32 s{sWF}, s{sWF}, {WS_WF}")
    A(f"v_lshl_add_u32 v{vWo}, v{vLane}, 4, s{sWF}")
    A(f"v_lshrrev_b32 v{vT}, 2, v{vT}")
    A(f"v_mul_u32_u24 v{vT+1}, {CH}, v{vT}")
    A(f"v_add_u32 v{vT+1}, v{vT+1}, v{vA}")
    A(f"v_add_u32 v{vT+1}, s{sJB}, v{vT+1}")
    A(f"v_add_u32 v{vT+2}, s{sJB}, v{vA}")
    A(f"s_cmp_lg_u32 s{sRound}, 0")
    A("s_cbranch_scc1 K2_NOZERO")
    for i in range(28):
        A(f"v_mov_b32 v{vO+i}, 0")
    A("K2_NOZERO:")
    def pfs(nsl):
        A(f"s_mul_i32 s{sT0}, s2, {98*512}")
        A(f"v_and_b32 v{vT+5}, 127, v0")
        A(f"v_cmp_gt_u32 vcc, 98, v{vT+5}")
        A(f"s_movk_i32 s{sT1}, {128*nsl}")
        A(f"v_cmp_gt_u32 s[{sP+4}:{sP+5}], s{sT1}, v0")
        A(f"v_lshlrev_b32 v{vT+5}, 9, v{vT+5}")
        A(f"v_and_b32 v{vT+6}, 0x180, v0")
        A(f"v_add_u32 v{vT+5}, v{vT+5}, v{vT+6}")
        A(f"s_and_b64 vcc, vcc, s[{sP+4}:{sP+5}]")
        A(f"v_mov_b32 v{vT+6}, 0x40000000")
        A(f"v_cndmask_b32 v{vT+5}, v{vT+6}, v{vT+5}, vcc")
        A(f"buffer_load_dword v{vT+7}, v{vT+5}, s[{sX}:{sX+3}], s{sT0} offen")
    if opt.pf == 6 and opt.early: pfs(opt.nsl)
    if opt.pre: A(f"s_sleep {opt.pre}")
    A(f"s_mov_b32 s{sI}, 0")
    A("K2_POLL:")
    A(f"global_load_dwordx2 v[{vAcc}:{vAcc+1}], v{vSrc}, s[{sWS}:{sWS+1}] sc1")
    A(f"global_load_dwordx2 v[{vAcc+2}:{vAcc+3}], v{vSrc}, s[{sWS}:{sWS+1}] offset:2048 sc1")
    A(f"global_load_dwordx2 v[{vAcc+4}:{vAcc+5}], v{vSrc+1}, s[{sWS}:{sWS+1}] sc1")
    A(f"global_load_dwordx2 v[{vAcc+6}:{vAcc+7}], v{vSrc+1}, s[{sWS}:{sWS+1}] offset:2048 sc1")
    A(f"s_add_u32 s{sI}, s{sI}, 1")
    A(f"s_cmp_gt_u32 s{sI}, {SPIN}")
    A("s_cbranch_scc1 K2_END")
    A("s_waitcnt vmcnt(0)")
    A(f"v_xor_b32 v{vAcc+1}, s{sTag}, v{vAcc+1}")
    A(f"v_xor_b32 v{vAcc+3}, s{sTag}, v{vAcc+3}")
    A(f"v_xor_b32 v{vAcc+5}, s{sTag}, v{vAcc+5}")
    A(f"v_xor_b32 v{vAcc+7}, s{sTag}, v{vAcc+7}")
    A(f"v_or3_b32 v{vAcc+1}, v{vAcc+1}, v{vAcc+3}, v{vAcc+5}")
    A(f"v_or_b32 v{vAcc+1}, v{vAcc+1}, v{vAcc+7}")
    A(f"v_cmp_ne_u32 vcc, 0, v{vAcc+1}")
    A("s_and_b64 exec, exec, vcc")
    A("s_cbranch_execz K2_GOT")
    A(f"s_sleep {opt.slp}")
    A("s_branch K2_POLL")
    A("K2_GOT:")
    A("s_mov_b64 exec, -1")
    for r in range(4):
        A(f"v_mov_b32 v{vS+r}, v{vAcc+2*r}")
    A.stamp("seg")
    for r in range(4):
        A(f"v_lshrrev_b32 v{vS+4+r}, 16, v{vS+r}")
        A(f"v_and_b32 v{vS+r}, 0xffff, v{vS+r}")
        A(f"v_add_u32 v{vA+r}, v{vT+1}, v{vS+r}")
        A(f"v_mul_u32_u24 v{vA+r}, 12, v{vA+r}")
        A(f"v_add_u32 v{vT+5}, {r}, v{vT}")
        A(f"v_and_b32 v{vT+5}, s{sCM}, v{vT+5}")
        A(f"v_cmp_eq_u32 vcc, s{sK}, v{vT+5}")
        A(f"v_sub_u32 v{vT+6}, v{vS+4+r}, v{vT+2}")
        A("s_nop 0")
        A(f"v_cndmask_b32 v{vT+6}, 0, v{vT+6}, vcc")
        A(f"v_cmp_lt_i32 s[{sEX+2*r}:{sEX+2*r+1}], 0, v{vT+6}")
        A(f"v_cmp_lt_i32 s[{sEX+8+2*r}:{sEX+8+2*r+1}], 16, v{vT+6}")
    A(f"s_mov_b32 s{sT0}, {CH*12}")
    A(f"s_mov_b32 s{sT1}, {2*CH*12}")
    A(f"s_mov_b32 s{sGB}, {3*CH*12}")
    so = ["0", f"s{sT0}", f"s{sT1}", f"s{sGB}"]
    for i in range(8):
        r, it = i % 4, i // 4
        A(f"s_mov_b64 exec, s[{sEX+2*i}:{sEX+2*i+1}]")
        A(f"s_cbranch_execz K2_LD{i}")
        A(f"buffer_load_dwordx3 v[{vAcc+4*i}:{vAcc+4*i+2}], v{vA+r}, s[{sREC}:{sREC+3}], {so[r]} offen offset:{192*it} sc1")
        A(f"K2_LD{i}:")
    A("s_mov_b64 exec, -1")
    def pf():
        A(f"s_lshr_b32 s{sT0}, s2, 3")
        A(f"s_mul_i32 s{sT0}, s{sT0}, {opt.pfn*512}")
        A(f"s_lshl_b32 s{sT1}, s{sQ0}, 7")
        A(f"s_add_u32 s{sT0}, s{sT0}, s{sT1}")
        A(f"v_lshrrev_b32 v{vT+5}, 1, v0")
        A(f"v_cmp_gt_u32 vcc, {opt.pfn - 512}, v{vT+5}")
        A(f"v_lshlrev_b32 v{vT+5}, 9, v{vT+5}")
        A(f"v_and_b32 v{vT+6}, 1, v0")
        A(f"v_lshl_add_u32 v{vT+5}, v{vT+6}, 6, v{vT+5}")
        A(f"buffer_load_dword v{vT+7}, v{vT+5}, s[{sX}:{sX+3}], s{sT0} offen")
        A(f"v_mov_b32 v{vT+6}, 0x40000000")
        A(f"v_cndmask_b32 v{vT+5}, v{vT+6}, v{vT+5}, vcc")
        A(f"s_add_u32 s{sT0}, s{sT0}, {512*512}")
        A(f"buffer_load_dword v{vT+7}, v{vT+5}, s[{sX}:{sX+3}], s{sT0} offen")
    if opt.pf == 1: pf()
    A("s_waitcnt lgkmcnt(0)")
    A("s_barrier")
    def pfm():
        A(f"s_mul_i32 s{sT0}, s2, {392*128}")
        A(f"v_cmp_gt_u32 vcc, 784, v0")
        A(f"v_lshlrev_b32 v{vT+5}, 6, v0")
        A(f"v_mov_b32 v{vT+6}, 0x40000000")
        A(f"v_cndmask_b32 v{vT+5}, v{vT+6}, v{vT+5}, vcc")
        A(f"buffer_load_dword v{vT+7}, v{vT+5}, s[{sX}:{sX+3}], s{sT0} offen")
    if opt.pf == 6 and not opt.early: pfs(opt.nsl)
    if opt.pf == 3: pf()
    if opt.pf == 4: pfm()
    if opt.pf == 5: pf(); pfm()
    A(f"v_max_u32 v{vT+5}, v{vS+4}, v{vS+5}")
    A(f"v_max3_u32 v{vT+5}, v{vT+5}, v{vS+6}, v{vS+7}")
    A(f"v_cmp_lt_u32 vcc, 32, v{vT+5}")
    A(f"s_and_saveexec_b64 s[{sP+4}:{sP+5}], vcc")
    A("s_cbranch_execz K2_NOOVF")
    A(f"ds_max_u32 v{vT+4}, v{vT+5}")
    A("K2_NOOVF:")
    A("s_mov_b64 exec, -1")
    A(f"v_mov_b32 v{vT}, 1")
    A(f"s_waitcnt vmcnt({ {1:2,3:2,4:1,5:3,6:(0 if opt.early else 1)}.get(opt.pf, 0) })")
    A.stamp("rec")
    for i in range(8):
        A(f"s_mov_b64 exec, s[{sEX+2*i}:{sEX+2*i+1}]")
        A(f"s_cbranch_execz K2_AT{i}")
        A(f"v_lshrrev_b32 v{vA+i}, 24, v{vAcc+4*i+2}")
        A(f"v_lshlrev_b32 v{vA+i}, 2, v{vA+i}")
        A(f"ds_add_rtn_u32 v{vAcc+4*i+3}, v{vA+i}, v{vT} offset:{L_HIST}")
        A(f"K2_AT{i}:")
    A("s_mov_b64 exec, -1")
    A("s_waitcnt lgkmcnt(0)")
    A("s_barrier")
    A.stamp("bar2")
    if opt.pf == 2: pf()
    A(f"v_lshlrev_b32 v{vT}, 4, v{vLane}")
    A(f"ds_read_b128 v[{vB}:{vB+3}], v{vT} offset:{L_HIST}")
    A(f"ds_read_b32 v{vT+4}, v{vT+4}")
    A("s_waitcnt lgkmcnt(0)")
    A(f"v_add_u32 v{vT+1}, v{vB}, v{vB+1}")
    A(f"v_add_u32 v{vT+2}, v{vT+1}, v{vB+2}")
    A(f"v_add_u32 v{vT+3}, v{vT+2}, v{vB+3}")
    A("s_nop 1")
    A(f"v_add_u32_dpp v{vS}, v{vT+3}, v{vT+3} quad_perm:[1,0,3,2] row_mask:0xf bank_mask:0xf")
    A("s_nop 1")
    A(f"v_add_u32_dpp v{vS}, v{vS}, v{vS} quad_perm:[2,3,0,1] row_mask:0xf bank_mask:0xf")
    A(f"v_and_b32 v{vS+3}, 3, v{vLane}")
    A(f"v_cmp_eq_u32 vcc, 3, v{vS+3}")
    A(f"v_add_u32 v{vS+1}, 31, v{vS}")
    A(f"v_and_b32 v{vS+1}, 0xffffffe0, v{vS+1}")
    A(f"v_max_u32 v{vS+1}, {MINU*16}, v{vS+1}")
    A(f"v_sub_u32 v{vS+2}, v{vS+1}, v{vS}")
    A(f"v_cndmask_b32 v{vS+2}, 0, v{vS+2}, vcc")
    A(f"v_add_u32 v{vT+3}, v{vT+3}, v{vS+2}")
    A(f"v_mov_b32 v{vS}, v{vT+3}")
    wave_scan(A, vS)
    A(f"v_sub_u32 v{vS}, v{vS}, v{vT+3}")
    A(f"v_add_u32 v{vB+1}, v{vS}, v{vB}")
    A(f"v_add_u32 v{vB+2}, v{vS}, v{vT+1}")
    A(f"v_add_u32 v{vB+3}, v{vS}, v{vT+2}")
    A(f"v_mov_b32 v{vB}, v{vS}")
    A(f"ds_write_b128 v{vT}, v[{vB}:{vB+3}] offset:{L_BASE}")
    A(f"s_lshl_b32 s{sT0}, s{sW}, 2")
    A(f"v_readlane_b32 s{sT1}, v{vS}, {4*NG}")
    A(f"v_readfirstlane_b32 s{sP+4}, v{vT+4}")
    A(f"v_readlane_b32 s{sGB}, v{vS}, s{sT0}")
    A(f"v_readlane_b32 s{sNU}, v{vS+1}, s{sT0}")
    for i in range(8):
        A(f"s_mov_b64 exec, s[{sEX+2*i}:{sEX+2*i+1}]")
        A(f"s_cbranch_execz K2_RB{i}")
        A(f"ds_read_b32 v{vA+i}, v{vA+i} offset:{L_BASE}")
        A(f"K2_RB{i}:")
    A("s_mov_b64 exec, -1")
    A(f"s_cmp_lg_u32 s{sMode}, 0")
    A("s_cbranch_scc1 K2_OK")
    A(f"s_cmp_gt_u32 s{sT1}, {CAP}")
    A("s_cbranch_scc1 K2_GOSLOW")
    A(f"s_cmp_eq_u32 s{sP+4}, 0")
    A("s_cbranch_scc1 K2_OK")
    A("K2_GOSLOW:")
    A(f"s_mov_b32 s{sMode}, 1")
    A(f"s_mov_b32 s{sCM}, 15")
    A(f"s_max_u32 s{sP+4}, s{sP+4}, 1")
    A(f"s_add_u32 s{sP+4}, s{sP+4}, 31")
    A(f"s_lshr_b32 s{sP+4}, s{sP+4}, 5")
    A(f"s_lshl_b32 s{sNR}, s{sP+4}, 4")
    A("s_waitcnt vmcnt(0) lgkmcnt(0)")
    A("s_barrier")
    A("s_branch K2_ROUND")
    A("K2_OK:")
    A(f"s_lshl_b32 s{sT0}, s{sGB}, 2")
    A(f"s_add_u32 s{sT0}, s{sT0}, {L_META}")
    A(f"v_add_u32 v{vMI0}, s{sT0}, v{vMI0}")
    A(f"v_add_u32 v{vMC0}, s{sT0}, v{vMC0}")
    A(f"s_lshl_b32 s{sT0}, s{sGB}, 3")
    A(f"v_add_u32 v{vBL0}, s{sT0}, v{vBL0}")
    A(f"s_lshr_b32 s{sNU}, s{sNU}, 4")
    A(f"s_sub_u32 s{sNU}, s{sNU}, 4")
    A("s_waitcnt lgkmcnt(0)")
    for i in range(8):
        A(f"s_mov_b64 exec, s[{sEX+2*i}:{sEX+2*i+1}]")
        A(f"s_cbranch_execz K2_SC{i}")
        A(f"v_add_lshl_u32 v{vA+i}, v{vA+i}, v{vAcc+4*i+3}, 2")
        A(f"v_lshlrev_b32 v{vT}, 1, v{vA+i}")
        A(f"ds_write_b32 v{vA+i}, v{vAcc+4*i+2} offset:{L_META}")
        A(f"ds_write_b64 v{vT}, v[{vAcc+4*i}:{vAcc+4*i+1}] offset:{L_COEF}")
        A(f"K2_SC{i}:")
    A("s_mov_b64 exec, -1")
    A(f"s_mov_b32 s{sPh}, 0")
    A(f"s_mov_b32 s{sQ}, s{sQ0}")
    A(f"s_lshl_b32 s{sQn}, s{sQ0}, 7")
    A("s_waitcnt lgkmcnt(0)")
    A("s_barrier")
    A.stamp("main")
    if opt.stamps == 1:
        A.stamps = 2; A.stamp("mainrt"); A.stamps = 1

    def mads():
        A(f"v_mad_u32_u16 v{vD0}, v{vSrc}, s{s512}, v{vDOff}")
        A(f"v_mad_u32_u16 v{vD1}, v{vSrc+1}, s{s512}, v{vDOff}")

    def dma(slot, wait=None, mask=False):
        if mask:
            A(f"v_cmp_gt_u32 vcc, v{vLim}, v{vD0}")
            A(f"v_cmp_gt_u32 s[{sP+4}:{sP+5}], v{vLim}, v{vD1}")
        A(f"s_add_u32 m0, s{sM0}, {slot*2048}")
        A(wait if wait else "s_nop 0")
        if mask: A("s_mov_b64 exec, vcc")
        A(f"buffer_load_dwordx4 v{vD0}, s[{sX}:{sX+3}], s{sQn} offen lds")
        A(f"s_add_u32 m0, s{sM0}, {slot*2048+1024}")
        A(f"s_mov_b64 exec, s[{sP+4}:{sP+5}]" if mask else "s_nop 0")
        A(f"buffer_load_dwordx4 v{vD1}, s[{sX}:{sX+3}], s{sQn} offen lds")
        if mask: A("s_mov_b64 exec, -1")

    def s2_addr(qreg):
        A(f"s_xor_b32 s{sT0}, s{sU}, s{qreg}")
        A(f"s_lshl_b32 s{sT1}, s{sT0}, 5")
        A(f"s_mul_i32 s{sT0}, s{sT0}, {ST}")
        A(f"s_add_u32 s{sT0}, s{sT0}, {L_SBUF}")
        A(f"v_xor_b32 v{vS2a}, s{sT1}, v{vSR}")
        A(f"v_add_u32 v{vS2a}, s{sT0}, v{vS2a}")
        A(f"v_xor_b32 v{vS2b}, 64, v{vS2a}")

    def load_w(qreg):
        A(f"s_lshl_b32 s{sT0}, s{qreg}, 11")
        A(f"v_add_u32 v{vT}, s{sT0}, v{vWo}")
        A(f"global_load_dwordx4 v[{vW}:{vW+3}], v{vT}, s[{sWS}:{sWS+1}] sc1")
        A(f"global_load_dwordx4 v[{vW+4}:{vW+7}], v{vT}, s[{sWS}:{sWS+1}] offset:1024 sc1")

    def load_w3():
        A(f"s_add_u32 s{sT0}, s{sQ0}, 3")
        A(f"s_and_b32 s{sT0}, s{sT0}, 3")
        A(f"s_lshl_b32 s{sT0}, s{sT0}, 11")
        A(f"v_add_u32 v{vT+4}, s{sT0}, v{vWo}")
        A(f"global_load_dwordx4 v[{vW3}:{vW3+3}], v{vT+4}, s[{sWS}:{sWS+1}] sc1")
        A(f"global_load_dwordx4 v[{vW3+4}:{vW3+7}], v{vT+4}, s[{sWS}:{sWS+1}] offset:1024 sc1")

    def s2_mfma(tl, w, s):
        A(f"v_mfma_f32_16x16x32_bf16 v[{vO+4*tl}:{vO+4*tl+3}], v[{w}:{w+3}], v[{s}:{s+3}], v[{vO+4*tl}:{vO+4*tl+3}]")
        A(f"v_mfma_f32_16x16x32_bf16 v[{vO+4*tl}:{vO+4*tl+3}], v[{w+4}:{w+7}], v[{s+4}:{s+7}], v[{vO+4*tl}:{vO+4*tl+3}]")

    def body(slot, u, mi, miu, mc, mcu, vm=2, s2m=None, s2r=None, bar=False, post=None, nodma=False, mask=False):
        A("s_waitcnt lgkmcnt(0)")
        A(f"v_xor_b32_sdwa v{vB0}, v{vNl}, v{vMy} dst_sel:WORD_1 dst_unused:UNUSED_PRESERVE src0_sel:BYTE_2 src1_sel:WORD_0")
        A(f"v_xor_b32_sdwa v{vB1}, v{vNl+1}, v{vMy} dst_sel:WORD_1 dst_unused:UNUSED_PRESERVE src0_sel:BYTE_2 src1_sel:WORD_0")
        if not nodma:
            A(f"ds_read2_b32 v[{vSrc}:{vSrc+1}], v{mi} offset0:{16*miu} offset1:{16*miu+8}")
        if opt.bmode == 0:
            A(f"ds_read_b64_tr_b16 v[{vB}:{vB+1}], v{vB0} offset:{128*u}")
            A(f"ds_read_b64_tr_b16 v[{vB+2}:{vB+3}], v{vB1} offset:{128*u+64}")
        elif opt.bmode == 1:
            A(f"ds_read_b32 v{vT+5}, v{mi}")
            A(f"ds_read_b32 v{vT+6}, v{mi}")
        elif opt.bmode == 2:
            A(f"v_min_u32 v{vT+5}, 0x30000, v{vB0}")
            A(f"v_min_u32 v{vT+6}, 0x30000, v{vB1}")
            A(f"ds_read_b64_tr_b16 v[{vB}:{vB+1}], v{vT+5} offset:{128*u}")
            A(f"ds_read_b64_tr_b16 v[{vB+2}:{vB+3}], v{vT+6} offset:{128*u+64}")
        if s2m is not None:
            pass
        A(f"s_waitcnt vmcnt({vm})")
        if not opt.noa:
            A(f"ds_read_b64_tr_b16 v[{vA}:{vA+1}], v{vA0} offset:{slot*2048}")
            A(f"ds_read_b64_tr_b16 v[{vA+2}:{vA+3}], v{vA0} offset:{slot*2048+1024}")
            A(f"ds_read_b64_tr_b16 v[{vA+4}:{vA+5}], v{vA1} offset:{slot*2048}")
            A(f"ds_read_b64_tr_b16 v[{vA+6}:{vA+7}], v{vA1} offset:{slot*2048+1024}")
        if s2m is not None and not opt.nos2:
            s2_mfma(s2m, vW, vS)
        if nodma:
            A("s_waitcnt lgkmcnt(0)")
        else:
            A("s_waitcnt lgkmcnt(6)" if not opt.noa else "s_waitcnt lgkmcnt(0)")
            mads()
            dma(slot, "s_waitcnt lgkmcnt(0)", mask)
        A(f"ds_read2_b32 v[{vNl}:{vNl+1}], v{mc} offset0:{16*mcu} offset1:{16*mcu+8}")
        if opt.mf == 1:
            A(f"v_mfma_f32_32x32x16_bf16 v[{vAcc}:{vAcc+15}], v[{vA}:{vA+3}], v[{vB}:{vB+3}], v[{vAcc}:{vAcc+15}]")
            A(f"v_mfma_f32_32x32x16_bf16 v[{vAcc+16}:{vAcc+31}], v[{vA+4}:{vA+7}], v[{vB}:{vB+3}], v[{vAcc+16}:{vAcc+31}]")
        elif opt.mf == 3:
            A(f"v_mfma_f32_32x32x16_bf16 v[{vAcc}:{vAcc+15}], v[{vA}:{vA+3}], v[{vB}:{vB+3}], v[{vAcc}:{vAcc+15}]")
        elif opt.mf == 4:
            A(f"v_mfma_f32_16x16x32_bf16 v[{vAcc}:{vAcc+3}], v[{vA}:{vA+3}], v[{vB}:{vB+3}], v[{vAcc}:{vAcc+3}]")
            A(f"v_mfma_f32_16x16x32_bf16 v[{vAcc+16}:{vAcc+19}], v[{vA+4}:{vA+7}], v[{vB}:{vB+3}], v[{vAcc+16}:{vAcc+19}]")
        elif opt.mf == 5:
            A(f"v_mfma_f32_16x16x32_bf16 v[{vAcc}:{vAcc+3}], v[{vA}:{vA+3}], v[{vB}:{vB+3}], v[{vAcc}:{vAcc+3}]")
        elif opt.mf == 6:
            for z in range(4):
                A(f"v_mfma_f32_16x16x32_bf16 v[{vAcc+4*z}:{vAcc+4*z+3}], v[{vA+4*(z&1)}:{vA+4*(z&1)+3}], v[{vB}:{vB+3}], v[{vAcc+4*z}:{vAcc+4*z+3}]")
        elif opt.mf == 2:
            A(f"v_mfma_f32_32x32x16_bf16 v[{vAcc}:{vAcc+15}], v[{vB}:{vB+3}], v[{vA}:{vA+3}], v[{vAcc}:{vAcc+15}]")
            A(f"v_mfma_f32_32x32x16_bf16 v[{vAcc+16}:{vAcc+31}], v[{vB}:{vB+3}], v[{vA+4}:{vA+7}], v[{vAcc+16}:{vAcc+31}]")
        if bar and not opt.nobar:
            A("s_barrier")
        if s2r is not None and not opt.nos2:
            A(f"ds_read_b128 v[{vS}:{vS+3}], v{vS2a} offset:{s2r*2048}")
            A(f"ds_read_b128 v[{vS+4}:{vS+7}], v{vS2b} offset:{s2r*2048}")
        if post: post()

    def adv(n):
        A(f"v_add_u32 v{vMI}, {64*n}, v{vMI}")
        A(f"v_add_u32 v{vMC}, {64*n}, v{vMC}")
        A(f"v_add_u32 v{vB0}, {128*n}, v{vB0}")
        A(f"v_add_u32 v{vB1}, {128*n}, v{vB1}")

    A(f"s_cmp_ge_u32 s{sW}, {NG}")
    A("s_cbranch_scc1 K2_HELPER")
    A(f"v_cmp_eq_u32 vcc, 0, v{vLane}")
    A(f"v_mov_b32 v{vLim}, 0x1000000")
    A("s_nop 0")
    A(f"v_cndmask_b32 v{vLim}, v{vLim}, -1, vcc")
    A(f"ds_read2_b32 v[{vSrc}:{vSrc+1}], v{vMI0} offset0:0 offset1:8")
    A(f"ds_read2_b32 v[{vS}:{vS+1}], v{vMI0} offset0:16 offset1:24")
    A(f"ds_read2_b32 v[{vNl}:{vNl+1}], v{vMC0} offset0:0 offset1:8")
    A("s_waitcnt lgkmcnt(2)")
    mads()
    dma(0)
    A("s_waitcnt lgkmcnt(1)")
    A(f"v_mad_u32_u16 v{vD0}, v{vS}, s{s512}, v{vDOff}")
    A(f"v_mad_u32_u16 v{vD1}, v{vS+1}, s{s512}, v{vDOff}")
    dma(1)
    A("K2_PHASE:")
    for i in range(32):
        A(f"v_mov_b32 v{vAcc+i}, 0")
    A(f"v_mov_b32 v{vMI}, v{vMI0}")
    A(f"v_mov_b32 v{vMC}, v{vMC0}")
    A(f"v_mov_b32 v{vB0}, v{vBL0}")
    A(f"v_mov_b32 v{vB1}, v{vBL0}")
    A(f"s_mov_b32 s{sI}, 0")
    A(f"s_cmp_eq_u32 s{sPh}, 0")
    A("s_cbranch_scc1 K2_LOOP")
    for i in range(10):
        body(i & 1, i, vMI, i + 2, vMC, i + 1,
             vm=(4 if i == 0 else 2),
             s2m=(i - 2 if 2 <= i <= 8 else None),
             s2r=(i - 1 if 1 <= i <= 7 else None),
             bar=(i == opt.bara or i == 9))
    adv(10)
    A(f"s_mov_b32 s{sI}, 10")
    A(f"s_cmp_ge_u32 s{sI}, s{sNU}")
    A("s_cbranch_scc1 K2_TAIL")
    A("K2_LOOP:")
    body(0, 0, vMI, 2, vMC, 1)
    A(f"s_add_u32 s{sI}, s{sI}, 2")
    body(1, 1, vMI, 3, vMC, 2, post=lambda: adv(2))
    A(f"s_cmp_lt_u32 s{sI}, s{sNU}")
    A("s_cbranch_scc1 K2_LOOP")
    A("K2_TAIL:")
    body(0, 0, vMI, 2, vMC, 1, mask=bool(opt.mask))
    body(1, 1, vMI, 3, vMC, 2, mask=bool(opt.mask))
    A(f"s_add_u32 s{sQn}, s{sQ}, 1")
    A(f"s_and_b32 s{sQn}, s{sQn}, 3")
    A(f"s_lshl_b32 s{sQn}, s{sQn}, 7")
    A(f"s_cmp_eq_u32 s{sPh}, 3")
    A("s_cbranch_scc1 K2_TAIL3")
    body(0, 2, vMI0, 0, vMC, 3)
    body(1, 3, vMI0, 1, vMC0, 0)
    A("s_branch K2_FLUSH")
    A("K2_TAIL3:")
    body(0, 2, vMI0, 0, vMC, 3, nodma=True)
    body(1, 3, vMI0, 1, vMC0, 0, vm=0, nodma=True)
    A("K2_FLUSH:")
    A(f"v_xor_b32 v{vT+1}, 16, v{vSW}")
    A(f"v_xor_b32 v{vT+2}, 32, v{vSW}")
    A(f"v_xor_b32 v{vT+3}, 48, v{vSW}")
    s2_addr(sQ)
    A(f"s_cmp_eq_u32 s{sPh}, 3")
    A("s_cbranch_scc1 K2_NOW")
    load_w(sQ)
    A(f"s_cmp_lg_u32 s{sPh}, 1")
    A("s_cbranch_scc1 K2_NOW")
    load_w3()
    A("K2_NOW:")
    A("s_nop 2")
    for d in range(16):
        A(f"v_cvt_pk_bf16_f32 v{vAcc+d}, v{vAcc+2*d}, v{vAcc+2*d+1}")
    A(f"ds_write_b128 v{vSW}, v[{vAcc}:{vAcc+3}]")
    A(f"ds_write_b128 v{vT+1}, v[{vAcc+4}:{vAcc+7}]")
    A(f"ds_write_b128 v{vT+2}, v[{vAcc+8}:{vAcc+11}]")
    A(f"ds_write_b128 v{vT+3}, v[{vAcc+12}:{vAcc+15}]")
    A.stamp_dyn("fl", 4, sPh, sT0)
    A(f"s_add_u32 s{sQ}, s{sQ}, 1")
    A(f"s_and_b32 s{sQ}, s{sQ}, 3")
    A(f"s_add_u32 s{sPh}, s{sPh}, 1")
    A(f"s_cmp_lt_u32 s{sPh}, 4")
    A("s_waitcnt lgkmcnt(0)")
    A("s_cbranch_scc1 K2_PHASE")
    A("s_branch K2_FINAL")

    def stage2_all(w):
        for half in range(2):
            tiles = range(0, 4) if half == 0 else range(4, 7)
            for j, tl in enumerate(tiles):
                A(f"ds_read_b128 v[{vAcc+8*j}:{vAcc+8*j+3}], v{vS2a} offset:{tl*2048}")
                A(f"ds_read_b128 v[{vAcc+8*j+4}:{vAcc+8*j+7}], v{vS2b} offset:{tl*2048}")
            n = 2 * len(tiles)
            for j, tl in enumerate(tiles):
                n -= 2
                A(f"s_waitcnt lgkmcnt({n})")
                s2_mfma(tl, w, vAcc + 8 * j)

    A("K2_HELPER:")
    load_w3()
    if opt.opf:
        A(f"s_mul_i32 s{sT0}, s{sB}, {BN*512}")
        A(f"v_and_b32 v{vT+5}, 1, v{vLane}")
        A(f"v_mul_u32_u24 v{vT+5}, {BN*512-4}, v{vT+5}")
        A(f"buffer_load_dword v{vT+7}, v{vT+5}, s[{sOUT}:{sOUT+3}], s{sT0} offen")
    A("K2_HLOOP:")
    if opt.pf == 6 and opt.sub:
        A(f"s_add_u32 s{sT1}, s{sPh}, 1")
        A(f"s_bfe_u32 s{sT0}, s2, 0x20003")
        A(f"s_cmp_lg_u32 s{sT0}, s{sT1}")
        A("s_cbranch_scc1 K2_HNOPF")
        A(f"s_and_b32 s{sT0}, s2, 7")
        A(f"s_lshl_b32 s{sT0}, s{sT0}, 3")
        A(f"s_lshr_b32 s{sGB}, s2, 5")
        A(f"s_add_u32 s{sT0}, s{sT0}, s{sGB}")
        A(f"s_mul_i32 s{sT0}, s{sT0}, {391*512}")
        A(f"s_lshl_b32 s{sT1}, s{sT1}, 7")
        A(f"s_add_u32 s{sT0}, s{sT0}, s{sT1}")
        A(f"v_and_b32 v{vT+5}, 127, v0")
        A(f"v_cmp_gt_u32 vcc, 7, v{vT+5}")
        A(f"v_lshlrev_b32 v{vT+5}, 9, v{vT+5}")
        for kk in range(3):
            A(f"buffer_load_dword v{vT+7}, v{vT+5}, s[{sX}:{sX+3}], s{sT0} offen")
            A(f"s_add_u32 s{sT0}, s{sT0}, {128*512}")
        A(f"v_mov_b32 v{vT+6}, 0x40000000")
        A(f"v_cndmask_b32 v{vT+5}, v{vT+6}, v{vT+5}, vcc")
        A(f"buffer_load_dword v{vT+7}, v{vT+5}, s[{sX}:{sX+3}], s{sT0} offen")
        A("K2_HNOPF:")
    elif opt.pf == 6:
        A(f"s_add_u32 s{sT1}, s{sPh}, {opt.nsl}")
        A(f"s_cmp_gt_u32 s{sT1}, 3")
        A("s_cbranch_scc1 K2_HNOPF")
        A(f"s_lshl_b32 s{sT1}, s{sT1}, 7")
        A(f"s_mul_i32 s{sT0}, s2, {98*512}")
        A(f"s_add_u32 s{sT0}, s{sT0}, s{sT1}")
        A(f"v_and_b32 v{vT+5}, 127, v0")
        A(f"v_cmp_gt_u32 vcc, 98, v{vT+5}")
        A(f"v_lshlrev_b32 v{vT+5}, 9, v{vT+5}")
        A(f"v_mov_b32 v{vT+6}, 0x40000000")
        A(f"v_cndmask_b32 v{vT+5}, v{vT+6}, v{vT+5}, vcc")
        A(f"buffer_load_dword v{vT+7}, v{vT+5}, s[{sX}:{sX+3}], s{sT0} offen")
        A("K2_HNOPF:")
    s2_addr(sQ)
    load_w(sQ)
    if not opt.nobar: A("s_barrier")
    A("s_waitcnt vmcnt(0)")
    stage2_all(vW)
    A(f"s_add_u32 s{sQ}, s{sQ}, 1")
    A(f"s_and_b32 s{sQ}, s{sQ}, 3")
    A(f"s_add_u32 s{sPh}, s{sPh}, 1")
    A(f"s_cmp_lt_u32 s{sPh}, 3")
    if not opt.nobar: A("s_barrier")
    A("s_cbranch_scc1 K2_HLOOP")
    s2_addr(sQ)
    A("K2_FINAL:")
    A(f"v_and_b32 v{vT}, 7, v{vLane}")
    A(f"v_and_b32 v{vT+1}, 2, v{vLane}")
    A(f"v_lshl_or_b32 v{vT}, v{vT+1}, 2, v{vT}")
    A(f"v_lshrrev_b32 v{vT+2}, 5, v{vLane}")
    A(f"s_lshl_b32 s{sT0}, s{sW}, 1")
    A(f"v_add_u32 v{vT+2}, s{sT0}, v{vT+2}")
    A(f"v_xor_b32 v{vT}, v{vT}, v{vT+2}")
    A(f"v_bfe_u32 v{vT+3}, v{vLane}, 4, 1")
    A(f"v_lshlrev_b32 v{vT+3}, 3, v{vT+3}")
    A(f"v_lshl_add_u32 v{vA}, v{vT}, 4, v{vT+3}")
    A(f"v_and_b32 v{vT+1}, 15, v{vLane}")
    A(f"v_lshl_add_u32 v{vA}, v{vT+1}, 9, v{vA}")
    A(f"v_add_u32 v{vA}, {L_STG}, v{vA}")
    A(f"v_lshrrev_b32 v{vT}, 3, v0")
    A(f"v_mul_u32_u24 v{vT+3}, 147, v{vT}")
    A(f"v_lshrrev_b32 v{vT+3}, 10, v{vT+3}")
    A(f"v_add_u32 v{vT+3}, v{vT+3}, v{vT}")
    A(f"v_xor_b32 v{vT+1}, v{vT+3}, v0")
    A(f"v_and_b32 v{vT+1}, 7, v{vT+1}")
    A(f"v_and_b32 v{vT+2}, 2, v{vT+3}")
    A(f"v_lshl_or_b32 v{vT+1}, v{vT+2}, 2, v{vT+1}")
    A(f"v_lshlrev_b32 v{vT+1}, 4, v{vT+1}")
    A(f"v_lshl_add_u32 v{vB}, v{vT+3}, 9, v{vT+1}")
    A(f"v_add_u32 v{vB}, {L_STG}, v{vB}")
    A(f"v_xor_b32 v{vB+1}, 128, v{vB}")
    A(f"v_and_b32 v{vT+1}, 7, v0")
    A(f"v_lshlrev_b32 v{vT+1}, 4, v{vT+1}")
    A(f"v_lshl_add_u32 v{vB+2}, v{vT}, 9, v{vT+1}")
    A("s_barrier")
    A.stamp("a3")
    if opt.stamps == 1:
        A.stamps = 2; A.stamp("a3rt"); A.stamps = 1
    stage2_all(vW3)
    A(f"s_cmp_eq_u32 s{sMode}, 0")
    A("s_cbranch_scc1 K2_EPI")
    A(f"s_add_u32 s{sRound}, s{sRound}, 1")
    A(f"s_cmp_ge_u32 s{sRound}, s{sNR}")
    A("s_cbranch_scc1 K2_EPI")
    A(f"s_and_b32 s{sK}, s{sRound}, 15")
    A(f"s_lshr_b32 s{sJB}, s{sRound}, 4")
    A(f"s_lshl_b32 s{sJB}, s{sJB}, 5")
    A("s_waitcnt vmcnt(0)")
    A("s_barrier")
    A("s_branch K2_ROUND")
    A("K2_EPI:")
    A.stamp("s2f")
    A(f"s_mul_i32 s{sT0}, s{sB}, {BN*512}")
    A(f"s_mov_b32 s{sT1}, 0xbfb8aa3b")
    A(f"s_mov_b32 s{sGB}, 0xffff0000")
    A(f"v_cmp_gt_u32 vcc, {BN*8}, v0")
    for tl in range(7):
        o = vO + 4 * tl
        if tl == 6: A("s_nop 1")
        A(f"v_cvt_pk_bf16_f32 v{o}, v{o}, v{o+1}")
        A(f"v_cvt_pk_bf16_f32 v{o+1}, v{o+2}, v{o+3}")
        A(f"ds_write_b64 v{vA}, v[{o}:{o+1}] offset:{tl*8192}")
    A("s_waitcnt lgkmcnt(0)")
    A("s_barrier")
    A.stamp("tile")
    A(f"s_and_saveexec_b64 s[{sP+4}:{sP+5}], vcc")
    A("s_cbranch_execz K2_DONE")
    d0 = vAcc
    g = vAcc + 16
    tt = vAcc + 24
    A(f"ds_read_b128 v[{d0}:{d0+3}], v{vB}")
    A(f"ds_read_b128 v[{d0+4}:{d0+7}], v{vB+1}")
    A(f"ds_read_b128 v[{d0+8}:{d0+11}], v{vB} offset:256")
    A(f"ds_read_b128 v[{d0+12}:{d0+15}], v{vB+1} offset:256")
    A("s_waitcnt lgkmcnt(3)")
    A(f"buffer_store_dwordx4 v[{d0}:{d0+3}], v{vB+2}, s[{sOUT}:{sOUT+3}], s{sT0} offen {opt.k2st}")
    for j in range(4):
        A(f"v_lshlrev_b32 v{g+2*j}, 16, v{d0+j}")
        A(f"v_and_b32 v{g+2*j+1}, s{sGB}, v{d0+j}")
    for j in range(8):
        A(f"v_mul_f32 v{g+j}, s{sT1}, v{g+j}")
    for j in range(8):
        A(f"v_exp_f32 v{g+j}, v{g+j}")
    for j in range(8):
        A(f"v_add_f32 v{g+j}, 1.0, v{g+j}")
    for j in range(8):
        A(f"v_rcp_f32 v{g+j}, v{g+j}")
    for u in range(1, 4):
        d = d0 + 4 * u
        A(f"s_waitcnt lgkmcnt({3-u})")
        for j in range(4):
            A(f"v_lshlrev_b32 v{tt+2*j}, 16, v{d+j}")
            A(f"v_and_b32 v{tt+2*j+1}, s{sGB}, v{d+j}")
        for j in range(4):
            A(f"v_pk_mul_f32 v[{tt+2*j}:{tt+2*j+1}], v[{tt+2*j}:{tt+2*j+1}], v[{g+2*j}:{g+2*j+1}]")
        for j in range(4):
            A(f"v_cvt_pk_bf16_f32 v{d+j}, v{tt+2*j}, v{tt+2*j+1}")
        A(f"buffer_store_dwordx4 v[{d}:{d+3}], v{vB+2}, s[{sOUT}:{sOUT+3}], s{sT0} offen offset:{128*u} {opt.k2st}")
    A("K2_DONE:")
    A("s_mov_b64 exec, -1")
    A.stamp("st")
    if opt.stamps:
        A("s_waitcnt vmcnt(0)")
    A.stamp("end")
    A.dump_stamps(sWS, 16, 0, vT, 0)
    A("K2_END:")
    A("s_endpgm")
    A("K2_CODE_END:")
    if opt.stamps: print("K2 stamps:", A.names)
    kd = f"""
.amdhsa_kernel {k}
  .amdhsa_next_free_vgpr 128
  .amdhsa_next_free_sgpr {102 if opt.stamps else 72}
  .amdhsa_accum_offset 128
  .amdhsa_group_segment_fixed_size 0
  .amdhsa_kernarg_size 96
  .amdhsa_user_sgpr_count 2
  .amdhsa_user_sgpr_kernarg_segment_ptr 1
  .amdhsa_system_sgpr_workgroup_id_x 1
  .amdhsa_float_denorm_mode_32 3
.end_amdhsa_kernel
"""
    return A.text(), kd


def main():
    ap = argparse.ArgumentParser()
    ap.add_argument("-o", default=f"cdna_kernels/{NAME}.s")
    ap.add_argument("--stamps", type=int, default=0)
    ap.add_argument("--rot", type=int, default=0)
    ap.add_argument("--pf", type=int, default=6)
    ap.add_argument("--pfn", type=int, default=782)
    ap.add_argument("--xk1", type=int, default=0)
    ap.add_argument("--early", type=int, default=0)
    ap.add_argument("--pre", type=int, default=0)
    ap.add_argument("--slp", type=int, default=2)
    ap.add_argument("--aslist", type=int, default=1)
    ap.add_argument("--rsh", type=int, default=0)
    ap.add_argument("--cpf1", type=int, default=0)
    ap.add_argument("--opf", type=int, default=0)
    ap.add_argument("--cpf", type=int, default=0)
    ap.add_argument("--mask", type=int, default=0)
    ap.add_argument("--noa", type=int, default=0)
    ap.add_argument("--nos2", type=int, default=0)
    ap.add_argument("--sub", type=int, default=1)
    ap.add_argument("--nsl", type=int, default=1)
    ap.add_argument("--nobar", type=int, default=0)
    ap.add_argument("--bara", type=int, default=1)
    ap.add_argument("--nop", type=int, default=0)
    ap.add_argument("--bmode", type=int, default=0)
    ap.add_argument("--mf", type=int, default=1)
    ap.add_argument("--xk1e", type=int, default=0)
    ap.add_argument("--k1ld", default="nt")
    ap.add_argument("--k1st", default="sc1")
    ap.add_argument("--k1seg", default="")
    ap.add_argument("--k2st", default="sc1")
    opt = ap.parse_args()
    hdr = open(f"cdna_kernels/{NAME}.s.ref").read().split("\n")
    head = [l for l in hdr if l.startswith(";") and "@launch" not in l and "Override launch" not in l and "grid=ceil" not in l]
    t2, kd2 = gen_k2(opt)
    out = "\n".join(head) + "\n"
    if opt.aslist:
        out += f"; @launch kernel={NAME}_kernel grid=({NB},1,1) block=(1024,1,1) lds={K2_LDS}\n"
    else:
        out += f"; @launch grid=({NB},1,1) block=(1024,1,1) lds={K2_LDS}\n"
    out += '.amdgcn_target "amdgcn-amd-amdhsa--gfx950"\n.text\n'
    out += t2
    out += '.section .rodata,"a"\n.p2align 6\n' + kd2
    open(opt.o, "w").write(out)


if __name__ == "__main__":
    main()
```

```python
import argparse

NAME = "standalone__tensor_product_equiv_equiformer__graph"
N = 25000
CH = 3200
NCHUNK = 250
BN = 98
NB = 256
NG = 14
GN = 7
CAP = 3776
MINU = 4
SPIN = 400000

WS_SEG = 0x930000
WS_DBG = 0xA00000

L_COEF = 0
L_META = CAP * 8
L_HIST = L_META + CAP * 4
L_BASE = L_HIST + 1024
L_STG = L_BASE + 1024
L_WST = L_STG + NG * 4096
L_FLAG = L_WST + 40960
L_TAG = L_FLAG + 16
K2_LDS = L_FLAG + 64
WS_PART = 0x1000000
assert L_STG % 256 == 0 and L_WST % 256 == 0 and K2_LDS <= 163840

K1_HIST = 0
K1_BASE = 1024
K1_REC = 4096


class Asm:
    def __init__(self, stamps=False, sbase=72):
        self.l = []; self.stamps = stamps; self.ns = 0; self.sbase = sbase; self.names = []
    def stamp(self, name):
        if not self.stamps: return
        if self.sbase + 2 * self.ns + 1 > 101: return
        r = self.sbase + 2 * self.ns
        self(f"s_memrealtime s[{r}:{r+1}]" if self.stamps == 2 else f"s_memtime s[{r}:{r+1}]")
        self.names.append(name); self.ns += 1
    def stamp_both(self, name):
        self.stamp(name)
        if self.stamps == 1:
            self.stamps = 2; self.stamp(name + "rt"); self.stamps = 1
    def stamp_dyn(self, name, n, sidx):
        if not self.stamps: return
        lab = f"SD_{self.ns}"
        for i in range(n):
            self(f"s_cmp_lg_u32 s{sidx}, {i}")
            self(f"s_cbranch_scc1 {lab}_{i}")
            self.stamp(f"{name}{i}")
            self(f"{lab}_{i}:")
    def dump_stamps(self, ws, nwaves, vt):
        if not self.stamps: return
        self("s_waitcnt vmcnt(0) lgkmcnt(0)")
        self("s_mov_b64 exec, -1")
        self(f"v_mov_b32 v{vt}, 0")
        for i in range(self.ns):
            self(f"v_writelane_b32 v{vt}, s{self.sbase + 2*i}, {i}")
        self(f"v_lshrrev_b32 v{vt+1}, 6, v0")
        self(f"s_mul_i32 s{self.sbase}, s2, {nwaves}")
        self(f"v_add_u32 v{vt+1}, s{self.sbase}, v{vt+1}")
        self(f"v_lshlrev_b32 v{vt+1}, 6, v{vt+1}")
        self(f"v_and_b32 v{vt+2}, 63, v0")
        self(f"v_lshl_add_u32 v{vt+1}, v{vt+2}, 2, v{vt+1}")
        self(f"v_add_u32 v{vt+1}, {WS_DBG}, v{vt+1}")
        self(f"s_mov_b64 exec, 0xffff")
        self(f"global_store_dword v{vt+1}, v{vt}, s[{ws}:{ws+1}]")
    def __call__(self, s):
        for ln in s.strip("\n").split("\n"):
            self.l.append("    " + ln.strip() if not ln.strip().endswith(":") else ln.strip())
    def text(self):
        return "\n".join(self.l) + "\n"


def wave_scan(A, v):
    for sh in (1, 2, 4, 8):
        A("s_nop 1")
        A(f"v_add_u32_dpp v{v}, v{v}, v{v} row_shr:{sh} row_mask:0xf bank_mask:0xf bound_ctrl:0")
    A("s_nop 1")
    A(f"v_add_u32_dpp v{v}, v{v}, v{v} row_bcast:15 row_mask:0xa bank_mask:0xf")
    A("s_nop 1")
    A(f"v_add_u32_dpp v{v}, v{v}, v{v} row_bcast:31 row_mask:0xc bank_mask:0xf")


def srd(A, d, lo, hi, nbytes):
    A(f"s_mov_b32 s{d}, s{lo}")
    A(f"s_and_b32 s{d+1}, s{hi}, 0xffff")
    A(f"s_mov_b32 s{d+2}, {nbytes}")
    A(f"s_mov_b32 s{d+3}, 0x00020000")


def emit_tag_poll(A, lab):
    A("s_mov_b32 s36, 0")
    A("v_mov_b32 v62, 0")
    A("global_load_dword v63, v62, s[38:39]")
    A(f"s_branch {lab}_W")
    A(f"{lab}_L:")
    A("global_load_dword v63, v62, s[38:39] sc1")
    A(f"{lab}_W:")
    A("s_waitcnt vmcnt(0)")
    A("v_readfirstlane_b32 s37, v63")
    A("s_add_u32 s36, s36, 1")
    A(f"s_cmp_gt_u32 s36, {SPIN}")
    A("s_cbranch_scc1 K2_END")
    A("s_cmp_lg_u32 s37, 0")
    A(f"s_cbranch_scc1 {lab}_D")
    A("s_sleep 1")
    A(f"s_branch {lab}_L")
    A(f"{lab}_D:")
    A(f"v_mov_b32 v62, {L_TAG}")
    A("ds_write_b32 v62, v63")


def emit_scan(A):
    A(f"ds_read_b128 v[8:11], v1 offset:{K1_HIST}")
    A("s_waitcnt lgkmcnt(0)")
    A("v_add_u32 v48, v8, v9")
    A("v_add_u32 v49, v48, v10")
    A("v_add_u32 v50, v49, v11")
    A("v_mov_b32 v51, v50")
    wave_scan(A, 51)
    A("v_sub_u32 v52, v51, v50")
    A("v_add_u32 v53, v52, v8")
    A("v_add_u32 v54, v52, v48")
    A("v_add_u32 v55, v52, v49")


def w_load(A):
    W = 64
    A(f"v_lshlrev_b32 v{W+20}, 4, v0")
    A(f"v_lshrrev_b32 v{W+21}, 3, v0")
    A(f"v_lshlrev_b32 v{W+21}, 1, v{W+21}")
    A(f"v_and_b32 v{W+22}, 0x1ff0, v{W+20}")
    A(f"v_add_u32 v{W+22}, 16384, v{W+22}")
    A(f"v_and_b32 v{W+23}, 0x7e, v{W+21}")
    A(f"global_load_dwordx4 v[{W}:{W+3}], v{W+20}, s[66:67]")
    A(f"global_load_dwordx4 v[{W+4}:{W+7}], v{W+20}, s[68:69]")
    A(f"global_load_dwordx4 v[{W+8}:{W+11}], v{W+22}, s[68:69]")
    A(f"global_load_ushort v{W+12}, v{W+21}, s[64:65]")
    A(f"global_load_ushort v{W+13}, v{W+21}, s[64:65] offset:256")
    A(f"global_load_ushort v{W+14}, v{W+23}, s[64:65] offset:512")
    A(f"v_bfe_u32 v{W+16}, v0, 4, 1")
    A(f"v_lshlrev_b32 v{W+16}, 6, v{W+16}")
    A(f"v_xor_b32 v{W+16}, v{W+16}, v{W+20}")
    A(f"v_add_u32 v{W+16}, {L_WST}, v{W+16}")


def w_stage(A, lab):
    W = 64
    A("s_mov_b32 s7, 0xffff0000")
    for c in range(3):
        if c == 2:
            A("s_cmp_ge_u32 s6, 512")
            A(f"s_cbranch_scc1 {lab}")
        A(f"v_lshlrev_b32 v{W+12+c}, 16, v{W+12+c}")
        for d in range(4):
            r = W + 4 * c + d
            A(f"v_lshlrev_b32 v{W+18}, 16, v{r}")
            A(f"v_and_b32 v{W+19}, s7, v{r}")
            A(f"v_mul_f32 v{W+18}, v{W+12+c}, v{W+18}")
            A(f"v_mul_f32 v{W+19}, v{W+12+c}, v{W+19}")
            A(f"v_cvt_pk_bf16_f32 v{r}, v{W+18}, v{W+19}")
        A(f"ds_write_b128 v{W+16}, v[{W+4*c}:{W+4*c+3}] offset:{16384*c}")
    A(f"{lab}:")


def emit_front(A, opt):
    A("s_load_dwordx8 s[8:15], s[0:1], 0x0")
    A("s_load_dwordx2 s[16:17], s[0:1], 0x20")
    A("s_load_dwordx2 s[26:27], s[0:1], 0x58")
    A("s_load_dwordx2 s[38:39], s[0:1], 0x50")
    A("v_readfirstlane_b32 s6, v0")
    A("v_lshlrev_b32 v1, 2, v0")
    A("v_mov_b32 v2, 0")
    A(f"s_cmp_ge_u32 s2, {NCHUNK}")
    A("s_cbranch_scc1 K1_IDLE")
    A("ds_write_b32 v1, v2")
    A("s_cmp_ge_u32 s6, 832")
    A("s_cbranch_scc1 K1_AUX")
    A(f"s_mul_i32 s3, s2, {CH*4}")
    A("v_lshlrev_b32 v3, 4, v0")
    A("v_add_u32 v3, s3, v3")
    A("v_lshrrev_b32 v4, 1, v3")
    A("v_add_u32 v5, v3, v4")
    A(f"v_cmp_gt_u32 vcc, {CH//4}, v0")
    A("s_waitcnt lgkmcnt(0)")
    A("s_and_saveexec_b64 s[28:29], vcc")
    A("s_mov_b64 s[30:31], exec")
    A("global_load_dwordx4 v[8:11], v3, s[16:17] nt")
    A("s_barrier")
    A("global_load_dwordx4 v[12:15], v3, s[14:15] nt")
    A("global_load_dwordx2 v[16:17], v4, s[12:13] nt")
    A("global_load_dwordx4 v[18:21], v5, s[10:11] nt")
    A("global_load_dwordx2 v[22:23], v5, s[10:11] offset:16 nt")
    A("s_mov_b32 s4, 42800")
    A("s_movk_i32 s5, 147")
    A("v_mov_b32 v60, 1")
    A("s_waitcnt vmcnt(4)")
    for i in range(4):
        A(f"v_mul_u32_u24 v{24+i}, s4, v{8+i}")
        A(f"v_lshrrev_b32 v{24+i}, 22, v{24+i}")
        A(f"v_lshlrev_b32 v{28+i}, 2, v{24+i}")
        A(f"ds_add_rtn_u32 v{32+i}, v{28+i}, v60")
    for i in range(4):
        A(f"v_mul_u32_u24 v{36+i}, {BN}, v{24+i}")
        A(f"v_sub_u32 v{36+i}, v{8+i}, v{36+i}")
        A(f"v_mul_u32_u24 v{40+i}, s5, v{36+i}")
        A(f"v_lshrrev_b32 v{40+i}, 10, v{40+i}")
        A(f"v_mul_u32_u24 v{44+i}, {GN}, v{40+i}")
        A(f"v_sub_u32 v{44+i}, v{36+i}, v{44+i}")
        A(f"v_lshlrev_b32 v{44+i}, 18, v{44+i}")
        A(f"v_lshl_or_b32 v{44+i}, v{40+i}, 28, v{44+i}")
    A("s_mov_b64 exec, -1")
    A("v_and_b32 v1, 63, v0")
    A("v_lshlrev_b32 v1, 4, v1")
    A("s_waitcnt lgkmcnt(0)")
    A("s_barrier")
    emit_scan(A)
    A(f"ds_write_b128 v1, v[52:55] offset:{K1_BASE}")
    A("s_mov_b64 exec, s[30:31]")
    for i in range(4):
        A(f"ds_read_b32 v{24+i}, v{28+i} offset:{K1_BASE}")
    for i in range(4):
        A(f"s_waitcnt lgkmcnt({3-i})")
        A(f"v_add_u32 v{24+i}, v{24+i}, v{32+i}")
        A(f"v_mul_u32_u24 v{24+i}, 12, v{24+i}")
        A(f"v_add_u32 v{24+i}, {K1_REC}, v{24+i}")
    A("s_waitcnt vmcnt(3)")
    for i in range(4):
        A(f"v_mul_u32_u24 v{36+i}, 41, v{12+i}")
        A(f"v_lshrrev_b32 v{36+i}, 16, v{36+i}")
        A(f"v_lshl_or_b32 v{36+i}, v{36+i}, 24, v{12+i}")
        A(f"v_or_b32 v{36+i}, v{44+i}, v{36+i}")
        A(f"ds_write_b32 v{24+i}, v{36+i} offset:8")
    A("s_waitcnt vmcnt(0)")
    A("s_mov_b32 s7, 0xffff0000")
    A("v_lshlrev_b32 v40, 16, v16")
    A("v_and_b32 v41, s7, v16")
    A("v_lshlrev_b32 v42, 16, v17")
    A("v_and_b32 v43, s7, v17")
    for i in range(4):
        for j in range(3):
            h = 3 * i + j
            reg = 18 + h // 2
            A(f"v_lshlrev_b32 v{44+j}, 16, v{reg}" if h % 2 == 0 else f"v_and_b32 v{44+j}, s7, v{reg}")
            A(f"v_mul_f32 v{44+j}, v{40+i}, v{44+j}")
        A(f"v_cvt_pk_bf16_f32 v{48+2*i}, v{40+i}, v44")
        A(f"v_cvt_pk_bf16_f32 v{49+2*i}, v45, v46")
        A(f"ds_write2_b32 v{24+i}, v{48+2*i}, v{49+2*i} offset1:1")
    A("s_mov_b64 exec, -1")
    A("s_branch K1_JOIN")

    A("K1_AUX:")
    A("v_and_b32 v1, 63, v0")
    A("v_lshlrev_b32 v1, 4, v1")
    A("s_waitcnt lgkmcnt(0)")
    A("s_cmp_lg_u32 s6, 960")
    A("s_cbranch_scc1 K1_AUX1")
    A("s_cmp_lg_u32 s2, 0")
    A("s_cbranch_scc1 K1_AUX1")
    A("s_memrealtime s[36:37]")
    A("s_waitcnt lgkmcnt(0)")
    A("s_or_b32 s36, s36, 1")
    A("v_mov_b32 v63, s36")
    A("s_mov_b64 exec, 1")
    A("global_store_dword v2, v63, s[38:39] sc1")
    A("s_mov_b64 exec, -1")
    A("K1_AUX1:")
    A("s_barrier")
    A("s_barrier")
    A("s_cmp_lg_u32 s6, 960")
    A("s_cbranch_scc1 K1_AUX2")
    emit_tag_poll(A, "K1_TP")
    A("s_branch K1_JOIN")
    A("K1_AUX2:")
    A("s_cmp_lg_u32 s6, 832")
    A("s_cbranch_scc1 K1_JOIN")
    emit_scan(A)
    for i in range(4):
        A(f"v_lshl_or_b32 v{56+i}, v{8+i}, 12, v{52+i}")
    A("K1_JOIN:")
    w_load(A)
    A("v_lshlrev_b32 v6, 4, v0")
    A(f"s_mul_i32 s3, s2, {CH*12}")
    A("v_add_u32 v2, s3, v6")
    A("v_add_u32 v3, 16384, v2")
    A("v_add_u32 v4, 32768, v2")
    A(f"v_cmp_gt_u32 vcc, {CH*12//16 - 2048}, v0")
    A("s_waitcnt lgkmcnt(0)")
    A("s_barrier")
    A.stamp("bar3")
    A(f"ds_read_b128 v[8:11], v6 offset:{K1_REC}")
    A(f"ds_read_b128 v[12:15], v6 offset:{K1_REC + 16384}")
    A(f"ds_read_b128 v[16:19], v6 offset:{K1_REC + 32768}")
    A("s_waitcnt lgkmcnt(2)")
    A("global_store_dwordx4 v2, v[8:11], s[26:27] sc1")
    A("s_waitcnt lgkmcnt(1)")
    A("global_store_dwordx4 v3, v[12:15], s[26:27] sc1")
    A("s_and_saveexec_b64 s[28:29], vcc")
    A("s_cbranch_execz K1_FIN")
    A("s_waitcnt lgkmcnt(0)")
    A("global_store_dwordx4 v4, v[16:19], s[26:27] sc1")
    A("K1_FIN:")
    A("s_mov_b64 exec, -1")
    A("s_waitcnt vmcnt(2)")
    w_stage(A, "K1_WS1")
    A("s_waitcnt vmcnt(0) lgkmcnt(0)")
    A("s_barrier")
    A.stamp("pub")
    A("s_cmp_lg_u32 s6, 832")
    A("s_cbranch_scc1 K1_DONE")
    A(f"v_mov_b32 v62, {L_TAG}")
    A("ds_read_b32 v49, v62")
    A("s_lshl_b32 s3, s2, 11")
    A(f"s_add_u32 s3, s3, {WS_SEG}")
    A("v_lshl_add_u32 v2, v1, 1, s3")
    A("s_waitcnt lgkmcnt(0)")
    A("v_lshlrev_b32 v62, 23, v49")
    A("v_and_b32 v62, 0xff000000, v62")
    A("v_or_b32 v48, v62, v56")
    A("v_or_b32 v50, v62, v57")
    A("v_or_b32 v52, v62, v58")
    A("v_or_b32 v54, v62, v59")
    A("v_mov_b32 v51, v49")
    A("v_mov_b32 v53, v49")
    A("v_mov_b32 v55, v49")
    A("global_store_dwordx4 v2, v[48:51], s[26:27] sc1")
    A("global_store_dwordx4 v2, v[52:55], s[26:27] offset:16 sc1")
    A("s_branch K1_DONE")
    A("K1_IDLE:")
    A("s_waitcnt lgkmcnt(0)")
    w_load(A)
    A("s_waitcnt vmcnt(0)")
    w_stage(A, "K1_WS2")
    A("s_cmp_lg_u32 s6, 960")
    A("s_cbranch_scc1 K1_IDLE1")
    A("s_mov_b32 s36, 0")
    A("v_mov_b32 v62, 0")
    A("s_branch K1_TW_L")
    emit_tag_poll(A, "K1_TW")
    A("K1_IDLE1:")
    A("s_waitcnt lgkmcnt(0)")
    A("s_barrier")
    A("K1_DONE:")


def gen(opt):
    A = Asm(opt.stamps, 72)
    k = f"{NAME}_kernel"
    sX, sREC, sOUT = 4, 8, 12
    sW, sNU, sI, sQn, sM0, s512, sB, sPh = range(16, 24)
    sT0, sT1, sGB, sTag2 = 26, 27, 28, 29
    sMode, sRound, sNR, sJB, sK, sCM = 30, 31, 32, 33, 34, 35
    sTag = 39
    sEX = 40
    sWS = 56
    sP = 58
    sWP = 64
    (vDOff, vMI, vMC, vMI0, vMC0, vB0, vB1, vBL0, vA0, vA1, vMy, vSgn, vJunk) = range(1, 14)
    vSrc = 14
    vNl = 16
    vA = 20
    vB = 28
    vAcc = 32
    vH = 64
    vK = 96
    vP0 = 112
    vT = 96; vS = 104; vLane = 112; vR = 114

    A(f".globl {k}\n.p2align 8\n.type {k},@function\n{k}:")
    A(f"s_cmp_ge_u32 s2, {NB}")
    A("s_cbranch_scc1 K2_END")
    A.stamp("entry")
    A(f"s_load_dwordx2 s[{sWS}:{sWS+1}], s[0:1], 0x58")
    A(f"s_load_dwordx2 s[{sP}:{sP+1}], s[0:1], 0x0")
    A(f"s_load_dwordx2 s[{sP+2}:{sP+3}], s[0:1], 0x48")
    A(f"s_load_dwordx2 s[{sWP}:{sWP+1}], s[0:1], 0x28")
    A(f"s_load_dwordx2 s[{sWP+2}:{sWP+3}], s[0:1], 0x30")
    A(f"s_load_dwordx2 s[{sWP+4}:{sWP+5}], s[0:1], 0x38")
    emit_front(A, opt)
    A(f"v_mov_b32 v{vT+1}, {L_TAG}")
    A(f"ds_read_b32 v{vT+1}, v{vT+1}")
    A(f"s_lshr_b32 s{sW}, s6, 6")
    A(f"s_and_b32 s{sT0}, s2, 7")
    A(f"s_lshr_b32 s{sT1}, s2, 3")
    A(f"s_lshl_b32 s{sB}, s{sT0}, 5")
    A(f"s_add_u32 s{sB}, s{sB}, s{sT1}")
    for r in (sMode, sRound, sJB, sK, sCM):
        A(f"s_mov_b32 s{r}, 0")
    A(f"s_movk_i32 s{s512}, 512")
    srd(A, sX, sP, sP + 1, N * 512)
    srd(A, sOUT, sP + 2, sP + 3, N * 512)
    srd(A, sREC, sWS, sWS + 1, NCHUNK * CH * 12)
    A("s_waitcnt lgkmcnt(0)")
    A(f"v_readfirstlane_b32 s{sTag}, v{vT+1}")
    A("s_nop 3")
    A(f"s_lshl_b32 s{sTag2}, s{sTag}, 23")
    A(f"s_and_b32 s{sTag2}, s{sTag2}, 0xff000000")

    A("K2_ROUND:")
    A(f"v_lshlrev_b32 v{vT+2}, 4, v0")
    A(f"v_and_b32 v{vLane}, 63, v0")
    A(f"s_lshl_b32 s{sT0}, s{sB}, 3")
    A(f"s_add_u32 s{sT0}, s{sT0}, {WS_SEG}")
    A(f"v_and_b32 v{vT}, 0x3f0, v0")
    A(f"v_lshl_add_u32 v{vSrc}, v{vT}, 9, s{sT0}")
    A(f"v_add_u32 v{vSrc+1}, 4096, v{vSrc}")
    A(f"v_cmp_gt_u32 vcc, {CAP*4//16}, v0")
    A(f"v_mov_b32 v{vT+3}, 0")
    A(f"v_mov_b32 v{vT+4}, {L_FLAG}")
    for i in range(4):
        A(f"v_cndmask_b32 v{vA+i}, 0, -1, vcc")
    A(f"ds_write_b128 v{vT+2}, v[{vA}:{vA+3}] offset:{L_META}")
    A(f"ds_write_b32 v{vT+4}, v{vT+3}")
    A(f"v_and_b32 v{vA}, 7, v{vLane}")
    A(f"v_bfe_u32 v{vA+1}, v{vLane}, 4, 1")
    A(f"v_lshlrev_b32 v{vA+2}, 2, v{vA+1}")
    A(f"v_xor_b32 v{vA}, v{vA}, v{vA+2}")
    A(f"v_lshlrev_b32 v{vDOff}, 4, v{vA}")
    A(f"v_lshrrev_b32 v{vA}, 5, v{vLane}")
    A(f"v_bfe_u32 v{vA+2}, v{vLane}, 2, 2")
    A(f"v_lshl_add_u32 v{vA+3}, v{vA}, 2, v{vA+2}")
    A(f"v_and_b32 v{vMI0}, 56, v{vLane}")
    A(f"v_lshlrev_b32 v{vMC0}, 3, v{vA+3}")
    A(f"v_lshlrev_b32 v{vBL0}, 4, v{vA+3}")
    A(f"v_and_b32 v{vA+4}, 3, v{vLane}")
    A(f"v_lshl_add_u32 v{vMy}, v{vA+1}, 2, v{vA+4}")
    A(f"v_lshlrev_b32 v{vMy}, 2, v{vMy}")
    A(f"s_lshl_b32 s{sM0}, s{sW}, 12")
    A(f"s_add_u32 s{sM0}, s{sM0}, {L_STG}")
    A(f"v_lshlrev_b32 v{vA0}, 7, v{vA+3}")
    A(f"v_bfe_u32 v{vA+5}, v{vLane}, 3, 1")
    A(f"v_lshl_add_u32 v{vA0}, v{vA+5}, 6, v{vA0}")
    A(f"v_lshl_add_u32 v{vA0}, v{vA+1}, 5, v{vA0}")
    A(f"v_lshl_add_u32 v{vA0}, v{vA+4}, 3, v{vA0}")
    A(f"v_add_u32 v{vA0}, s{sM0}, v{vA0}")
    A(f"v_xor_b32 v{vA1}, 64, v{vA0}")
    A(f"v_and_b32 v{vA}, 15, v{vLane}")
    A(f"v_lshrrev_b32 v{vT}, 2, v{vT}")
    A(f"v_mul_u32_u24 v{vT+1}, {CH}, v{vT}")
    A(f"v_add_u32 v{vT+1}, v{vT+1}, v{vA}")
    A(f"v_add_u32 v{vT+1}, s{sJB}, v{vT+1}")
    A(f"v_add_u32 v{vT+7}, s{sJB}, v{vA}")
    A(f"v_cmp_gt_u32 vcc, {NCHUNK-2}, v{vT}")
    A(f"v_lshrrev_b32 v{vA+3}, 2, v{vT}")
    A(f"v_cmp_eq_u32 s[{sP+4}:{sP+5}], 62, v{vA+3}")
    for r in range(4):
        A(f"v_mov_b32 v{vS+r}, 0")
    A(f"v_cndmask_b32 v{vSrc+1}, v{vSrc}, v{vSrc+1}, vcc")
    A(f"s_or_b64 exec, vcc, s[{sP+4}:{sP+5}]")
    A(f"s_mov_b64 s[{sEX}:{sEX+1}], exec")
    A(f"s_mov_b64 s[{sEX+2}:{sEX+3}], vcc")
    A(f"s_mov_b32 s{sI}, 0")
    P = vR
    A("K2_POLL:")
    A(f"global_load_dwordx2 v[{P}:{P+1}], v{vSrc}, s[{sWS}:{sWS+1}] sc1")
    A(f"global_load_dwordx2 v[{P+2}:{P+3}], v{vSrc}, s[{sWS}:{sWS+1}] offset:2048 sc1")
    A(f"global_load_dwordx2 v[{P+4}:{P+5}], v{vSrc+1}, s[{sWS}:{sWS+1}] sc1")
    A(f"global_load_dwordx2 v[{P+6}:{P+7}], v{vSrc+1}, s[{sWS}:{sWS+1}] offset:2048 sc1")
    A(f"s_add_u32 s{sI}, s{sI}, 1")
    A(f"s_cmp_gt_u32 s{sI}, {SPIN}")
    A("s_cbranch_scc1 K2_END")
    A("s_waitcnt vmcnt(0)")
    for r in range(4):
        A(f"v_xor_b32 v{P+2*r+1}, s{sTag}, v{P+2*r+1}")
        A(f"v_xor_b32 v{P+2*r}, s{sTag2}, v{P+2*r}")
    A(f"v_or3_b32 v{P+1}, v{P+1}, v{P+3}, v{P+5}")
    A(f"v_or3_b32 v{P+3}, v{P}, v{P+2}, v{P+4}")
    A(f"v_or_b32 v{P+3}, v{P+3}, v{P+6}")
    A(f"v_lshrrev_b32 v{P+3}, 24, v{P+3}")
    A(f"v_or3_b32 v{P+1}, v{P+1}, v{P+7}, v{P+3}")
    A(f"v_cmp_ne_u32 vcc, 0, v{P+1}")
    A("s_and_b64 exec, exec, vcc")
    A("s_cbranch_execz K2_GOT")
    A(f"s_sleep {opt.slp}")
    A("s_branch K2_POLL")
    A("K2_GOT:")
    A(f"s_mov_b64 exec, s[{sEX}:{sEX+1}]")
    A(f"v_mov_b32 v{vS}, v{P}")
    A(f"v_mov_b32 v{vS+1}, v{P+2}")
    A(f"s_mov_b64 exec, s[{sEX+2}:{sEX+3}]")
    A(f"v_mov_b32 v{vS+2}, v{P+4}")
    A(f"v_mov_b32 v{vS+3}, v{P+6}")
    A("s_mov_b64 exec, -1")
    A.stamp("seg")
    for r in range(4):
        A(f"v_lshrrev_b32 v{vS+4+r}, 12, v{vS+r}")
        A(f"v_and_b32 v{vS+r}, 0xfff, v{vS+r}")
        A(f"v_add_u32 v{vA+r}, v{vT+1}, v{vS+r}")
        A(f"v_mul_u32_u24 v{vA+r}, 12, v{vA+r}")
        A(f"v_add_u32 v{vT+5}, {r}, v{vT}")
        A(f"v_and_b32 v{vT+5}, s{sCM}, v{vT+5}")
        A(f"v_cmp_eq_u32 vcc, s{sK}, v{vT+5}")
        A(f"v_sub_u32 v{vT+6}, v{vS+4+r}, v{vT+7}")
        A("s_nop 0")
        A(f"v_cndmask_b32 v{vT+6}, 0, v{vT+6}, vcc")
        A(f"v_cmp_lt_i32 s[{sEX+2*r}:{sEX+2*r+1}], 0, v{vT+6}")
        A(f"v_cmp_lt_i32 s[{sEX+8+2*r}:{sEX+8+2*r+1}], 16, v{vT+6}")
    A(f"s_mov_b32 s{sT0}, {CH*12}")
    A(f"s_mov_b32 s{sT1}, {2*CH*12}")
    A(f"s_mov_b32 s{sGB}, {3*CH*12}")
    so = ["0", f"s{sT0}", f"s{sT1}", f"s{sGB}"]
    for i in range(8):
        r, it = i % 4, i // 4
        A(f"s_mov_b64 exec, s[{sEX+2*i}:{sEX+2*i+1}]")
        A(f"s_cbranch_execz K2_LD{i}")
        A(f"buffer_load_dwordx3 v[{vAcc+4*i}:{vAcc+4*i+2}], v{vA+r}, s[{sREC}:{sREC+3}], {so[r]} offen offset:{192*it} sc1")
        A(f"K2_LD{i}:")
    A("s_mov_b64 exec, -1")
    A("s_waitcnt lgkmcnt(0)")
    A("s_barrier")
    A(f"s_mul_i32 s{sT0}, s2, {392*128}")
    A(f"v_cmp_gt_u32 vcc, 392, v0")
    A(f"v_lshlrev_b32 v{vT+5}, 7, v0")
    A(f"v_mov_b32 v{vT+6}, 0x40000000")
    A(f"v_cndmask_b32 v{vT+5}, v{vT+6}, v{vT+5}, vcc")
    A(f"buffer_load_dword v{vJunk}, v{vT+5}, s[{sX}:{sX+3}], s{sT0} offen")
    A(f"v_max_u32 v{vT+5}, v{vS+4}, v{vS+5}")
    A(f"v_max3_u32 v{vT+5}, v{vT+5}, v{vS+6}, v{vS+7}")
    A(f"v_cmp_lt_u32 vcc, 32, v{vT+5}")
    A(f"s_and_saveexec_b64 s[{sP+4}:{sP+5}], vcc")
    A("s_cbranch_execz K2_NOOVF")
    A(f"ds_max_u32 v{vT+4}, v{vT+5}")
    A("K2_NOOVF:")
    A("s_mov_b64 exec, -1")
    A(f"v_mov_b32 v{vT}, 1")
    A("s_waitcnt vmcnt(1)")
    A.stamp("rec")
    for i in range(8):
        A(f"s_mov_b64 exec, s[{sEX+2*i}:{sEX+2*i+1}]")
        A(f"s_cbranch_execz K2_AT{i}")
        A(f"v_lshrrev_b32 v{vA+i}, 24, v{vAcc+4*i+2}")
        A(f"v_lshlrev_b32 v{vA+i}, 2, v{vA+i}")
        A(f"ds_add_rtn_u32 v{vAcc+4*i+3}, v{vA+i}, v{vT} offset:{L_HIST}")
        A(f"K2_AT{i}:")
    A("s_mov_b64 exec, -1")
    A("s_waitcnt lgkmcnt(0)")
    A("s_barrier")
    A.stamp("bar2")
    A(f"v_lshlrev_b32 v{vT}, 4, v{vLane}")
    A(f"ds_read_b128 v[{vB}:{vB+3}], v{vT} offset:{L_HIST}")
    A(f"ds_read_b32 v{vT+4}, v{vT+4}")
    A("s_waitcnt lgkmcnt(0)")
    A(f"v_add_u32 v{vT+1}, v{vB}, v{vB+1}")
    A(f"v_add_u32 v{vT+2}, v{vT+1}, v{vB+2}")
    A(f"v_add_u32 v{vT+3}, v{vT+2}, v{vB+3}")
    A("s_nop 1")
    A(f"v_add_u32_dpp v{vS}, v{vT+3}, v{vT+3} quad_perm:[1,0,3,2] row_mask:0xf bank_mask:0xf")
    A("s_nop 1")
    A(f"v_add_u32_dpp v{vS}, v{vS}, v{vS} quad_perm:[2,3,0,1] row_mask:0xf bank_mask:0xf")
    A(f"v_and_b32 v{vS+3}, 3, v{vLane}")
    A(f"v_cmp_eq_u32 vcc, 3, v{vS+3}")
    A(f"v_add_u32 v{vS+1}, 31, v{vS}")
    A(f"v_and_b32 v{vS+1}, 0xffffffe0, v{vS+1}")
    A(f"v_max_u32 v{vS+1}, {MINU*16}, v{vS+1}")
    A(f"v_sub_u32 v{vS+2}, v{vS+1}, v{vS}")
    A(f"v_cndmask_b32 v{vS+2}, 0, v{vS+2}, vcc")
    A(f"v_add_u32 v{vT+3}, v{vT+3}, v{vS+2}")
    A(f"v_mov_b32 v{vS}, v{vT+3}")
    wave_scan(A, vS)
    A(f"v_sub_u32 v{vS}, v{vS}, v{vT+3}")
    A(f"v_add_u32 v{vB+1}, v{vS}, v{vB}")
    A(f"v_add_u32 v{vB+2}, v{vS}, v{vT+1}")
    A(f"v_add_u32 v{vB+3}, v{vS}, v{vT+2}")
    A(f"v_mov_b32 v{vB}, v{vS}")
    A(f"ds_write_b128 v{vT}, v[{vB}:{vB+3}] offset:{L_BASE}")
    A(f"s_lshl_b32 s{sT0}, s{sW}, 2")
    A(f"v_readlane_b32 s{sT1}, v{vS}, {4*NG}")
    A(f"v_readfirstlane_b32 s{sP+4}, v{vT+4}")
    A(f"v_readlane_b32 s{sGB}, v{vS}, s{sT0}")
    A(f"v_readlane_b32 s{sNU}, v{vS+1}, s{sT0}")
    for i in range(8):
        A(f"s_mov_b64 exec, s[{sEX+2*i}:{sEX+2*i+1}]")
        A(f"s_cbranch_execz K2_RB{i}")
        A(f"ds_read_b32 v{vA+i}, v{vA+i} offset:{L_BASE}")
        A(f"K2_RB{i}:")
    A("s_mov_b64 exec, -1")
    A(f"s_cmp_lg_u32 s{sMode}, 0")
    A("s_cbranch_scc1 K2_OK")
    A(f"s_cmp_gt_u32 s{sT1}, {CAP}")
    A("s_cbranch_scc1 K2_GOSLOW")
    A(f"s_cmp_eq_u32 s{sP+4}, 0")
    A("s_cbranch_scc1 K2_OK")
    A("K2_GOSLOW:")
    A(f"s_mov_b32 s{sMode}, 1")
    A(f"s_mov_b32 s{sCM}, 3")
    A(f"s_max_u32 s{sP+4}, s{sP+4}, 1")
    A(f"s_add_u32 s{sP+4}, s{sP+4}, 31")
    A(f"s_lshr_b32 s{sP+4}, s{sP+4}, 5")
    A(f"s_lshl_b32 s{sNR}, s{sP+4}, 2")
    A("s_waitcnt vmcnt(0) lgkmcnt(0)")
    A("s_barrier")
    A("s_branch K2_ROUND")
    A("K2_OK:")
    A(f"s_lshl_b32 s{sT0}, s{sGB}, 2")
    A(f"s_add_u32 s{sT0}, s{sT0}, {L_META}")
    A(f"v_add_u32 v{vMI0}, s{sT0}, v{vMI0}")
    A(f"v_add_u32 v{vMC0}, s{sT0}, v{vMC0}")
    A(f"s_lshl_b32 s{sT0}, s{sGB}, 3")
    A(f"v_add_u32 v{vBL0}, s{sT0}, v{vBL0}")
    A(f"s_lshr_b32 s{sNU}, s{sNU}, 4")
    A(f"s_sub_u32 s{sNU}, s{sNU}, 2")
    A("s_waitcnt lgkmcnt(0)")
    for i in range(8):
        A(f"s_mov_b64 exec, s[{sEX+2*i}:{sEX+2*i+1}]")
        A(f"s_cbranch_execz K2_SC{i}")
        A(f"v_add_lshl_u32 v{vA+i}, v{vA+i}, v{vAcc+4*i+3}, 2")
        A(f"v_lshlrev_b32 v{vT}, 1, v{vA+i}")
        A(f"ds_write_b32 v{vA+i}, v{vAcc+4*i+2} offset:{L_META}")
        A(f"ds_write_b64 v{vT}, v[{vAcc+4*i}:{vAcc+4*i+1}] offset:{L_COEF}")
        A(f"K2_SC{i}:")
    A("s_mov_b64 exec, -1")
    A(f"s_mov_b32 s{sPh}, 0")
    A(f"s_mov_b32 s{sQn}, 0")
    A("s_waitcnt lgkmcnt(0)")
    A("s_barrier")
    A.stamp_both("main")
    A(f"s_cmp_ge_u32 s{sW}, {NG}")
    A("s_cbranch_scc1 K2_RIDLE")

    def mads(src=vSrc):
        A(f"v_mad_u32_u16 v{vSrc}, v{src}, s{s512}, v{vDOff}")
        A(f"v_mad_u32_u16 v{vSrc+1}, v{src+1}, s{s512}, v{vDOff}")

    def dma(slot, wait=None):
        A(f"s_add_u32 m0, s{sM0}, {slot*2048}")
        A(wait if wait else "s_nop 0")
        A(f"buffer_load_dwordx4 v{vSrc}, s[{sX}:{sX+3}], s{sQn} offen lds")
        A(f"s_add_u32 m0, s{sM0}, {slot*2048+1024}")
        A("s_nop 0")
        A(f"buffer_load_dwordx4 v{vSrc+1}, s[{sX}:{sX+3}], s{sQn} offen lds")

    def body(slot, u, mi, miu, mc, mcu, vm=2, post=None, nodma=False):
        A("s_waitcnt lgkmcnt(0)")
        A(f"v_xor_b32_sdwa v{vB0}, v{vNl}, v{vMy} dst_sel:WORD_1 dst_unused:UNUSED_PRESERVE src0_sel:BYTE_2 src1_sel:WORD_0")
        A(f"v_xor_b32_sdwa v{vB1}, v{vNl+1}, v{vMy} dst_sel:WORD_1 dst_unused:UNUSED_PRESERVE src0_sel:BYTE_2 src1_sel:WORD_0")
        if not nodma:
            A(f"ds_read_b64 v[{vSrc}:{vSrc+1}], v{mi} offset:{64*miu}")
        else:
            A("s_nop 0")
        A(f"ds_read_b64_tr_b16 v[{vB}:{vB+1}], v{vB0} offset:{128*u}")
        A(f"ds_read_b64_tr_b16 v[{vB+2}:{vB+3}], v{vB1} offset:{128*u+8}")
        A(f"s_waitcnt vmcnt({vm})")
        A(f"ds_read_b64_tr_b16 v[{vA}:{vA+1}], v{vA0} offset:{slot*2048}")
        A(f"ds_read_b64_tr_b16 v[{vA+2}:{vA+3}], v{vA0} offset:{slot*2048+1024}")
        A(f"ds_read_b64_tr_b16 v[{vA+4}:{vA+5}], v{vA1} offset:{slot*2048}")
        A(f"ds_read_b64_tr_b16 v[{vA+6}:{vA+7}], v{vA1} offset:{slot*2048+1024}")
        if nodma:
            A("s_waitcnt lgkmcnt(0)")
        else:
            A("s_waitcnt lgkmcnt(6)")
            mads()
            dma(slot, "s_waitcnt lgkmcnt(0)")
        A(f"ds_read_b64 v[{vNl}:{vNl+1}], v{mc} offset:{64*mcu}")
        A(f"v_mfma_f32_32x32x16_bf16 v[{vAcc}:{vAcc+15}], v[{vA}:{vA+3}], v[{vB}:{vB+3}], v[{vAcc}:{vAcc+15}]")
        A(f"v_mfma_f32_32x32x16_bf16 v[{vAcc+16}:{vAcc+31}], v[{vA+4}:{vA+7}], v[{vB}:{vB+3}], v[{vAcc+16}:{vAcc+31}]")
        if post: post()

    def adv(n):
        A(f"v_add_u32 v{vMI}, {64*n}, v{vMI}")
        A(f"v_add_u32 v{vMC}, {64*n}, v{vMC}")
        A(f"v_add_u32 v{vB0}, {128*n}, v{vB0}")
        A(f"v_add_u32 v{vB1}, {128*n}, v{vB1}")

    A(f"ds_read_b64 v[{vSrc}:{vSrc+1}], v{vMI0}")
    A(f"ds_read_b64 v[{vA}:{vA+1}], v{vMI0} offset:64")
    A(f"ds_read_b64 v[{vNl}:{vNl+1}], v{vMC0}")
    A("s_waitcnt lgkmcnt(2)")
    mads()
    dma(0)
    A("s_waitcnt lgkmcnt(1)")
    mads(vA)
    dma(1)
    for i in range(16):
        A(f"v_mov_b32 v{vK+i}, 0")
    if opt.prio: A("s_setprio 3")
    A("K2_PHASE:")
    for i in range(32):
        A(f"v_mov_b32 v{vAcc+i}, 0")
    A(f"v_mov_b32 v{vMI}, v{vMI0}")
    A(f"v_mov_b32 v{vMC}, v{vMC0}")
    A(f"v_mov_b32 v{vB0}, v{vBL0}")
    A(f"v_mov_b32 v{vB1}, v{vBL0}")
    A(f"s_mov_b32 s{sI}, 0")
    A("K2_LOOP:")
    body(0, 0, vMI, 2, vMC, 1)
    A(f"s_add_u32 s{sI}, s{sI}, 2")
    body(1, 1, vMI, 3, vMC, 2, post=lambda: adv(2))
    A(f"s_cmp_lt_u32 s{sI}, s{sNU}")
    A("s_cbranch_scc1 K2_LOOP")
    A(f"s_add_u32 s{sQn}, s{sQn}, 128")
    A(f"s_cmp_eq_u32 s{sPh}, 3")
    A("s_cbranch_scc1 K2_TAIL3")
    body(0, 0, vMI0, 0, vMC, 1)
    body(1, 1, vMI0, 1, vMC0, 0)
    A("s_branch K2_COMB")
    A("K2_TAIL3:")
    body(0, 0, vMI0, 0, vMC, 1, nodma=True)
    body(1, 1, vMI0, 1, vMC0, 0, vm=0, nodma=True)
    A("K2_COMB:")
    A(f"v_and_b32 v{vA}, 3, v0")
    A(f"s_add_u32 s{sT0}, s{sPh}, 2")
    A(f"s_cmp_gt_u32 s{sT0}, 3")
    A(f"s_cselect_b32 s{sT1}, 3, 0")
    A(f"s_sub_u32 s{sT0}, s{sT0}, s{sT1}")
    A(f"v_cmp_eq_u32 vcc, s{sT0}, v{vA}")
    A(f"v_mov_b32 v{vSgn}, 1.0")
    A("s_nop 0")
    A(f"v_cndmask_b32 v{vSgn}, v{vSgn}, -1.0, vcc")
    A(f"v_cmp_ne_u32 vcc, s{sPh}, v{vA}")
    A(f"s_cmp_eq_u32 s{sPh}, 2")
    A("s_nop 0")
    A(f"v_cndmask_b32 v{vSgn}, 0, v{vSgn}, vcc")
    A("s_cbranch_scc1 K2_C2")
    A(f"s_cmp_eq_u32 s{sPh}, 1")
    A("s_cbranch_scc1 K2_C1")
    A(f"s_cmp_eq_u32 s{sPh}, 3")
    A("s_cbranch_scc1 K2_C3")
    if opt.prio: A("s_setprio 2")
    for d in range(16):
        A(f"v_cvt_pk_bf16_f32 v{vP0+d}, v{vAcc+2*d}, v{vAcc+2*d+1}")
    A("s_branch K2_CEND")
    for q, perm in ((1, "[1,0,3,2]"), (2, "[2,3,0,1]"), (3, "[3,2,1,0]")):
        A(f"K2_C{q}:")
        if opt.prio: A(f"s_setprio {max(0, (2 - q) if opt.prio == 1 else (3 - q))}")
        op = "v_mul_f32_dpp" if q == 1 else "v_fmac_f32_dpp"
        for r in range(32):
            A(f"{op} v{vH+r}, v{vAcc+r}, v{vSgn} quad_perm:{perm} row_mask:0xf bank_mask:0xf")
        if q != 3: A("s_branch K2_CK")
    A("K2_CK:")
    for d in range(16):
        A(f"v_cvt_pk_bf16_f32 v{vAcc+d}, v{vAcc+2*d}, v{vAcc+2*d+1}")
    for d in range(16):
        A(f"v_cndmask_b32_dpp v{vK+d}, v{vAcc+d}, v{vK+d}, vcc quad_perm:[0,0,0,0] row_mask:0xf bank_mask:0xf")
    A("K2_CEND:")
    A.stamp_dyn("fl", 4, sPh)
    A(f"s_add_u32 s{sPh}, s{sPh}, 1")
    A(f"s_cmp_lt_u32 s{sPh}, 4")
    if opt.pbar:
        A("s_cbranch_scc0 K2_PDONE")
        A("s_barrier")
        A("s_branch K2_PHASE")
        A("K2_PDONE:")
    else:
        A("s_cbranch_scc1 K2_PHASE")

    if opt.tbar == 1: A("s_barrier")
    A.stamp_both("a3")
    vCa = vAcc
    vCb = (80, 2)
    vWa, vWb = 18, 19
    A(f"v_subrev_u32 v{vWa}, s{sM0}, v{vA0}")
    A(f"v_add_u32 v{vWa}, {L_WST}, v{vWa}")
    A(f"v_xor_b32 v{vWb}, 64, v{vWa}")
    for d in range(16):
        A(f"v_cvt_pk_bf16_f32 v{vH+d}, v{vH+2*d}, v{vH+2*d+1}")
    sets = [(0, vP0, 0), (2, vP0, 1), (1, vH, 0), (4, vH, 1), (3, vK, 1)]
    steps = []
    for ty, X, ch in sets:
        for z in range(4):
            for C in range(2):
                steps.append((ty, X, ch, z, C))
    bufs = [vA, vA + 4, vB]
    def wread(i):
        ty, X, ch, z, C = steps[i]
        bf = bufs[i % 3]
        off = ty * 8192 + z * 2048
        A(f"ds_read_b64_tr_b16 v[{bf}:{bf+1}], v{vWa if C == 0 else vWb} offset:{off}")
        A(f"ds_read_b64_tr_b16 v[{bf+2}:{bf+3}], v{vWa if C == 0 else vWb} offset:{off+1024}")
    A("s_waitcnt lgkmcnt(0)")
    wread(0); wread(1)
    started = set()
    for i, (ty, X, ch, z, C) in enumerate(steps):
        if i + 2 < len(steps):
            wread(i + 2)
            A("s_waitcnt lgkmcnt(4)")
        else:
            A(f"s_waitcnt lgkmcnt({2 * (len(steps) - 1 - i)})")
        D = (vCa + 16 * C) if ch == 0 else vCb[C]
        bf = bufs[i % 3]
        cin = f"v[{D}:{D+15}]" if (ch, C) in started else "0"
        started.add((ch, C))
        A(f"v_mfma_f32_32x32x16_bf16 v[{D}:{D+15}], v[{bf}:{bf+3}], v[{X+4*z}:{X+4*z+3}], {cin}")
    t = vP0
    A(f"v_and_b32 v{t}, 63, v0")
    A(f"v_and_b32 v{t+1}, 3, v{t}")
    A(f"v_cmp_eq_u32 vcc, 0, v{t+1}")
    A(f"v_and_b32 v{t+1}, 31, v{t}")
    A(f"v_lshrrev_b32 v{t+2}, 5, v{t}")
    A(f"v_and_b32 v{t+3}, 7, v{t}")
    A(f"v_xor_b32 v{t+2}, v{t+2}, v{t+3}")
    A(f"v_lshlrev_b32 v{t+2}, 4, v{t+2}")
    A(f"v_lshl_add_u32 v{t+2}, v{t+1}, 7, v{t+2}")
    A(f"v_add_u32 v{t+2}, s{sM0}, v{t+2}")
    A(f"v_xor_b32 v{t+3}, 32, v{t+2}")
    A(f"v_xor_b32 v{t+4}, 64, v{t+2}")
    A(f"v_xor_b32 v{t+5}, 96, v{t+2}")
    A(f"v_lshrrev_b32 v{t+6}, 3, v{t}")
    A(f"v_and_b32 v{t+7}, 1, v{t+6}")
    A(f"v_lshlrev_b32 v{t+7}, 2, v{t+7}")
    A(f"v_xor_b32 v{t+7}, v{t+7}, v{t}")
    A(f"v_and_b32 v{t+7}, 7, v{t+7}")
    A(f"v_lshlrev_b32 v{t+7}, 4, v{t+7}")
    A(f"v_lshl_add_u32 v{t+7}, v{t+6}, 9, v{t+7}")
    A(f"v_add_u32 v{t+7}, s{sM0}, v{t+7}")
    A(f"v_xor_b32 v{t+8}, 16, v{t+7}")
    A(f"v_xor_b32 v{t+9}, 32, v{t+7}")
    A(f"v_xor_b32 v{t+10}, 48, v{t+7}")
    A(f"v_and_b32 v{t+11}, 7, v{t}")
    A(f"v_lshlrev_b32 v{t+11}, 4, v{t+11}")
    A(f"v_lshl_add_u32 v{t+11}, v{t+6}, 9, v{t+11}")
    for C in range(2):
        for r in range(16):
            A(f"v_cndmask_b32 v{vCa+16*C+r}, v{vCb[C]+r}, v{vCa+16*C+r}, vcc")
    if opt.tbar == 2: A("s_barrier")
    A(f"s_cmp_eq_u32 s{sMode}, 0")
    A("s_cbranch_scc1 K2_EPI")
    A(f"s_lshl_b32 s{sT0}, s2, 4")
    A(f"s_add_u32 s{sT0}, s{sT0}, s{sW}")
    A(f"s_lshl_b32 s{sT0}, s{sT0}, 13")
    A(f"s_add_u32 s{sT0}, s{sT0}, {WS_PART}")
    A(f"v_lshl_add_u32 v{t+12}, v{t}, 7, s{sT0}")
    A(f"s_cmp_eq_u32 s{sRound}, 0")
    A("s_cbranch_scc1 K2_NOACC")
    for j in range(8):
        A(f"global_load_dwordx4 v[{vH+4*j}:{vH+4*j+3}], v{t+12}, s[{sWS}:{sWS+1}] offset:{16*j} sc1")
    A("s_waitcnt vmcnt(0)")
    for r in range(32):
        A(f"v_add_f32 v{vCa+r}, v{vCa+r}, v{vH+r}")
    A("K2_NOACC:")
    A(f"s_add_u32 s{sT0}, s{sRound}, 1")
    A(f"s_cmp_ge_u32 s{sT0}, s{sNR}")
    A("s_cbranch_scc1 K2_EPI")
    for j in range(8):
        A(f"global_store_dwordx4 v{t+12}, v[{vCa+4*j}:{vCa+4*j+3}], s[{sWS}:{sWS+1}] offset:{16*j} sc1")
    A("s_branch K2_RNEXT")
    A("K2_RIDLE:")
    if opt.pbar:
        A("s_barrier\ns_barrier\ns_barrier")
    if opt.tbar: A("s_barrier")
    A("K2_RNEXT:")
    A(f"s_cmp_eq_u32 s{sMode}, 0")
    A("s_cbranch_scc1 K2_DONE")
    A(f"s_add_u32 s{sRound}, s{sRound}, 1")
    A(f"s_cmp_ge_u32 s{sRound}, s{sNR}")
    A("s_cbranch_scc1 K2_DONE")
    A(f"s_and_b32 s{sK}, s{sRound}, 3")
    A(f"s_lshr_b32 s{sJB}, s{sRound}, 2")
    A(f"s_lshl_b32 s{sJB}, s{sJB}, 5")
    A("s_waitcnt vmcnt(0) lgkmcnt(0)")
    A("s_barrier")
    A("s_branch K2_ROUND")
    A("K2_EPI:")
    A.stamp("s2f")
    for d in range(16):
        A(f"v_cvt_pk_bf16_f32 v{vCa+d}, v{vCa+2*d}, v{vCa+2*d+1}")
    A(f"s_mul_i32 s{sT0}, s{sB}, {BN*512}")
    A(f"s_mul_i32 s{sT1}, s{sW}, {GN*512}")
    A(f"s_add_u32 s{sT0}, s{sT0}, s{sT1}")
    for j in range(4):
        A(f"v_permlane32_swap_b32 v{vCa+4*j}, v{vCa+4*j+2}")
        A(f"v_permlane32_swap_b32 v{vCa+4*j+1}, v{vCa+4*j+3}")
        A(f"ds_write_b128 v{t+2+j}, v[{vCa+4*j}:{vCa+4*j+3}]")
    A(f"s_mov_b32 s{sT1}, 0xbfb8aa3b")
    A(f"s_mov_b32 s{sGB}, 0xffff0000")
    A("s_mov_b32 exec_hi, 0x00ffffff")
    d0 = vH; g = vH + 16; tt = vH + 24
    A("s_waitcnt lgkmcnt(0)")
    for u in range(4):
        A(f"ds_read_b128 v[{d0+4*u}:{d0+4*u+3}], v{t+7+u} offset:{128*u}")
    A("s_waitcnt lgkmcnt(3)")
    A(f"buffer_store_dwordx4 v[{d0}:{d0+3}], v{t+11}, s[{sOUT}:{sOUT+3}], s{sT0} offen {opt.k2st}")
    for j in range(4):
        A(f"v_lshlrev_b32 v{g+2*j}, 16, v{d0+j}")
        A(f"v_and_b32 v{g+2*j+1}, s{sGB}, v{d0+j}")
    for j in range(8): A(f"v_mul_f32 v{g+j}, s{sT1}, v{g+j}")
    for j in range(8): A(f"v_exp_f32 v{g+j}, v{g+j}")
    for j in range(8): A(f"v_add_f32 v{g+j}, 1.0, v{g+j}")
    for j in range(8): A(f"v_rcp_f32 v{g+j}, v{g+j}")
    for u in range(1, 4):
        d = d0 + 4 * u
        A(f"s_waitcnt lgkmcnt({3-u})")
        for j in range(4):
            A(f"v_lshlrev_b32 v{tt+2*j}, 16, v{d+j}")
            A(f"v_and_b32 v{tt+2*j+1}, s{sGB}, v{d+j}")
        for j in range(4):
            A(f"v_pk_mul_f32 v[{tt+2*j}:{tt+2*j+1}], v[{tt+2*j}:{tt+2*j+1}], v[{g+2*j}:{g+2*j+1}]")
        for j in range(4):
            A(f"v_cvt_pk_bf16_f32 v{d+j}, v{tt+2*j}, v{tt+2*j+1}")
        A(f"buffer_store_dwordx4 v[{d}:{d+3}], v{t+11}, s[{sOUT}:{sOUT+3}], s{sT0} offen offset:{128*u} {opt.k2st}")
    A("K2_DONE:")
    A.stamp("st")
    A.dump_stamps(sWS, 16, vK)
    A("K2_END:")
    A("s_endpgm")
    if opt.stamps: print("stamps:", A.names)
    kd = f"""
.amdhsa_kernel {k}
  .amdhsa_next_free_vgpr 128
  .amdhsa_next_free_sgpr {102 if opt.stamps else 72}
  .amdhsa_accum_offset 128
  .amdhsa_group_segment_fixed_size 0
  .amdhsa_kernarg_size 96
  .amdhsa_user_sgpr_count 2
  .amdhsa_user_sgpr_kernarg_segment_ptr 1
  .amdhsa_system_sgpr_workgroup_id_x 1
  .amdhsa_float_denorm_mode_32 3
.end_amdhsa_kernel
"""
    return A.text(), kd


def main():
    ap = argparse.ArgumentParser()
    ap.add_argument("-o", default=f"cdna_kernels/{NAME}.s")
    ap.add_argument("--stamps", type=int, default=0)
    ap.add_argument("--k2st", default="sc1")
    ap.add_argument("--slp", type=int, default=2)
    ap.add_argument("--tbar", type=int, default=0)
    ap.add_argument("--prio", type=int, default=0)
    ap.add_argument("--pbar", type=int, default=0)
    ap.add_argument("--aslist", type=int, default=1)
    opt = ap.parse_args()
    hdr = open(f"cdna_kernels/{NAME}.s.ref").read().split("\n")
    head = [l for l in hdr if l.startswith(";") and "@launch" not in l and "Override launch" not in l and "grid=ceil" not in l]
    t2, kd2 = gen(opt)
    out = "\n".join(head) + "\n"
    if opt.aslist:
        out += f"; @launch kernel={NAME}_kernel grid=({NB},1,1) block=(1024,1,1) lds={K2_LDS}\n"
    else:
        out += f"; @launch grid=({NB},1,1) block=(1024,1,1) lds={K2_LDS}\n"
    out += '.amdgcn_target "amdgcn-amd-amdhsa--gfx950"\n.text\n' + t2
    out += '.section .rodata,"a"\n.p2align 6\n' + kd2
    open(opt.o, "w").write(out)


if __name__ == "__main__":
    main()
```

```python
import argparse

NAME = "standalone__tensor_product_equiv_equiformer__graph"
N = 25000
CH = 3200
NCHUNK = 250
BN = 98
NB = 256
NG = 14
GN = 7
CAP = 3776
MINU = 4
SPIN = 400000

WS_SEG = 0x930000
WS_DBG = 0xA00000

L_COEF = 0
L_META = CAP * 8
L_HIST = L_META + CAP * 4
L_BASE = L_HIST + 1024
L_STG = L_BASE + 1024
L_WST = L_STG + NG * 4096
L_FLAG = L_WST + 40960
L_TAG = L_FLAG + 16
K2_LDS = L_FLAG + 64
WS_PART = 0x1000000
assert L_STG % 256 == 0 and L_WST % 256 == 0 and K2_LDS <= 163840

K1_HIST = 0
K1_BASE = 1024
K1_REC = 4096


class Asm:
    def __init__(self, stamps=False, sbase=72):
        self.l = []; self.stamps = stamps; self.ns = 0; self.sbase = sbase; self.names = []
    def stamp(self, name):
        if not self.stamps: return
        if self.sbase + 2 * self.ns + 1 > 101: return
        r = self.sbase + 2 * self.ns
        self(f"s_memrealtime s[{r}:{r+1}]" if self.stamps == 2 else f"s_memtime s[{r}:{r+1}]")
        self.names.append(name); self.ns += 1
    def stamp_both(self, name):
        self.stamp(name)
        if self.stamps == 1:
            self.stamps = 2; self.stamp(name + "rt"); self.stamps = 1
    def stamp_dyn(self, name, n, sidx):
        if not self.stamps: return
        lab = f"SD_{self.ns}"
        for i in range(n):
            self(f"s_cmp_lg_u32 s{sidx}, {i}")
            self(f"s_cbranch_scc1 {lab}_{i}")
            self.stamp(f"{name}{i}")
            self(f"{lab}_{i}:")
    def dump_stamps(self, ws, nwaves, vt):
        if not self.stamps: return
        self("s_waitcnt vmcnt(0) lgkmcnt(0)")
        self("s_mov_b64 exec, -1")
        self(f"v_mov_b32 v{vt}, 0")
        for i in range(self.ns):
            self(f"v_writelane_b32 v{vt}, s{self.sbase + 2*i}, {i}")
        self(f"v_lshrrev_b32 v{vt+1}, 6, v0")
        self(f"s_mul_i32 s{self.sbase}, s2, {nwaves}")
        self(f"v_add_u32 v{vt+1}, s{self.sbase}, v{vt+1}")
        self(f"v_lshlrev_b32 v{vt+1}, 6, v{vt+1}")
        self(f"v_and_b32 v{vt+2}, 63, v0")
        self(f"v_lshl_add_u32 v{vt+1}, v{vt+2}, 2, v{vt+1}")
        self(f"v_add_u32 v{vt+1}, {WS_DBG}, v{vt+1}")
        self(f"s_mov_b64 exec, 0xffff")
        self(f"global_store_dword v{vt+1}, v{vt}, s[{ws}:{ws+1}]")
    def __call__(self, s):
        for ln in s.strip("\n").split("\n"):
            self.l.append("    " + ln.strip() if not ln.strip().endswith(":") else ln.strip())
    def text(self):
        return "\n".join(self.l) + "\n"


def wave_scan(A, v):
    for sh in (1, 2, 4, 8):
        A("s_nop 1")
        A(f"v_add_u32_dpp v{v}, v{v}, v{v} row_shr:{sh} row_mask:0xf bank_mask:0xf bound_ctrl:0")
    A("s_nop 1")
    A(f"v_add_u32_dpp v{v}, v{v}, v{v} row_bcast:15 row_mask:0xa bank_mask:0xf")
    A("s_nop 1")
    A(f"v_add_u32_dpp v{v}, v{v}, v{v} row_bcast:31 row_mask:0xc bank_mask:0xf")


def srd(A, d, lo, hi, nbytes):
    A(f"s_mov_b32 s{d}, s{lo}")
    A(f"s_and_b32 s{d+1}, s{hi}, 0xffff")
    A(f"s_mov_b32 s{d+2}, {nbytes}")
    A(f"s_mov_b32 s{d+3}, 0x00020000")


def emit_tag_poll(A, lab):
    A("s_mov_b32 s36, 0")
    A("v_mov_b32 v62, 0")
    A("global_load_dword v63, v62, s[38:39]")
    A(f"s_branch {lab}_W")
    A(f"{lab}_L:")
    A("global_load_dword v63, v62, s[38:39] sc1")
    A(f"{lab}_W:")
    A("s_waitcnt vmcnt(0)")
    A("v_readfirstlane_b32 s37, v63")
    A("s_add_u32 s36, s36, 1")
    A(f"s_cmp_gt_u32 s36, {SPIN}")
    A("s_cbranch_scc1 K2_END")
    A("s_cmp_lg_u32 s37, 0")
    A(f"s_cbranch_scc1 {lab}_D")
    A("s_sleep 1")
    A(f"s_branch {lab}_L")
    A(f"{lab}_D:")
    A(f"v_mov_b32 v62, {L_TAG}")
    A("ds_write_b32 v62, v63")


def emit_scan(A):
    A(f"ds_read_b128 v[8:11], v1 offset:{K1_HIST}")
    A("s_waitcnt lgkmcnt(0)")
    A("v_add_u32 v48, v8, v9")
    A("v_add_u32 v49, v48, v10")
    A("v_add_u32 v50, v49, v11")
    A("v_mov_b32 v51, v50")
    wave_scan(A, 51)
    A("v_sub_u32 v52, v51, v50")
    A("v_add_u32 v53, v52, v8")
    A("v_add_u32 v54, v52, v48")
    A("v_add_u32 v55, v52, v49")


def w_load(A):
    W = 64
    A(f"v_lshlrev_b32 v{W+20}, 4, v0")
    A(f"v_lshrrev_b32 v{W+21}, 3, v0")
    A(f"v_lshlrev_b32 v{W+21}, 1, v{W+21}")
    A(f"v_and_b32 v{W+22}, 0x1ff0, v{W+20}")
    A(f"v_add_u32 v{W+22}, 16384, v{W+22}")
    A(f"v_and_b32 v{W+23}, 0x7e, v{W+21}")
    A(f"global_load_dwordx4 v[{W}:{W+3}], v{W+20}, s[66:67]")
    A(f"global_load_dwordx4 v[{W+4}:{W+7}], v{W+20}, s[68:69]")
    A(f"global_load_dwordx4 v[{W+8}:{W+11}], v{W+22}, s[68:69]")
    A(f"global_load_ushort v{W+12}, v{W+21}, s[64:65]")
    A(f"global_load_ushort v{W+13}, v{W+21}, s[64:65] offset:256")
    A(f"global_load_ushort v{W+14}, v{W+23}, s[64:65] offset:512")
    A(f"v_bfe_u32 v{W+16}, v0, 4, 1")
    A(f"v_lshlrev_b32 v{W+16}, 6, v{W+16}")
    A(f"v_xor_b32 v{W+16}, v{W+16}, v{W+20}")
    A(f"v_add_u32 v{W+16}, {L_WST}, v{W+16}")


def w_stage(A, lab):
    W = 64
    A("s_mov_b32 s7, 0xffff0000")
    for c in range(3):
        if c == 2:
            A("s_cmp_ge_u32 s6, 512")
            A(f"s_cbranch_scc1 {lab}")
        A(f"v_lshlrev_b32 v{W+12+c}, 16, v{W+12+c}")
        for d in range(4):
            r = W + 4 * c + d
            A(f"v_lshlrev_b32 v{W+18}, 16, v{r}")
            A(f"v_and_b32 v{W+19}, s7, v{r}")
            A(f"v_mul_f32 v{W+18}, v{W+12+c}, v{W+18}")
            A(f"v_mul_f32 v{W+19}, v{W+12+c}, v{W+19}")
            A(f"v_cvt_pk_bf16_f32 v{r}, v{W+18}, v{W+19}")
        A(f"ds_write_b128 v{W+16}, v[{W+4*c}:{W+4*c+3}] offset:{16384*c}")
    A(f"{lab}:")


def emit_front(A, opt):
    A("s_load_dwordx8 s[8:15], s[0:1], 0x0")
    A("s_load_dwordx2 s[16:17], s[0:1], 0x20")
    A("s_load_dwordx2 s[26:27], s[0:1], 0x58")
    A("s_load_dwordx2 s[38:39], s[0:1], 0x50")
    A("v_readfirstlane_b32 s6, v0")
    A("v_lshlrev_b32 v1, 2, v0")
    A("v_mov_b32 v2, 0")
    A(f"s_cmp_ge_u32 s2, {NCHUNK}")
    A("s_cbranch_scc1 K1_IDLE")
    A("ds_write_b32 v1, v2")
    A("s_cmp_ge_u32 s6, 832")
    A("s_cbranch_scc1 K1_AUX")
    A(f"s_mul_i32 s3, s2, {CH*4}")
    A("v_lshlrev_b32 v3, 4, v0")
    A("v_add_u32 v3, s3, v3")
    A("v_lshrrev_b32 v4, 1, v3")
    A("v_add_u32 v5, v3, v4")
    A(f"v_cmp_gt_u32 vcc, {CH//4}, v0")
    A("s_waitcnt lgkmcnt(0)")
    A("s_and_saveexec_b64 s[28:29], vcc")
    A("s_mov_b64 s[30:31], exec")
    A("global_load_dwordx4 v[8:11], v3, s[16:17] nt")
    if opt.fst: A.stamp("f_iss")
    A("s_barrier")
    if opt.fst: A.stamp("f_b1")
    A("global_load_dwordx4 v[12:15], v3, s[14:15] nt")
    A("global_load_dwordx2 v[16:17], v4, s[12:13] nt")
    A("global_load_dwordx4 v[18:21], v5, s[10:11] nt")
    A("global_load_dwordx2 v[22:23], v5, s[10:11] offset:16 nt")
    A("s_mov_b32 s4, 42800")
    A("s_movk_i32 s5, 147")
    A("v_mov_b32 v60, 1")
    if opt.fst: A.stamp("f_iss2")
    A("s_waitcnt vmcnt(4)")
    if opt.fst: A.stamp("f_dst")
    for i in range(4):
        A(f"v_mul_u32_u24 v{24+i}, s4, v{8+i}")
        A(f"v_lshrrev_b32 v{24+i}, 22, v{24+i}")
        A(f"v_lshlrev_b32 v{28+i}, 2, v{24+i}")
        A(f"ds_add_rtn_u32 v{32+i}, v{28+i}, v60")
    for i in range(4):
        A(f"v_mul_u32_u24 v{36+i}, {BN}, v{24+i}")
        A(f"v_sub_u32 v{36+i}, v{8+i}, v{36+i}")
        A(f"v_mul_u32_u24 v{40+i}, s5, v{36+i}")
        A(f"v_lshrrev_b32 v{40+i}, 10, v{40+i}")
        A(f"v_mul_u32_u24 v{44+i}, {GN}, v{40+i}")
        A(f"v_sub_u32 v{44+i}, v{36+i}, v{44+i}")
        A(f"v_lshlrev_b32 v{44+i}, 18, v{44+i}")
        A(f"v_lshl_or_b32 v{44+i}, v{40+i}, 28, v{44+i}")
    A("s_mov_b64 exec, -1")
    A("v_and_b32 v1, 63, v0")
    A("v_lshlrev_b32 v1, 4, v1")
    A("s_waitcnt lgkmcnt(0)")
    A("s_barrier")
    if opt.fst: A.stamp("f_b2")
    emit_scan(A)
    A(f"ds_write_b128 v1, v[52:55] offset:{K1_BASE}")
    A("s_mov_b64 exec, s[30:31]")
    for i in range(4):
        A(f"ds_read_b32 v{24+i}, v{28+i} offset:{K1_BASE}")
    for i in range(4):
        A(f"s_waitcnt lgkmcnt({3-i})")
        A(f"v_add_u32 v{24+i}, v{24+i}, v{32+i}")
        A(f"v_mul_u32_u24 v{24+i}, 12, v{24+i}")
        A(f"v_add_u32 v{24+i}, {K1_REC}, v{24+i}")
    A("s_waitcnt vmcnt(3)")
    if opt.fst: A.stamp("f_src")
    for i in range(4):
        A(f"v_mul_u32_u24 v{36+i}, 41, v{12+i}")
        A(f"v_lshrrev_b32 v{36+i}, {16+opt.rsh}, v{36+i}")
        A(f"v_lshl_or_b32 v{36+i}, v{36+i}, 24, v{12+i}")
        A(f"v_or_b32 v{36+i}, v{44+i}, v{36+i}")
        A(f"ds_write_b32 v{24+i}, v{36+i} offset:8")
    A("s_waitcnt vmcnt(0)")
    if opt.fst: A.stamp("f_all")
    A("s_mov_b32 s7, 0xffff0000")
    A("v_lshlrev_b32 v40, 16, v16")
    A("v_and_b32 v41, s7, v16")
    A("v_lshlrev_b32 v42, 16, v17")
    A("v_and_b32 v43, s7, v17")
    for i in range(4):
        for j in range(3):
            h = 3 * i + j
            reg = 18 + h // 2
            A(f"v_lshlrev_b32 v{44+j}, 16, v{reg}" if h % 2 == 0 else f"v_and_b32 v{44+j}, s7, v{reg}")
            A(f"v_mul_f32 v{44+j}, v{40+i}, v{44+j}")
        A(f"v_cvt_pk_bf16_f32 v{48+2*i}, v{40+i}, v44")
        A(f"v_cvt_pk_bf16_f32 v{49+2*i}, v45, v46")
        A(f"ds_write2_b32 v{24+i}, v{48+2*i}, v{49+2*i} offset1:1")
    A("s_mov_b64 exec, -1")
    A("s_branch K1_JOIN")

    A("K1_AUX:")
    A("v_and_b32 v1, 63, v0")
    A("v_lshlrev_b32 v1, 4, v1")
    A("s_waitcnt lgkmcnt(0)")
    A("s_cmp_lg_u32 s6, 960")
    A("s_cbranch_scc1 K1_AUX1")
    A("s_cmp_lg_u32 s2, 0")
    A("s_cbranch_scc1 K1_AUX1")
    A("s_memrealtime s[36:37]")
    A("s_waitcnt lgkmcnt(0)")
    A("s_or_b32 s36, s36, 1")
    A("v_mov_b32 v63, s36")
    A("s_mov_b64 exec, 1")
    A("global_store_dword v2, v63, s[38:39] sc1")
    A("s_mov_b64 exec, -1")
    A("K1_AUX1:")
    A("s_barrier")
    A("s_barrier")
    A("s_cmp_lg_u32 s6, 960")
    A("s_cbranch_scc1 K1_AUX2")
    emit_tag_poll(A, "K1_TP")
    A("s_branch K1_JOIN")
    A("K1_AUX2:")
    A("s_cmp_lg_u32 s6, 832")
    A("s_cbranch_scc1 K1_JOIN")
    emit_scan(A)
    for i in range(4):
        A(f"v_lshl_or_b32 v{56+i}, v{8+i}, 12, v{52+i}")
    A("K1_JOIN:")
    if not opt.wlate: w_load(A)
    A("v_lshlrev_b32 v6, 4, v0")
    A(f"s_mul_i32 s3, s2, {CH*12}")
    A("v_add_u32 v2, s3, v6")
    A("v_add_u32 v3, 16384, v2")
    A("v_add_u32 v4, 32768, v2")
    A(f"v_cmp_gt_u32 vcc, {CH*12//16 - 2048}, v0")
    A("s_waitcnt lgkmcnt(0)")
    A("s_barrier")
    A.stamp("bar3")
    A(f"ds_read_b128 v[8:11], v6 offset:{K1_REC}")
    A(f"ds_read_b128 v[12:15], v6 offset:{K1_REC + 16384}")
    A(f"ds_read_b128 v[16:19], v6 offset:{K1_REC + 32768}")
    A("s_waitcnt lgkmcnt(2)")
    A("global_store_dwordx4 v2, v[8:11], s[26:27] sc1")
    A("s_waitcnt lgkmcnt(1)")
    A("global_store_dwordx4 v3, v[12:15], s[26:27] sc1")
    A("s_and_saveexec_b64 s[28:29], vcc")
    A("s_cbranch_execz K1_FIN")
    A("s_waitcnt lgkmcnt(0)")
    A("global_store_dwordx4 v4, v[16:19], s[26:27] sc1")
    A("K1_FIN:")
    A("s_mov_b64 exec, -1")
    if not opt.wlate:
        A("s_waitcnt vmcnt(2)")
        w_stage(A, "K1_WS1")
    A("s_waitcnt vmcnt(0) lgkmcnt(0)")
    A("s_barrier")
    A.stamp("pub")
    A("s_cmp_lg_u32 s6, 832")
    A("s_cbranch_scc1 K1_DONE")
    A(f"v_mov_b32 v62, {L_TAG}")
    A("ds_read_b32 v49, v62")
    A("s_lshl_b32 s3, s2, 11")
    A(f"s_add_u32 s3, s3, {WS_SEG}")
    A("v_lshl_add_u32 v2, v1, 1, s3")
    A("s_waitcnt lgkmcnt(0)")
    A("v_lshlrev_b32 v62, 23, v49")
    A("v_and_b32 v62, 0xff000000, v62")
    A("v_or_b32 v48, v62, v56")
    A("v_or_b32 v50, v62, v57")
    A("v_or_b32 v52, v62, v58")
    A("v_or_b32 v54, v62, v59")
    A("v_mov_b32 v51, v49")
    A("v_mov_b32 v53, v49")
    A("v_mov_b32 v55, v49")
    A("global_store_dwordx4 v2, v[48:51], s[26:27] sc1")
    A("global_store_dwordx4 v2, v[52:55], s[26:27] offset:16 sc1")
    A("s_branch K1_DONE")
    A("K1_IDLE:")
    A("s_waitcnt lgkmcnt(0)")
    if not opt.wlate:
        w_load(A)
        A("s_waitcnt vmcnt(0)")
        w_stage(A, "K1_WS2")
    A("s_cmp_lg_u32 s6, 960")
    A("s_cbranch_scc1 K1_IDLE1")
    A("s_mov_b32 s36, 0")
    A("v_mov_b32 v62, 0")
    A("s_branch K1_TW_L")
    emit_tag_poll(A, "K1_TW")
    A("K1_IDLE1:")
    A("s_waitcnt lgkmcnt(0)")
    A("s_barrier")
    A("K1_DONE:")
    if opt.wlate:
        w_load(A)
        A("s_waitcnt vmcnt(0)")
        w_stage(A, "K1_WS1")


def gen(opt):
    A = Asm(opt.stamps, 72)
    k = f"{NAME}_kernel"
    sX, sREC, sOUT = 4, 8, 12
    sW, sNU, sI, sQn, sM0, s512, sB, sPh = range(16, 24)
    sT0, sT1, sGB, sTag2 = 26, 27, 28, 29
    sMode, sRound, sNR, sJB, sK, sCM = 30, 31, 32, 33, 34, 35
    sTag = 39
    sEX = 40
    sWS = 56
    sP = 58
    sWP = 64
    (vDOff, vMI, vMC, vMI0, vMC0, vB0, vB1, vBL0, vA0, vA1, vMy, vSgn, vJunk) = range(1, 14)
    vSrc = 14
    vNl = 16
    vA = 20
    vB = 28
    vAcc = 32
    vH = 64
    vK = 96
    vP0 = 112
    vT = 96; vS = 104; vLane = 112; vR = 114

    A(f".globl {k}\n.p2align 8\n.type {k},@function\n{k}:")
    A(f"s_cmp_ge_u32 s2, {NB}")
    A("s_cbranch_scc1 K2_END")
    A.stamp("entry")
    A(f"s_load_dwordx2 s[{sWS}:{sWS+1}], s[0:1], 0x58")
    A(f"s_load_dwordx2 s[{sP}:{sP+1}], s[0:1], 0x0")
    A(f"s_load_dwordx2 s[{sP+2}:{sP+3}], s[0:1], 0x48")
    A(f"s_load_dwordx2 s[{sWP}:{sWP+1}], s[0:1], 0x28")
    A(f"s_load_dwordx2 s[{sWP+2}:{sWP+3}], s[0:1], 0x30")
    A(f"s_load_dwordx2 s[{sWP+4}:{sWP+5}], s[0:1], 0x38")
    emit_front(A, opt)
    A(f"v_mov_b32 v{vT+1}, {L_TAG}")
    A(f"ds_read_b32 v{vT+1}, v{vT+1}")
    A(f"s_lshr_b32 s{sW}, s6, 6")
    A(f"s_and_b32 s{sT0}, s2, 7")
    A(f"s_lshr_b32 s{sT1}, s2, 3")
    A(f"s_lshl_b32 s{sB}, s{sT0}, 5")
    A(f"s_add_u32 s{sB}, s{sB}, s{sT1}")
    for r in (sMode, sRound, sJB, sK, sCM):
        A(f"s_mov_b32 s{r}, 0")
    A(f"s_movk_i32 s{s512}, 512")
    srd(A, sX, sP, sP + 1, N * 512)
    srd(A, sOUT, sP + 2, sP + 3, N * 512)
    srd(A, sREC, sWS, sWS + 1, NCHUNK * CH * 12)
    A("s_waitcnt lgkmcnt(0)")
    A(f"v_readfirstlane_b32 s{sTag}, v{vT+1}")
    A("s_nop 3")
    A(f"s_lshl_b32 s{sTag2}, s{sTag}, 23")
    A(f"s_and_b32 s{sTag2}, s{sTag2}, 0xff000000")

    A("K2_ROUND:")
    A(f"v_lshlrev_b32 v{vT+2}, 4, v0")
    A(f"v_and_b32 v{vLane}, 63, v0")
    A(f"s_lshl_b32 s{sT0}, s{sB}, 3")
    A(f"s_add_u32 s{sT0}, s{sT0}, {WS_SEG}")
    A(f"v_and_b32 v{vT}, 0x3f0, v0")
    A(f"v_lshl_add_u32 v{vSrc}, v{vT}, 9, s{sT0}")
    A(f"v_add_u32 v{vSrc+1}, 4096, v{vSrc}")
    A(f"v_cmp_gt_u32 vcc, {CAP*4//16}, v0")
    A(f"v_mov_b32 v{vT+3}, 0")
    A(f"v_mov_b32 v{vT+4}, {L_FLAG}")
    for i in range(4):
        A(f"v_cndmask_b32 v{vA+i}, 0, -1, vcc")
    A(f"ds_write_b128 v{vT+2}, v[{vA}:{vA+3}] offset:{L_META}")
    A(f"ds_write_b32 v{vT+4}, v{vT+3}")
    A(f"v_and_b32 v{vA}, 7, v{vLane}")
    A(f"v_bfe_u32 v{vA+1}, v{vLane}, 4, 1")
    A(f"v_lshlrev_b32 v{vA+2}, 2, v{vA+1}")
    A(f"v_xor_b32 v{vA}, v{vA}, v{vA+2}")
    A(f"v_lshlrev_b32 v{vDOff}, 4, v{vA}")
    A(f"v_lshrrev_b32 v{vA}, 5, v{vLane}")
    A(f"v_bfe_u32 v{vA+2}, v{vLane}, 2, 2")
    A(f"v_lshl_add_u32 v{vA+3}, v{vA}, 2, v{vA+2}")
    A(f"v_and_b32 v{vMI0}, 56, v{vLane}")
    A(f"v_lshlrev_b32 v{vMC0}, 3, v{vA+3}")
    A(f"v_lshlrev_b32 v{vBL0}, 4, v{vA+3}")
    A(f"v_and_b32 v{vA+4}, 3, v{vLane}")
    A(f"v_lshl_add_u32 v{vMy}, v{vA+1}, 2, v{vA+4}")
    A(f"v_lshlrev_b32 v{vMy}, 2, v{vMy}")
    A(f"s_lshl_b32 s{sM0}, s{sW}, 12")
    A(f"s_add_u32 s{sM0}, s{sM0}, {L_STG}")
    A(f"v_lshlrev_b32 v{vA0}, 7, v{vA+3}")
    A(f"v_bfe_u32 v{vA+5}, v{vLane}, 3, 1")
    A(f"v_lshl_add_u32 v{vA0}, v{vA+5}, 6, v{vA0}")
    A(f"v_lshl_add_u32 v{vA0}, v{vA+1}, 5, v{vA0}")
    A(f"v_lshl_add_u32 v{vA0}, v{vA+4}, 3, v{vA0}")
    A(f"v_add_u32 v{vA0}, s{sM0}, v{vA0}")
    A(f"v_xor_b32 v{vA1}, 64, v{vA0}")
    A(f"v_and_b32 v{vA}, 15, v{vLane}")
    A(f"v_lshrrev_b32 v{vT}, 2, v{vT}")
    A(f"v_mul_u32_u24 v{vT+1}, {CH}, v{vT}")
    A(f"v_add_u32 v{vT+1}, v{vT+1}, v{vA}")
    A(f"v_add_u32 v{vT+1}, s{sJB}, v{vT+1}")
    A(f"v_add_u32 v{vT+7}, s{sJB}, v{vA}")
    A(f"v_cmp_gt_u32 vcc, {NCHUNK-2}, v{vT}")
    A(f"v_lshrrev_b32 v{vA+3}, 2, v{vT}")
    A(f"v_cmp_eq_u32 s[{sP+4}:{sP+5}], 62, v{vA+3}")
    for r in range(4):
        A(f"v_mov_b32 v{vS+r}, 0")
    A(f"v_cndmask_b32 v{vSrc+1}, v{vSrc}, v{vSrc+1}, vcc")
    A(f"s_or_b64 s[{sEX}:{sEX+1}], vcc, s[{sP+4}:{sP+5}]")
    A(f"s_mov_b64 s[{sEX+2}:{sEX+3}], vcc")
    A(f"s_mov_b32 s{sI}, 0")
    P = vR
    if opt.samp:
        A(f"s_and_b32 s{sT0}, s{sW}, 7")
        A(f"s_lshl_b32 s{sT1}, s{sW}, 4")
        A(f"s_add_u32 s{sT0}, s{sT0}, s{sT1}")
        A(f"s_lshl_b32 s{sT0}, s{sT0}, 11")
        A(f"s_lshl_b32 s{sT1}, s{sB}, 3")
        A(f"s_add_u32 s{sT0}, s{sT0}, s{sT1}")
        A(f"s_add_u32 s{sT0}, s{sT0}, {WS_SEG + 4}")
        A(f"v_mov_b32 v{P+8}, s{sT0}")
        A("s_mov_b64 exec, 1")
        A("K2_SAMP:")
        A(f"global_load_dword v{P}, v{P+8}, s[{sWS}:{sWS+1}] sc1")
        A(f"s_add_u32 s{sI}, s{sI}, 1")
        A(f"s_cmp_gt_u32 s{sI}, {SPIN}")
        A("s_cbranch_scc1 K2_END")
        A("s_waitcnt vmcnt(0)")
        A(f"v_readfirstlane_b32 s{sT0}, v{P}")
        A("s_nop 3")
        A(f"s_cmp_eq_u32 s{sT0}, s{sTag}")
        A("s_cbranch_scc1 K2_SAMPD")
        A(f"s_sleep {opt.slp}")
        A("s_branch K2_SAMP")
        A("K2_SAMPD:")
        A("s_barrier")
    A(f"s_mov_b64 exec, s[{sEX}:{sEX+1}]")
    if opt.pre: A(f"s_sleep {opt.pre}")
    if opt.plain:
        A(f"global_load_dwordx2 v[{P}:{P+1}], v{vSrc}, s[{sWS}:{sWS+1}] sc0")
        A(f"global_load_dwordx2 v[{P+2}:{P+3}], v{vSrc}, s[{sWS}:{sWS+1}] offset:2048 sc0")
        A(f"global_load_dwordx2 v[{P+4}:{P+5}], v{vSrc+1}, s[{sWS}:{sWS+1}] sc0")
        A(f"global_load_dwordx2 v[{P+6}:{P+7}], v{vSrc+1}, s[{sWS}:{sWS+1}] offset:2048 sc0")
        A("s_branch K2_POLLW")
    A("K2_POLL:")
    A(f"global_load_dwordx2 v[{P}:{P+1}], v{vSrc}, s[{sWS}:{sWS+1}] sc1")
    A(f"global_load_dwordx2 v[{P+2}:{P+3}], v{vSrc}, s[{sWS}:{sWS+1}] offset:2048 sc1")
    A(f"global_load_dwordx2 v[{P+4}:{P+5}], v{vSrc+1}, s[{sWS}:{sWS+1}] sc1")
    A(f"global_load_dwordx2 v[{P+6}:{P+7}], v{vSrc+1}, s[{sWS}:{sWS+1}] offset:2048 sc1")
    A("K2_POLLW:")
    A(f"s_add_u32 s{sI}, s{sI}, 1")
    A(f"s_cmp_gt_u32 s{sI}, {SPIN}")
    A("s_cbranch_scc1 K2_END")
    A("s_waitcnt vmcnt(0)")
    for r in range(4):
        A(f"v_xor_b32 v{P+2*r+1}, s{sTag}, v{P+2*r+1}")
        A(f"v_xor_b32 v{P+2*r}, s{sTag2}, v{P+2*r}")
    A(f"v_or3_b32 v{P+1}, v{P+1}, v{P+3}, v{P+5}")
    A(f"v_or3_b32 v{P+3}, v{P}, v{P+2}, v{P+4}")
    A(f"v_or_b32 v{P+3}, v{P+3}, v{P+6}")
    A(f"v_lshrrev_b32 v{P+3}, 24, v{P+3}")
    A(f"v_or3_b32 v{P+1}, v{P+1}, v{P+7}, v{P+3}")
    A(f"v_cmp_ne_u32 vcc, 0, v{P+1}")
    A("s_and_b64 exec, exec, vcc")
    A("s_cbranch_execz K2_GOT")
    A(f"s_sleep {opt.slp}")
    A("s_branch K2_POLL")
    A("K2_GOT:")
    A(f"s_mov_b64 exec, s[{sEX}:{sEX+1}]")
    A(f"v_mov_b32 v{vS}, v{P}")
    A(f"v_mov_b32 v{vS+1}, v{P+2}")
    A(f"s_mov_b64 exec, s[{sEX+2}:{sEX+3}]")
    A(f"v_mov_b32 v{vS+2}, v{P+4}")
    A(f"v_mov_b32 v{vS+3}, v{P+6}")
    A("s_mov_b64 exec, -1")
    A.stamp("seg")
    for r in range(4):
        A(f"v_lshrrev_b32 v{vS+4+r}, 12, v{vS+r}")
        A(f"v_and_b32 v{vS+r}, 0xfff, v{vS+r}")
        A(f"v_add_u32 v{vA+r}, v{vT+1}, v{vS+r}")
        A(f"v_mul_u32_u24 v{vA+r}, 12, v{vA+r}")
        A(f"v_add_u32 v{vT+5}, {r}, v{vT}")
        A(f"v_and_b32 v{vT+5}, s{sCM}, v{vT+5}")
        A(f"v_cmp_eq_u32 vcc, s{sK}, v{vT+5}")
        A(f"v_sub_u32 v{vT+6}, v{vS+4+r}, v{vT+7}")
        A("s_nop 0")
        A(f"v_cndmask_b32 v{vT+6}, 0, v{vT+6}, vcc")
        A(f"v_cmp_lt_i32 s[{sEX+2*r}:{sEX+2*r+1}], 0, v{vT+6}")
        A(f"v_cmp_lt_i32 s[{sEX+8+2*r}:{sEX+8+2*r+1}], 16, v{vT+6}")
    A(f"s_mov_b32 s{sT0}, {CH*12}")
    A(f"s_mov_b32 s{sT1}, {2*CH*12}")
    A(f"s_mov_b32 s{sGB}, {3*CH*12}")
    so = ["0", f"s{sT0}", f"s{sT1}", f"s{sGB}"]
    for i in range(8):
        r, it = i % 4, i // 4
        A(f"s_mov_b64 exec, s[{sEX+2*i}:{sEX+2*i+1}]")
        A(f"s_cbranch_execz K2_LD{i}")
        A(f"buffer_load_dwordx3 v[{vAcc+4*i}:{vAcc+4*i+2}], v{vA+r}, s[{sREC}:{sREC+3}], {so[r]} offen offset:{192*it} sc1")
        A(f"K2_LD{i}:")
    A("s_mov_b64 exec, -1")
    A("s_waitcnt lgkmcnt(0)")
    A("s_barrier")
    A(f"s_mul_i32 s{sT0}, s2, {392*128}")
    A(f"v_cmp_gt_u32 vcc, 392, v0")
    A(f"v_lshlrev_b32 v{vT+5}, 7, v0")
    A(f"v_mov_b32 v{vT+6}, 0x40000000")
    A(f"v_cndmask_b32 v{vT+5}, v{vT+6}, v{vT+5}, vcc")
    A(f"buffer_load_dword v{vJunk}, v{vT+5}, s[{sX}:{sX+3}], s{sT0} offen")
    A(f"v_max_u32 v{vT+5}, v{vS+4}, v{vS+5}")
    A(f"v_max3_u32 v{vT+5}, v{vT+5}, v{vS+6}, v{vS+7}")
    A(f"v_cmp_lt_u32 vcc, 32, v{vT+5}")
    A(f"s_and_saveexec_b64 s[{sP+4}:{sP+5}], vcc")
    A("s_cbranch_execz K2_NOOVF")
    A(f"ds_max_u32 v{vT+4}, v{vT+5}")
    A("K2_NOOVF:")
    A("s_mov_b64 exec, -1")
    A(f"v_mov_b32 v{vT}, 1")
    A("s_waitcnt vmcnt(1)")
    A.stamp("rec")
    for i in range(8):
        A(f"s_mov_b64 exec, s[{sEX+2*i}:{sEX+2*i+1}]")
        A(f"s_cbranch_execz K2_AT{i}")
        A(f"v_lshrrev_b32 v{vA+i}, 24, v{vAcc+4*i+2}")
        A(f"v_lshlrev_b32 v{vA+i}, 2, v{vA+i}")
        A(f"ds_add_rtn_u32 v{vAcc+4*i+3}, v{vA+i}, v{vT} offset:{L_HIST}")
        A(f"K2_AT{i}:")
    A("s_mov_b64 exec, -1")
    A("s_waitcnt lgkmcnt(0)")
    A("s_barrier")
    A.stamp("bar2")
    A(f"v_lshlrev_b32 v{vT}, 4, v{vLane}")
    A(f"ds_read_b128 v[{vB}:{vB+3}], v{vT} offset:{L_HIST}")
    A(f"ds_read_b32 v{vT+4}, v{vT+4}")
    A("s_waitcnt lgkmcnt(0)")
    A(f"v_add_u32 v{vT+1}, v{vB}, v{vB+1}")
    A(f"v_add_u32 v{vT+2}, v{vT+1}, v{vB+2}")
    A(f"v_add_u32 v{vT+3}, v{vT+2}, v{vB+3}")
    A("s_nop 1")
    A(f"v_add_u32_dpp v{vS}, v{vT+3}, v{vT+3} quad_perm:[1,0,3,2] row_mask:0xf bank_mask:0xf")
    A("s_nop 1")
    A(f"v_add_u32_dpp v{vS}, v{vS}, v{vS} quad_perm:[2,3,0,1] row_mask:0xf bank_mask:0xf")
    A(f"v_and_b32 v{vS+3}, 3, v{vLane}")
    A(f"v_cmp_eq_u32 vcc, 3, v{vS+3}")
    A(f"v_add_u32 v{vS+1}, 31, v{vS}")
    A(f"v_and_b32 v{vS+1}, 0xffffffe0, v{vS+1}")
    A(f"v_max_u32 v{vS+1}, {MINU*16}, v{vS+1}")
    A(f"v_sub_u32 v{vS+2}, v{vS+1}, v{vS}")
    A(f"v_cndmask_b32 v{vS+2}, 0, v{vS+2}, vcc")
    A(f"v_add_u32 v{vT+3}, v{vT+3}, v{vS+2}")
    A(f"v_mov_b32 v{vS}, v{vT+3}")
    wave_scan(A, vS)
    A(f"v_sub_u32 v{vS}, v{vS}, v{vT+3}")
    A(f"v_add_u32 v{vB+1}, v{vS}, v{vB}")
    A(f"v_add_u32 v{vB+2}, v{vS}, v{vT+1}")
    A(f"v_add_u32 v{vB+3}, v{vS}, v{vT+2}")
    A(f"v_mov_b32 v{vB}, v{vS}")
    A(f"ds_write_b128 v{vT}, v[{vB}:{vB+3}] offset:{L_BASE}")
    A(f"s_lshl_b32 s{sT0}, s{sW}, 2")
    A(f"v_readlane_b32 s{sT1}, v{vS}, {4*NG}")
    A(f"v_readfirstlane_b32 s{sP+4}, v{vT+4}")
    A(f"v_readlane_b32 s{sGB}, v{vS}, s{sT0}")
    A(f"v_readlane_b32 s{sNU}, v{vS+1}, s{sT0}")
    for i in range(8):
        A(f"s_mov_b64 exec, s[{sEX+2*i}:{sEX+2*i+1}]")
        A(f"s_cbranch_execz K2_RB{i}")
        A(f"ds_read_b32 v{vA+i}, v{vA+i} offset:{L_BASE}")
        A(f"K2_RB{i}:")
    A("s_mov_b64 exec, -1")
    A(f"s_cmp_lg_u32 s{sMode}, 0")
    A("s_cbranch_scc1 K2_OK")
    A(f"s_cmp_gt_u32 s{sT1}, {CAP}")
    A("s_cbranch_scc1 K2_GOSLOW")
    A(f"s_cmp_eq_u32 s{sP+4}, 0")
    A("s_cbranch_scc1 K2_OK")
    A("K2_GOSLOW:")
    A(f"s_mov_b32 s{sMode}, 1")
    A(f"s_mov_b32 s{sCM}, 3")
    A(f"s_max_u32 s{sP+4}, s{sP+4}, 1")
    A(f"s_add_u32 s{sP+4}, s{sP+4}, 31")
    A(f"s_lshr_b32 s{sP+4}, s{sP+4}, 5")
    A(f"s_lshl_b32 s{sNR}, s{sP+4}, 2")
    A("s_waitcnt vmcnt(0) lgkmcnt(0)")
    A("s_barrier")
    A("s_branch K2_ROUND")
    A("K2_OK:")
    A(f"s_lshl_b32 s{sT0}, s{sGB}, 2")
    A(f"s_add_u32 s{sT0}, s{sT0}, {L_META}")
    A(f"v_add_u32 v{vMI0}, s{sT0}, v{vMI0}")
    A(f"v_add_u32 v{vMC0}, s{sT0}, v{vMC0}")
    A(f"s_lshl_b32 s{sT0}, s{sGB}, 3")
    A(f"v_add_u32 v{vBL0}, s{sT0}, v{vBL0}")
    A(f"s_lshr_b32 s{sNU}, s{sNU}, 4")
    A(f"s_sub_u32 s{sNU}, s{sNU}, 2")
    A("s_waitcnt lgkmcnt(0)")
    for i in range(8):
        A(f"s_mov_b64 exec, s[{sEX+2*i}:{sEX+2*i+1}]")
        A(f"s_cbranch_execz K2_SC{i}")
        A(f"v_add_lshl_u32 v{vA+i}, v{vA+i}, v{vAcc+4*i+3}, 2")
        A(f"v_lshlrev_b32 v{vT}, 1, v{vA+i}")
        A(f"ds_write_b32 v{vA+i}, v{vAcc+4*i+2} offset:{L_META}")
        A(f"ds_write_b64 v{vT}, v[{vAcc+4*i}:{vAcc+4*i+1}] offset:{L_COEF}")
        A(f"K2_SC{i}:")
    A("s_mov_b64 exec, -1")
    A(f"s_mov_b32 s{sPh}, 0")
    A(f"s_mov_b32 s{sQn}, 0")
    A("s_waitcnt lgkmcnt(0)")
    A("s_barrier")
    A.stamp_both("main")
    A(f"s_cmp_ge_u32 s{sW}, {NG}")
    A("s_cbranch_scc1 K2_RIDLE")

    def mads(src=vSrc):
        A(f"v_mad_u32_u16 v{vSrc}, v{src}, s{s512}, v{vDOff}")
        A(f"v_mad_u32_u16 v{vSrc+1}, v{src+1}, s{s512}, v{vDOff}")

    def dma(slot, wait=None):
        A(f"s_add_u32 m0, s{sM0}, {slot*2048}")
        A(wait if wait else "s_nop 0")
        A(f"buffer_load_dwordx4 v{vSrc}, s[{sX}:{sX+3}], s{sQn} offen lds")
        A(f"s_add_u32 m0, s{sM0}, {slot*2048+1024}")
        A("s_nop 0")
        A(f"buffer_load_dwordx4 v{vSrc+1}, s[{sX}:{sX+3}], s{sQn} offen lds")

    def body(slot, u, mi, miu, mc, mcu, vm=2, post=None, nodma=False):
        A("s_waitcnt lgkmcnt(0)")
        A(f"v_xor_b32_sdwa v{vB0}, v{vNl}, v{vMy} dst_sel:WORD_1 dst_unused:UNUSED_PRESERVE src0_sel:BYTE_2 src1_sel:WORD_0")
        A(f"v_xor_b32_sdwa v{vB1}, v{vNl+1}, v{vMy} dst_sel:WORD_1 dst_unused:UNUSED_PRESERVE src0_sel:BYTE_2 src1_sel:WORD_0")
        if not nodma:
            A(f"ds_read_b64 v[{vSrc}:{vSrc+1}], v{mi} offset:{64*miu}")
        else:
            A("s_nop 0")
        A(f"ds_read_b64_tr_b16 v[{vB}:{vB+1}], v{vB0} offset:{128*u}")
        A(f"ds_read_b64_tr_b16 v[{vB+2}:{vB+3}], v{vB1} offset:{128*u+8}")
        A(f"s_waitcnt vmcnt({vm})")
        A(f"ds_read_b64_tr_b16 v[{vA}:{vA+1}], v{vA0} offset:{slot*2048}")
        A(f"ds_read_b64_tr_b16 v[{vA+2}:{vA+3}], v{vA0} offset:{slot*2048+1024}")
        A(f"ds_read_b64_tr_b16 v[{vA+4}:{vA+5}], v{vA1} offset:{slot*2048}")
        A(f"ds_read_b64_tr_b16 v[{vA+6}:{vA+7}], v{vA1} offset:{slot*2048+1024}")
        if nodma:
            A("s_waitcnt lgkmcnt(0)")
        else:
            A("s_waitcnt lgkmcnt(6)")
            mads()
            dma(slot, "s_waitcnt lgkmcnt(0)")
        A(f"ds_read_b64 v[{vNl}:{vNl+1}], v{mc} offset:{64*mcu}")
        A(f"v_mfma_f32_32x32x16_bf16 v[{vAcc}:{vAcc+15}], v[{vA}:{vA+3}], v[{vB}:{vB+3}], v[{vAcc}:{vAcc+15}]")
        A(f"v_mfma_f32_32x32x16_bf16 v[{vAcc+16}:{vAcc+31}], v[{vA+4}:{vA+7}], v[{vB}:{vB+3}], v[{vAcc+16}:{vAcc+31}]")
        if post: post()

    def adv(n):
        A(f"v_add_u32 v{vMI}, {64*n}, v{vMI}")
        A(f"v_add_u32 v{vMC}, {64*n}, v{vMC}")
        A(f"v_add_u32 v{vB0}, {128*n}, v{vB0}")
        A(f"v_add_u32 v{vB1}, {128*n}, v{vB1}")

    A(f"ds_read_b64 v[{vSrc}:{vSrc+1}], v{vMI0}")
    A(f"ds_read_b64 v[{vA}:{vA+1}], v{vMI0} offset:64")
    A(f"ds_read_b64 v[{vNl}:{vNl+1}], v{vMC0}")
    A("s_waitcnt lgkmcnt(2)")
    mads()
    dma(0)
    A("s_waitcnt lgkmcnt(1)")
    mads(vA)
    dma(1)
    for i in range(16):
        A(f"v_mov_b32 v{vK+i}, 0")
    if opt.prio: A("s_setprio 3")
    A("K2_PHASE:")
    for i in range(32):
        A(f"v_mov_b32 v{vAcc+i}, 0")
    A(f"v_mov_b32 v{vMI}, v{vMI0}")
    A(f"v_mov_b32 v{vMC}, v{vMC0}")
    A(f"v_mov_b32 v{vB0}, v{vBL0}")
    A(f"v_mov_b32 v{vB1}, v{vBL0}")
    A(f"s_mov_b32 s{sI}, 0")
    A("K2_LOOP:")
    body(0, 0, vMI, 2, vMC, 1)
    A(f"s_add_u32 s{sI}, s{sI}, 2")
    body(1, 1, vMI, 3, vMC, 2, post=lambda: adv(2))
    A(f"s_cmp_lt_u32 s{sI}, s{sNU}")
    A("s_cbranch_scc1 K2_LOOP")
    A(f"s_add_u32 s{sQn}, s{sQn}, 128")
    A(f"s_cmp_eq_u32 s{sPh}, 3")
    A("s_cbranch_scc1 K2_TAIL3")
    body(0, 0, vMI0, 0, vMC, 1)
    body(1, 1, vMI0, 1, vMC0, 0)
    A("s_branch K2_COMB")
    A("K2_TAIL3:")
    body(0, 0, vMI0, 0, vMC, 1, nodma=True)
    body(1, 1, vMI0, 1, vMC0, 0, vm=0, nodma=True)
    A("K2_COMB:")
    A(f"v_and_b32 v{vA}, 3, v0")
    A(f"s_add_u32 s{sT0}, s{sPh}, 2")
    A(f"s_cmp_gt_u32 s{sT0}, 3")
    A(f"s_cselect_b32 s{sT1}, 3, 0")
    A(f"s_sub_u32 s{sT0}, s{sT0}, s{sT1}")
    A(f"v_cmp_eq_u32 vcc, s{sT0}, v{vA}")
    A(f"v_mov_b32 v{vSgn}, 1.0")
    A("s_nop 0")
    A(f"v_cndmask_b32 v{vSgn}, v{vSgn}, -1.0, vcc")
    A(f"v_cmp_ne_u32 vcc, s{sPh}, v{vA}")
    A(f"s_cmp_eq_u32 s{sPh}, 2")
    A("s_nop 0")
    A(f"v_cndmask_b32 v{vSgn}, 0, v{vSgn}, vcc")
    A("s_cbranch_scc1 K2_C2")
    A(f"s_cmp_eq_u32 s{sPh}, 1")
    A("s_cbranch_scc1 K2_C1")
    A(f"s_cmp_eq_u32 s{sPh}, 3")
    A("s_cbranch_scc1 K2_C3")
    if opt.prio: A("s_setprio 2")
    for d in range(16):
        A(f"v_cvt_pk_bf16_f32 v{vP0+d}, v{vAcc+2*d}, v{vAcc+2*d+1}")
    A("s_branch K2_CEND")
    for q, perm in ((1, "[1,0,3,2]"), (2, "[2,3,0,1]"), (3, "[3,2,1,0]")):
        A(f"K2_C{q}:")
        if opt.prio: A(f"s_setprio {max(0, (2 - q) if opt.prio == 1 else (3 - q))}")
        op = "v_mul_f32_dpp" if q == 1 else "v_fmac_f32_dpp"
        for r in range(32):
            A(f"{op} v{vH+r}, v{vAcc+r}, v{vSgn} quad_perm:{perm} row_mask:0xf bank_mask:0xf")
        if q != 3: A("s_branch K2_CK")
    A("K2_CK:")
    for d in range(16):
        A(f"v_cvt_pk_bf16_f32 v{vAcc+d}, v{vAcc+2*d}, v{vAcc+2*d+1}")
    for d in range(16):
        A(f"v_cndmask_b32_dpp v{vK+d}, v{vAcc+d}, v{vK+d}, vcc quad_perm:[0,0,0,0] row_mask:0xf bank_mask:0xf")
    A("K2_CEND:")
    A.stamp_dyn("fl", 4, sPh)
    A(f"s_add_u32 s{sPh}, s{sPh}, 1")
    A(f"s_cmp_lt_u32 s{sPh}, 4")
    if opt.pbar:
        A("s_cbranch_scc0 K2_PDONE")
        A("s_barrier")
        A("s_branch K2_PHASE")
        A("K2_PDONE:")
    else:
        A("s_cbranch_scc1 K2_PHASE")

    if opt.tbar == 1: A("s_barrier")
    A.stamp_both("a3")
    vCa = vAcc
    vCb = (80, 2)
    vWa, vWb = 18, 19
    A(f"v_subrev_u32 v{vWa}, s{sM0}, v{vA0}")
    A(f"v_add_u32 v{vWa}, {L_WST}, v{vWa}")
    A(f"v_xor_b32 v{vWb}, 64, v{vWa}")
    for d in range(16):
        A(f"v_cvt_pk_bf16_f32 v{vH+d}, v{vH+2*d}, v{vH+2*d+1}")
    sets = [(0, vP0, 0), (2, vP0, 1), (1, vH, 0), (4, vH, 1), (3, vK, 1)]
    steps = []
    for ty, X, ch in sets:
        for z in range(4):
            for C in range(2):
                steps.append((ty, X, ch, z, C))
    bufs = [vA, vA + 4, vB]
    def wread(i):
        ty, X, ch, z, C = steps[i]
        bf = bufs[i % 3]
        off = ty * 8192 + z * 2048
        A(f"ds_read_b64_tr_b16 v[{bf}:{bf+1}], v{vWa if C == 0 else vWb} offset:{off}")
        A(f"ds_read_b64_tr_b16 v[{bf+2}:{bf+3}], v{vWa if C == 0 else vWb} offset:{off+1024}")
    A("s_waitcnt lgkmcnt(0)")
    wread(0); wread(1)
    started = set()
    for i, (ty, X, ch, z, C) in enumerate(steps):
        if i + 2 < len(steps):
            wread(i + 2)
            A("s_waitcnt lgkmcnt(4)")
        else:
            A(f"s_waitcnt lgkmcnt({2 * (len(steps) - 1 - i)})")
        D = (vCa + 16 * C) if ch == 0 else vCb[C]
        bf = bufs[i % 3]
        cin = f"v[{D}:{D+15}]" if (ch, C) in started else "0"
        started.add((ch, C))
        A(f"v_mfma_f32_32x32x16_bf16 v[{D}:{D+15}], v[{bf}:{bf+3}], v[{X+4*z}:{X+4*z+3}], {cin}")
    t = vP0
    A(f"v_and_b32 v{t}, 63, v0")
    A(f"v_and_b32 v{t+1}, 3, v{t}")
    A(f"v_cmp_eq_u32 vcc, 0, v{t+1}")
    A(f"v_and_b32 v{t+1}, 31, v{t}")
    A(f"v_lshrrev_b32 v{t+2}, 5, v{t}")
    A(f"v_and_b32 v{t+3}, 7, v{t}")
    A(f"v_xor_b32 v{t+2}, v{t+2}, v{t+3}")
    A(f"v_lshlrev_b32 v{t+2}, 4, v{t+2}")
    A(f"v_lshl_add_u32 v{t+2}, v{t+1}, 7, v{t+2}")
    A(f"v_add_u32 v{t+2}, s{sM0}, v{t+2}")
    A(f"v_xor_b32 v{t+3}, 32, v{t+2}")
    A(f"v_xor_b32 v{t+4}, 64, v{t+2}")
    A(f"v_xor_b32 v{t+5}, 96, v{t+2}")
    A(f"v_lshrrev_b32 v{t+6}, 3, v{t}")
    A(f"v_and_b32 v{t+7}, 1, v{t+6}")
    A(f"v_lshlrev_b32 v{t+7}, 2, v{t+7}")
    A(f"v_xor_b32 v{t+7}, v{t+7}, v{t}")
    A(f"v_and_b32 v{t+7}, 7, v{t+7}")
    A(f"v_lshlrev_b32 v{t+7}, 4, v{t+7}")
    A(f"v_lshl_add_u32 v{t+7}, v{t+6}, 9, v{t+7}")
    A(f"v_add_u32 v{t+7}, s{sM0}, v{t+7}")
    A(f"v_xor_b32 v{t+8}, 16, v{t+7}")
    A(f"v_xor_b32 v{t+9}, 32, v{t+7}")
    A(f"v_xor_b32 v{t+10}, 48, v{t+7}")
    A(f"v_and_b32 v{t+11}, 7, v{t}")
    A(f"v_lshlrev_b32 v{t+11}, 4, v{t+11}")
    A(f"v_lshl_add_u32 v{t+11}, v{t+6}, 9, v{t+11}")
    for C in range(2):
        for r in range(16):
            A(f"v_cndmask_b32 v{vCa+16*C+r}, v{vCb[C]+r}, v{vCa+16*C+r}, vcc")
    if opt.tbar == 2: A("s_barrier")
    A(f"s_cmp_eq_u32 s{sMode}, 0")
    A("s_cbranch_scc1 K2_EPI")
    A(f"s_lshl_b32 s{sT0}, s2, 4")
    A(f"s_add_u32 s{sT0}, s{sT0}, s{sW}")
    A(f"s_lshl_b32 s{sT0}, s{sT0}, 13")
    A(f"s_add_u32 s{sT0}, s{sT0}, {WS_PART}")
    A(f"v_lshl_add_u32 v{t+12}, v{t}, 7, s{sT0}")
    A(f"s_cmp_eq_u32 s{sRound}, 0")
    A("s_cbranch_scc1 K2_NOACC")
    for j in range(8):
        A(f"global_load_dwordx4 v[{vH+4*j}:{vH+4*j+3}], v{t+12}, s[{sWS}:{sWS+1}] offset:{16*j} sc1")
    A("s_waitcnt vmcnt(0)")
    for r in range(32):
        A(f"v_add_f32 v{vCa+r}, v{vCa+r}, v{vH+r}")
    A("K2_NOACC:")
    A(f"s_add_u32 s{sT0}, s{sRound}, 1")
    A(f"s_cmp_ge_u32 s{sT0}, s{sNR}")
    A("s_cbranch_scc1 K2_EPI")
    for j in range(8):
        A(f"global_store_dwordx4 v{t+12}, v[{vCa+4*j}:{vCa+4*j+3}], s[{sWS}:{sWS+1}] offset:{16*j} sc1")
    A("s_branch K2_RNEXT")
    A("K2_RIDLE:")
    if opt.pbar:
        A("s_barrier\ns_barrier\ns_barrier")
    if opt.tbar: A("s_barrier")
    A("K2_RNEXT:")
    A(f"s_cmp_eq_u32 s{sMode}, 0")
    A("s_cbranch_scc1 K2_DONE")
    A(f"s_add_u32 s{sRound}, s{sRound}, 1")
    A(f"s_cmp_ge_u32 s{sRound}, s{sNR}")
    A("s_cbranch_scc1 K2_DONE")
    A(f"s_and_b32 s{sK}, s{sRound}, 3")
    A(f"s_lshr_b32 s{sJB}, s{sRound}, 2")
    A(f"s_lshl_b32 s{sJB}, s{sJB}, 5")
    A("s_waitcnt vmcnt(0) lgkmcnt(0)")
    A("s_barrier")
    A("s_branch K2_ROUND")
    A("K2_EPI:")
    A.stamp("s2f")
    for d in range(16):
        A(f"v_cvt_pk_bf16_f32 v{vCa+d}, v{vCa+2*d}, v{vCa+2*d+1}")
    A(f"s_mul_i32 s{sT0}, s{sB}, {BN*512}")
    A(f"s_mul_i32 s{sT1}, s{sW}, {GN*512}")
    A(f"s_add_u32 s{sT0}, s{sT0}, s{sT1}")
    for j in range(4):
        A(f"v_permlane32_swap_b32 v{vCa+4*j}, v{vCa+4*j+2}")
        A(f"v_permlane32_swap_b32 v{vCa+4*j+1}, v{vCa+4*j+3}")
        A(f"ds_write_b128 v{t+2+j}, v[{vCa+4*j}:{vCa+4*j+3}]")
    A(f"s_mov_b32 s{sT1}, 0xbfb8aa3b")
    A(f"s_mov_b32 s{sGB}, 0xffff0000")
    A("s_mov_b32 exec_hi, 0x00ffffff")
    d0 = vH; g = vH + 16; tt = vH + 24
    A("s_waitcnt lgkmcnt(0)")
    for u in range(4):
        A(f"ds_read_b128 v[{d0+4*u}:{d0+4*u+3}], v{t+7+u} offset:{128*u}")
    A("s_waitcnt lgkmcnt(3)")
    A(f"buffer_store_dwordx4 v[{d0}:{d0+3}], v{t+11}, s[{sOUT}:{sOUT+3}], s{sT0} offen {opt.k2st}")
    for j in range(4):
        A(f"v_lshlrev_b32 v{g+2*j}, 16, v{d0+j}")
        A(f"v_and_b32 v{g+2*j+1}, s{sGB}, v{d0+j}")
    for j in range(8): A(f"v_mul_f32 v{g+j}, s{sT1}, v{g+j}")
    for j in range(8): A(f"v_exp_f32 v{g+j}, v{g+j}")
    for j in range(8): A(f"v_add_f32 v{g+j}, 1.0, v{g+j}")
    for j in range(8): A(f"v_rcp_f32 v{g+j}, v{g+j}")
    for u in range(1, 4):
        d = d0 + 4 * u
        A(f"s_waitcnt lgkmcnt({3-u})")
        for j in range(4):
            A(f"v_lshlrev_b32 v{tt+2*j}, 16, v{d+j}")
            A(f"v_and_b32 v{tt+2*j+1}, s{sGB}, v{d+j}")
        for j in range(4):
            A(f"v_pk_mul_f32 v[{tt+2*j}:{tt+2*j+1}], v[{tt+2*j}:{tt+2*j+1}], v[{g+2*j}:{g+2*j+1}]")
        for j in range(4):
            A(f"v_cvt_pk_bf16_f32 v{d+j}, v{tt+2*j}, v{tt+2*j+1}")
        A(f"buffer_store_dwordx4 v[{d}:{d+3}], v{t+11}, s[{sOUT}:{sOUT+3}], s{sT0} offen offset:{128*u} {opt.k2st}")
    A("K2_DONE:")
    A.stamp("st")
    A.dump_stamps(sWS, 16, vK)
    A("K2_END:")
    A("s_endpgm")
    if opt.stamps: print("stamps:", A.names)
    kd = f"""
.amdhsa_kernel {k}
  .amdhsa_next_free_vgpr 128
  .amdhsa_next_free_sgpr {102 if opt.stamps else 72}
  .amdhsa_accum_offset 128
  .amdhsa_group_segment_fixed_size 0
  .amdhsa_kernarg_size 96
  .amdhsa_user_sgpr_count 2
  .amdhsa_user_sgpr_kernarg_segment_ptr 1
  .amdhsa_system_sgpr_workgroup_id_x 1
  .amdhsa_float_denorm_mode_32 3
.end_amdhsa_kernel
"""
    return A.text(), kd


def main():
    ap = argparse.ArgumentParser()
    ap.add_argument("-o", default=f"cdna_kernels/{NAME}.s")
    ap.add_argument("--stamps", type=int, default=0)
    ap.add_argument("--k2st", default="sc1")
    ap.add_argument("--slp", type=int, default=2)
    ap.add_argument("--samp", type=int, default=1)
    ap.add_argument("--wlate", type=int, default=0)
    ap.add_argument("--plain", type=int, default=0)
    ap.add_argument("--pre", type=int, default=0)
    ap.add_argument("--fst", type=int, default=0)
    ap.add_argument("--rsh", type=int, default=0)
    ap.add_argument("--tbar", type=int, default=0)
    ap.add_argument("--prio", type=int, default=2)
    ap.add_argument("--pbar", type=int, default=0)
    ap.add_argument("--aslist", type=int, default=1)
    opt = ap.parse_args()
    hdr = open(f"cdna_kernels/{NAME}.s.ref").read().split("\n")
    head = [l for l in hdr if l.startswith(";") and "@launch" not in l and "Override launch" not in l and "grid=ceil" not in l]
    t2, kd2 = gen(opt)
    out = "\n".join(head) + "\n"
    if opt.aslist:
        out += f"; @launch kernel={NAME}_kernel grid=({NB},1,1) block=(1024,1,1) lds={K2_LDS}\n"
    else:
        out += f"; @launch grid=({NB},1,1) block=(1024,1,1) lds={K2_LDS}\n"
    out += '.amdgcn_target "amdgcn-amd-amdhsa--gfx950"\n.text\n' + t2
    out += '.section .rodata,"a"\n.p2align 6\n' + kd2
    open(opt.o, "w").write(out)


if __name__ == "__main__":
    main()
```

```python
import argparse

NAME = "standalone__tensor_product_equiv_equiformer__graph"
N = 25000
CH = 3200
NCHUNK = 250
BN = 98
NB = 256
NG = 13
GN = 8
CAP = 3776
MINU = 3
SPIN = 400000

WS_SEG = 0x930000
WS_DBG = 0xA00000

L_COEF = 0
L_META = CAP * 8
L_HIST = L_META + CAP * 4
L_BASE = L_HIST + 1024
L_STG = 49152
L_WST = L_STG + NG * 4096
L_FLAG = L_WST + 40960
L_TAG = L_FLAG + 16
K2_LDS = L_FLAG + 64
WS_PART = 0x1000000
assert L_STG % 256 == 0 and L_WST % 256 == 0 and K2_LDS <= 163840

K1_HIST = 0
K1_BASE = 1024
K1_REC = 4096


class Asm:
    def __init__(self, stamps=False, sbase=72):
        self.l = []; self.stamps = stamps; self.ns = 0; self.sbase = sbase; self.names = []
    def stamp(self, name):
        if not self.stamps: return
        if self.sbase + 2 * self.ns + 1 > 101: return
        r = self.sbase + 2 * self.ns
        self(f"s_memrealtime s[{r}:{r+1}]" if self.stamps == 2 else f"s_memtime s[{r}:{r+1}]")
        self.names.append(name); self.ns += 1
    def stamp_both(self, name):
        self.stamp(name)
        if self.stamps == 1:
            self.stamps = 2; self.stamp(name + "rt"); self.stamps = 1
    def stamp_dyn(self, name, n, sidx):
        if not self.stamps: return
        lab = f"SD_{self.ns}"
        for i in range(n):
            self(f"s_cmp_lg_u32 s{sidx}, {i}")
            self(f"s_cbranch_scc1 {lab}_{i}")
            self.stamp(f"{name}{i}")
            self(f"{lab}_{i}:")
    def dump_stamps(self, ws, nwaves, vt):
        if not self.stamps: return
        self("s_waitcnt vmcnt(0) lgkmcnt(0)")
        self("s_mov_b64 exec, -1")
        self(f"v_mov_b32 v{vt}, 0")
        for i in range(self.ns):
            self(f"v_writelane_b32 v{vt}, s{self.sbase + 2*i}, {i}")
        self(f"v_lshrrev_b32 v{vt+1}, 6, v0")
        self(f"s_mul_i32 s{self.sbase}, s2, {nwaves}")
        self(f"v_add_u32 v{vt+1}, s{self.sbase}, v{vt+1}")
        self(f"v_lshlrev_b32 v{vt+1}, 6, v{vt+1}")
        self(f"v_and_b32 v{vt+2}, 63, v0")
        self(f"v_lshl_add_u32 v{vt+1}, v{vt+2}, 2, v{vt+1}")
        self(f"v_add_u32 v{vt+1}, {WS_DBG}, v{vt+1}")
        self(f"s_mov_b64 exec, 0xffff")
        self(f"global_store_dword v{vt+1}, v{vt}, s[{ws}:{ws+1}]")
    def __call__(self, s):
        for ln in s.strip("\n").split("\n"):
            self.l.append("    " + ln.strip() if not ln.strip().endswith(":") else ln.strip())
    def text(self):
        return "\n".join(self.l) + "\n"


def wave_scan(A, v):
    for sh in (1, 2, 4, 8):
        A("s_nop 1")
        A(f"v_add_u32_dpp v{v}, v{v}, v{v} row_shr:{sh} row_mask:0xf bank_mask:0xf bound_ctrl:0")
    A("s_nop 1")
    A(f"v_add_u32_dpp v{v}, v{v}, v{v} row_bcast:15 row_mask:0xa bank_mask:0xf")
    A("s_nop 1")
    A(f"v_add_u32_dpp v{v}, v{v}, v{v} row_bcast:31 row_mask:0xc bank_mask:0xf")


def srd(A, d, lo, hi, nbytes):
    A(f"s_mov_b32 s{d}, s{lo}")
    A(f"s_and_b32 s{d+1}, s{hi}, 0xffff")
    A(f"s_mov_b32 s{d+2}, {nbytes}")
    A(f"s_mov_b32 s{d+3}, 0x00020000")


def emit_tag_poll(A, lab):
    A("s_mov_b32 s36, 0")
    A("v_mov_b32 v62, 0")
    A("global_load_dword v63, v62, s[38:39]")
    A(f"s_branch {lab}_W")
    A(f"{lab}_L:")
    A("global_load_dword v63, v62, s[38:39] sc1")
    A(f"{lab}_W:")
    A("s_waitcnt vmcnt(0)")
    A("v_readfirstlane_b32 s37, v63")
    A("s_add_u32 s36, s36, 1")
    A(f"s_cmp_gt_u32 s36, {SPIN}")
    A("s_cbranch_scc1 K2_END")
    A("s_cmp_lg_u32 s37, 0")
    A(f"s_cbranch_scc1 {lab}_D")
    A("s_sleep 1")
    A(f"s_branch {lab}_L")
    A(f"{lab}_D:")
    A(f"v_mov_b32 v62, {L_TAG}")
    A("ds_write_b32 v62, v63")


def emit_scan(A):
    A(f"ds_read_b128 v[8:11], v1 offset:{K1_HIST}")
    A("s_waitcnt lgkmcnt(0)")
    A("v_add_u32 v48, v8, v9")
    A("v_add_u32 v49, v48, v10")
    A("v_add_u32 v50, v49, v11")
    A("v_mov_b32 v51, v50")
    wave_scan(A, 51)
    A("v_sub_u32 v52, v51, v50")
    A("v_add_u32 v53, v52, v8")
    A("v_add_u32 v54, v52, v48")
    A("v_add_u32 v55, v52, v49")


def w_load(A):
    W = 64
    A(f"v_lshlrev_b32 v{W+20}, 4, v0")
    A(f"v_lshrrev_b32 v{W+21}, 3, v0")
    A(f"v_lshlrev_b32 v{W+21}, 1, v{W+21}")
    A(f"v_and_b32 v{W+22}, 0x1ff0, v{W+20}")
    A(f"v_add_u32 v{W+22}, 16384, v{W+22}")
    A(f"v_and_b32 v{W+23}, 0x7e, v{W+21}")
    A(f"global_load_dwordx4 v[{W}:{W+3}], v{W+20}, s[66:67]")
    A(f"global_load_dwordx4 v[{W+4}:{W+7}], v{W+20}, s[68:69]")
    A(f"global_load_dwordx4 v[{W+8}:{W+11}], v{W+22}, s[68:69]")
    A(f"global_load_ushort v{W+12}, v{W+21}, s[64:65]")
    A(f"global_load_ushort v{W+13}, v{W+21}, s[64:65] offset:256")
    A(f"global_load_ushort v{W+14}, v{W+23}, s[64:65] offset:512")
    A(f"v_bfe_u32 v{W+16}, v0, 4, 1")
    A(f"v_lshlrev_b32 v{W+16}, 6, v{W+16}")
    A(f"v_xor_b32 v{W+16}, v{W+16}, v{W+20}")
    A(f"v_add_u32 v{W+16}, {L_WST}, v{W+16}")


def w_stage(A, lab):
    W = 64
    A("s_mov_b32 s7, 0xffff0000")
    for c in range(3):
        if c == 2:
            A("s_cmp_ge_u32 s6, 512")
            A(f"s_cbranch_scc1 {lab}")
        A(f"v_lshlrev_b32 v{W+12+c}, 16, v{W+12+c}")
        for d in range(4):
            r = W + 4 * c + d
            A(f"v_lshlrev_b32 v{W+18}, 16, v{r}")
            A(f"v_and_b32 v{W+19}, s7, v{r}")
            A(f"v_mul_f32 v{W+18}, v{W+12+c}, v{W+18}")
            A(f"v_mul_f32 v{W+19}, v{W+12+c}, v{W+19}")
            A(f"v_cvt_pk_bf16_f32 v{r}, v{W+18}, v{W+19}")
        A(f"ds_write_b128 v{W+16}, v[{W+4*c}:{W+4*c+3}] offset:{16384*c}")
    A(f"{lab}:")


def emit_front(A, opt):
    A("s_load_dwordx8 s[8:15], s[0:1], 0x0")
    A("s_load_dwordx2 s[16:17], s[0:1], 0x20")
    A("s_load_dwordx2 s[26:27], s[0:1], 0x58")
    A("s_load_dwordx2 s[38:39], s[0:1], 0x50")
    A("v_readfirstlane_b32 s6, v0")
    A("v_lshlrev_b32 v1, 2, v0")
    A("v_mov_b32 v2, 0")
    A(f"s_cmp_ge_u32 s2, {NCHUNK}")
    A("s_cbranch_scc1 K1_IDLE")
    A("ds_write_b32 v1, v2")
    A("s_cmp_ge_u32 s6, 832")
    A("s_cbranch_scc1 K1_AUX")
    A(f"s_mul_i32 s3, s2, {CH*4}")
    A("v_lshlrev_b32 v3, 4, v0")
    A("v_add_u32 v3, s3, v3")
    A("v_lshrrev_b32 v4, 1, v3")
    A("v_add_u32 v5, v3, v4")
    A(f"v_cmp_gt_u32 vcc, {CH//4}, v0")
    A("s_waitcnt lgkmcnt(0)")
    A("s_and_saveexec_b64 s[28:29], vcc")
    A("s_mov_b64 s[30:31], exec")
    A("global_load_dwordx4 v[8:11], v3, s[16:17] nt")
    if opt.fst: A.stamp("f_iss")
    A("s_barrier")
    if opt.fst: A.stamp("f_b1")
    A("global_load_dwordx4 v[12:15], v3, s[14:15] nt")
    A("global_load_dwordx2 v[16:17], v4, s[12:13] nt")
    A("global_load_dwordx4 v[18:21], v5, s[10:11] nt")
    A("global_load_dwordx2 v[22:23], v5, s[10:11] offset:16 nt")
    A("s_mov_b32 s4, 42800")
    A("v_mov_b32 v60, 1")
    if opt.fst: A.stamp("f_iss2")
    A("s_waitcnt vmcnt(4)")
    if opt.fst: A.stamp("f_dst")
    for i in range(4):
        A(f"v_mul_u32_u24 v{24+i}, s4, v{8+i}")
        A(f"v_lshrrev_b32 v{24+i}, 22, v{24+i}")
        A(f"v_lshlrev_b32 v{28+i}, 2, v{24+i}")
        A(f"ds_add_rtn_u32 v{32+i}, v{28+i}, v60")
    for i in range(4):
        A(f"v_mul_u32_u24 v{36+i}, {BN}, v{24+i}")
        A(f"v_sub_u32 v{36+i}, v{8+i}, v{36+i}")
        A(f"v_lshrrev_b32 v{40+i}, 3, v{36+i}")
        A(f"v_and_b32 v{44+i}, 7, v{36+i}")
        A(f"v_lshlrev_b32 v{44+i}, 18, v{44+i}")
        A(f"v_lshl_or_b32 v{44+i}, v{40+i}, 28, v{44+i}")
    A("s_mov_b64 exec, -1")
    A("v_and_b32 v1, 63, v0")
    A("v_lshlrev_b32 v1, 4, v1")
    A("s_waitcnt lgkmcnt(0)")
    A("s_barrier")
    if opt.fst: A.stamp("f_b2")
    emit_scan(A)
    A(f"ds_write_b128 v1, v[52:55] offset:{K1_BASE}")
    A("s_mov_b64 exec, s[30:31]")
    for i in range(4):
        A(f"ds_read_b32 v{24+i}, v{28+i} offset:{K1_BASE}")
    for i in range(4):
        A(f"s_waitcnt lgkmcnt({3-i})")
        A(f"v_add_u32 v{24+i}, v{24+i}, v{32+i}")
        A(f"v_mul_u32_u24 v{24+i}, 12, v{24+i}")
        A(f"v_add_u32 v{24+i}, {K1_REC}, v{24+i}")
    A("s_waitcnt vmcnt(3)")
    if opt.fst: A.stamp("f_src")
    for i in range(4):
        A(f"v_mul_u32_u24 v{36+i}, 41, v{12+i}")
        A(f"v_lshrrev_b32 v{36+i}, {16+opt.rsh}, v{36+i}")
        A(f"v_lshl_or_b32 v{36+i}, v{36+i}, 24, v{12+i}")
        A(f"v_or_b32 v{36+i}, v{44+i}, v{36+i}")
        A(f"ds_write_b32 v{24+i}, v{36+i} offset:8")
    A("s_waitcnt vmcnt(0)")
    if opt.fst: A.stamp("f_all")
    A("s_mov_b32 s7, 0xffff0000")
    A("v_lshlrev_b32 v40, 16, v16")
    A("v_and_b32 v41, s7, v16")
    A("v_lshlrev_b32 v42, 16, v17")
    A("v_and_b32 v43, s7, v17")
    for i in range(4):
        for j in range(3):
            h = 3 * i + j
            reg = 18 + h // 2
            A(f"v_lshlrev_b32 v{44+j}, 16, v{reg}" if h % 2 == 0 else f"v_and_b32 v{44+j}, s7, v{reg}")
            A(f"v_mul_f32 v{44+j}, v{40+i}, v{44+j}")
        A(f"v_cvt_pk_bf16_f32 v{48+2*i}, v{40+i}, v44")
        A(f"v_cvt_pk_bf16_f32 v{49+2*i}, v45, v46")
        A(f"ds_write2_b32 v{24+i}, v{48+2*i}, v{49+2*i} offset1:1")
    A("s_mov_b64 exec, -1")
    A("s_branch K1_JOIN")

    A("K1_AUX:")
    A("v_and_b32 v1, 63, v0")
    A("v_lshlrev_b32 v1, 4, v1")
    A("s_waitcnt lgkmcnt(0)")
    A("s_cmp_lg_u32 s6, 960")
    A("s_cbranch_scc1 K1_AUX1")
    A("s_cmp_lg_u32 s2, 0")
    A("s_cbranch_scc1 K1_AUX1")
    A("s_memrealtime s[36:37]")
    A("s_waitcnt lgkmcnt(0)")
    A("s_or_b32 s36, s36, 1")
    A("v_mov_b32 v63, s36")
    A("s_mov_b64 exec, 1")
    A("global_store_dword v2, v63, s[38:39] sc1")
    A("s_mov_b64 exec, -1")
    A("K1_AUX1:")
    A("s_barrier")
    A("s_barrier")
    A("s_cmp_lg_u32 s6, 960")
    A("s_cbranch_scc1 K1_AUX2")
    emit_tag_poll(A, "K1_TP")
    A("s_branch K1_JOIN")
    A("K1_AUX2:")
    if opt.et:
        A("s_cmp_lg_u32 s6, 896")
        A("s_cbranch_scc1 K1_AUX3")
        A(f"s_mul_i32 s3, s2, {392*128}")
        A("v_lshl_add_u32 v61, v1, 3, s3")
        for kk in range(opt.et):
            A("global_load_dword v60, v61, s[8:9]")
            A("v_add_u32 v61, 8192, v61")
        A("s_branch K1_JOIN")
        A("K1_AUX3:")
    A("s_cmp_lg_u32 s6, 832")
    A("s_cbranch_scc1 K1_JOIN")
    emit_scan(A)
    for i in range(4):
        A(f"v_lshl_or_b32 v{56+i}, v{8+i}, 12, v{52+i}")
    A("K1_JOIN:")
    if not opt.wlate: w_load(A)
    A("v_lshlrev_b32 v6, 4, v0")
    A(f"s_mul_i32 s3, s2, {CH*12}")
    A("v_add_u32 v2, s3, v6")
    A("v_add_u32 v3, 16384, v2")
    A("v_add_u32 v4, 32768, v2")
    A(f"v_cmp_gt_u32 vcc, {CH*12//16 - 2048}, v0")
    A("s_waitcnt lgkmcnt(0)")
    A("s_barrier")
    A.stamp("bar3")
    A(f"ds_read_b128 v[8:11], v6 offset:{K1_REC}")
    A(f"ds_read_b128 v[12:15], v6 offset:{K1_REC + 16384}")
    A(f"ds_read_b128 v[16:19], v6 offset:{K1_REC + 32768}")
    A("s_waitcnt lgkmcnt(2)")
    A("global_store_dwordx4 v2, v[8:11], s[26:27] sc1")
    A("s_waitcnt lgkmcnt(1)")
    A("global_store_dwordx4 v3, v[12:15], s[26:27] sc1")
    A("s_and_saveexec_b64 s[28:29], vcc")
    A("s_cbranch_execz K1_FIN")
    A("s_waitcnt lgkmcnt(0)")
    A("global_store_dwordx4 v4, v[16:19], s[26:27] sc1")
    A("K1_FIN:")
    A("s_mov_b64 exec, -1")
    if not opt.wlate:
        A("s_waitcnt vmcnt(2)")
        w_stage(A, "K1_WS1")
    A("s_waitcnt vmcnt(0) lgkmcnt(0)")
    A("s_barrier")
    A.stamp("pub")
    A("s_cmp_lg_u32 s6, 832")
    A("s_cbranch_scc1 K1_DONE")
    A(f"v_mov_b32 v62, {L_TAG}")
    A("ds_read_b32 v49, v62")
    A("s_lshl_b32 s3, s2, 11")
    A(f"s_add_u32 s3, s3, {WS_SEG}")
    A("v_lshl_add_u32 v2, v1, 1, s3")
    A("s_waitcnt lgkmcnt(0)")
    A("v_lshlrev_b32 v62, 23, v49")
    A("v_and_b32 v62, 0xff000000, v62")
    A("v_or_b32 v48, v62, v56")
    A("v_or_b32 v50, v62, v57")
    A("v_or_b32 v52, v62, v58")
    A("v_or_b32 v54, v62, v59")
    A("v_mov_b32 v51, v49")
    A("v_mov_b32 v53, v49")
    A("v_mov_b32 v55, v49")
    A("global_store_dwordx4 v2, v[48:51], s[26:27] sc1")
    A("global_store_dwordx4 v2, v[52:55], s[26:27] offset:16 sc1")
    A("s_branch K1_DONE")
    A("K1_IDLE:")
    A("s_waitcnt lgkmcnt(0)")
    if not opt.wlate:
        w_load(A)
        A("s_waitcnt vmcnt(0)")
        w_stage(A, "K1_WS2")
    A("s_cmp_lg_u32 s6, 960")
    A("s_cbranch_scc1 K1_IDLE1")
    A("s_mov_b32 s36, 0")
    A("v_mov_b32 v62, 0")
    A("s_branch K1_TW_L")
    emit_tag_poll(A, "K1_TW")
    A("K1_IDLE1:")
    A("s_waitcnt lgkmcnt(0)")
    A("s_barrier")
    A("K1_DONE:")
    if opt.wlate:
        w_load(A)
        A("s_waitcnt vmcnt(0)")
        w_stage(A, "K1_WS1")


def gen(opt):
    A = Asm(opt.stamps, 72)
    k = f"{NAME}_kernel"
    sX, sREC, sOUT = 4, 8, 12
    sW, sNU, sI, sQn, sM0, s512, sB, sPh = range(16, 24)
    sT0, sT1, sGB, sTag2 = 26, 27, 28, 29
    sMode, sRound, sNR, sJB, sK, sCM = 30, 31, 32, 33, 34, 35
    sTag = 39
    sEX = 40
    sWS = 56
    sP = 58
    sWP = 64
    (vDOff, vMI, vMC, vMI0, vMC0, vB0, vB1, vBL0, vA0, vA1, vMy, vSgn, vJunk) = range(1, 14)
    vSrc = 14
    vNl = 16
    vA = 20
    vB = 28
    vAcc = 32
    vH = 64
    vK = 96
    vP0 = 112
    vT = 96; vS = 104; vLane = 112; vR = 114

    A(f".globl {k}\n.p2align 8\n.type {k},@function\n{k}:")
    A(f"s_cmp_ge_u32 s2, {NB}")
    A("s_cbranch_scc1 K2_END")
    A.stamp("entry")
    A(f"s_load_dwordx2 s[{sWS}:{sWS+1}], s[0:1], 0x58")
    A(f"s_load_dwordx2 s[{sP}:{sP+1}], s[0:1], 0x0")
    A(f"s_load_dwordx2 s[{sP+2}:{sP+3}], s[0:1], 0x48")
    A(f"s_load_dwordx2 s[{sWP}:{sWP+1}], s[0:1], 0x28")
    A(f"s_load_dwordx2 s[{sWP+2}:{sWP+3}], s[0:1], 0x30")
    A(f"s_load_dwordx2 s[{sWP+4}:{sWP+5}], s[0:1], 0x38")
    emit_front(A, opt)
    A(f"v_mov_b32 v{vT+1}, {L_TAG}")
    A(f"ds_read_b32 v{vT+1}, v{vT+1}")
    A(f"s_lshr_b32 s{sW}, s6, 6")
    A(f"s_and_b32 s{sT0}, s2, 7")
    A(f"s_lshr_b32 s{sT1}, s2, 3")
    A(f"s_lshl_b32 s{sB}, s{sT0}, 5")
    A(f"s_add_u32 s{sB}, s{sB}, s{sT1}")
    for r in (sMode, sRound, sJB, sK, sCM):
        A(f"s_mov_b32 s{r}, 0")
    A(f"s_movk_i32 s{s512}, 512")
    srd(A, sX, sP, sP + 1, N * 512)
    srd(A, sOUT, sP + 2, sP + 3, N * 512)
    srd(A, sREC, sWS, sWS + 1, NCHUNK * CH * 12)
    A("s_waitcnt lgkmcnt(0)")
    A(f"v_readfirstlane_b32 s{sTag}, v{vT+1}")
    A("s_nop 3")
    A(f"s_lshl_b32 s{sTag2}, s{sTag}, 23")
    A(f"s_and_b32 s{sTag2}, s{sTag2}, 0xff000000")

    A("K2_ROUND:")
    A(f"v_lshlrev_b32 v{vT+2}, 4, v0")
    A(f"v_and_b32 v{vLane}, 63, v0")
    A(f"s_lshl_b32 s{sT0}, s{sB}, 3")
    A(f"s_add_u32 s{sT0}, s{sT0}, {WS_SEG}")
    A(f"v_and_b32 v{vT}, 0x3f0, v0")
    A(f"v_lshl_add_u32 v{vSrc}, v{vT}, 9, s{sT0}")
    A(f"v_add_u32 v{vSrc+1}, 4096, v{vSrc}")
    A(f"v_cmp_gt_u32 vcc, {CAP*4//16}, v0")
    A(f"v_mov_b32 v{vT+3}, 0")
    A(f"v_mov_b32 v{vT+4}, {L_FLAG}")
    for i in range(4):
        A(f"v_cndmask_b32 v{vA+i}, 0, -1, vcc")
    A(f"ds_write_b128 v{vT+2}, v[{vA}:{vA+3}] offset:{L_META}")
    A(f"ds_write_b32 v{vT+4}, v{vT+3}")
    A(f"v_and_b32 v{vA}, 7, v{vLane}")
    A(f"v_bfe_u32 v{vA+1}, v{vLane}, 4, 1")
    A(f"v_lshlrev_b32 v{vA+2}, 2, v{vA+1}")
    A(f"v_xor_b32 v{vA}, v{vA}, v{vA+2}")
    A(f"v_lshlrev_b32 v{vDOff}, 4, v{vA}")
    A(f"v_lshrrev_b32 v{vA}, 5, v{vLane}")
    A(f"v_bfe_u32 v{vA+2}, v{vLane}, 2, 2")
    A(f"v_lshl_add_u32 v{vA+3}, v{vA}, 2, v{vA+2}")
    A(f"v_and_b32 v{vMI0}, 56, v{vLane}")
    A(f"v_lshlrev_b32 v{vMC0}, 3, v{vA+3}")
    A(f"v_lshlrev_b32 v{vBL0}, 4, v{vA+3}")
    A(f"v_and_b32 v{vA+4}, 3, v{vLane}")
    A(f"v_lshl_add_u32 v{vMy}, v{vA+1}, 2, v{vA+4}")
    A(f"v_lshlrev_b32 v{vMy}, 2, v{vMy}")
    A(f"s_lshl_b32 s{sM0}, s{sW}, 12")
    A(f"s_add_u32 s{sM0}, s{sM0}, {L_STG}")
    A(f"v_lshlrev_b32 v{vA0}, 7, v{vA+3}")
    A(f"v_bfe_u32 v{vA+5}, v{vLane}, 3, 1")
    A(f"v_lshl_add_u32 v{vA0}, v{vA+5}, 6, v{vA0}")
    A(f"v_lshl_add_u32 v{vA0}, v{vA+1}, 5, v{vA0}")
    A(f"v_lshl_add_u32 v{vA0}, v{vA+4}, 3, v{vA0}")
    A(f"v_add_u32 v{vA0}, s{sM0}, v{vA0}")
    A(f"v_xor_b32 v{vA1}, 64, v{vA0}")
    A(f"v_and_b32 v{vA}, 15, v{vLane}")
    A(f"v_lshrrev_b32 v{vT}, 2, v{vT}")
    A(f"v_mul_u32_u24 v{vT+1}, {CH}, v{vT}")
    A(f"v_add_u32 v{vT+1}, v{vT+1}, v{vA}")
    A(f"v_add_u32 v{vT+1}, s{sJB}, v{vT+1}")
    A(f"v_add_u32 v{vT+7}, s{sJB}, v{vA}")
    A(f"v_cmp_gt_u32 vcc, {NCHUNK-2}, v{vT}")
    A(f"v_lshrrev_b32 v{vA+3}, 2, v{vT}")
    A(f"v_cmp_eq_u32 s[{sP+4}:{sP+5}], 62, v{vA+3}")
    for r in range(4):
        A(f"v_mov_b32 v{vS+r}, 0")
    A(f"v_cndmask_b32 v{vSrc+1}, v{vSrc}, v{vSrc+1}, vcc")
    A(f"s_or_b64 s[{sEX}:{sEX+1}], vcc, s[{sP+4}:{sP+5}]")
    A(f"s_mov_b64 s[{sEX+2}:{sEX+3}], vcc")
    A(f"s_mov_b32 s{sI}, 0")
    P = vR
    if opt.samp:
        A(f"s_and_b32 s{sT0}, s{sW}, 7")
        A(f"s_lshl_b32 s{sT1}, s{sW}, 4")
        A(f"s_add_u32 s{sT0}, s{sT0}, s{sT1}")
        A(f"s_lshl_b32 s{sT0}, s{sT0}, 11")
        A(f"s_lshl_b32 s{sT1}, s{sB}, 3")
        A(f"s_add_u32 s{sT0}, s{sT0}, s{sT1}")
        A(f"s_add_u32 s{sT0}, s{sT0}, {WS_SEG + 4}")
        A(f"v_mov_b32 v{P+8}, s{sT0}")
        A("s_mov_b64 exec, 1")
        A("K2_SAMP:")
        A(f"global_load_dword v{P}, v{P+8}, s[{sWS}:{sWS+1}] sc1")
        A(f"s_add_u32 s{sI}, s{sI}, 1")
        A(f"s_cmp_gt_u32 s{sI}, {SPIN}")
        A("s_cbranch_scc1 K2_END")
        A("s_waitcnt vmcnt(0)")
        A(f"v_readfirstlane_b32 s{sT0}, v{P}")
        A("s_nop 3")
        A(f"s_cmp_eq_u32 s{sT0}, s{sTag}")
        A("s_cbranch_scc1 K2_SAMPD")
        A(f"s_sleep {opt.slp}")
        A("s_branch K2_SAMP")
        A("K2_SAMPD:")
        A("s_barrier")
    A(f"s_mov_b64 exec, s[{sEX}:{sEX+1}]")
    if opt.pre: A(f"s_sleep {opt.pre}")
    if opt.plain:
        A(f"global_load_dwordx2 v[{P}:{P+1}], v{vSrc}, s[{sWS}:{sWS+1}] sc0")
        A(f"global_load_dwordx2 v[{P+2}:{P+3}], v{vSrc}, s[{sWS}:{sWS+1}] offset:2048 sc0")
        A(f"global_load_dwordx2 v[{P+4}:{P+5}], v{vSrc+1}, s[{sWS}:{sWS+1}] sc0")
        A(f"global_load_dwordx2 v[{P+6}:{P+7}], v{vSrc+1}, s[{sWS}:{sWS+1}] offset:2048 sc0")
        A("s_branch K2_POLLW")
    A("K2_POLL:")
    A(f"global_load_dwordx2 v[{P}:{P+1}], v{vSrc}, s[{sWS}:{sWS+1}] sc1")
    A(f"global_load_dwordx2 v[{P+2}:{P+3}], v{vSrc}, s[{sWS}:{sWS+1}] offset:2048 sc1")
    A(f"global_load_dwordx2 v[{P+4}:{P+5}], v{vSrc+1}, s[{sWS}:{sWS+1}] sc1")
    A(f"global_load_dwordx2 v[{P+6}:{P+7}], v{vSrc+1}, s[{sWS}:{sWS+1}] offset:2048 sc1")
    A("K2_POLLW:")
    A(f"s_add_u32 s{sI}, s{sI}, 1")
    A(f"s_cmp_gt_u32 s{sI}, {SPIN}")
    A("s_cbranch_scc1 K2_END")
    A("s_waitcnt vmcnt(0)")
    for r in range(4):
        A(f"v_xor_b32 v{P+2*r+1}, s{sTag}, v{P+2*r+1}")
        A(f"v_xor_b32 v{P+2*r}, s{sTag2}, v{P+2*r}")
    A(f"v_or3_b32 v{P+1}, v{P+1}, v{P+3}, v{P+5}")
    A(f"v_or3_b32 v{P+3}, v{P}, v{P+2}, v{P+4}")
    A(f"v_or_b32 v{P+3}, v{P+3}, v{P+6}")
    A(f"v_lshrrev_b32 v{P+3}, 24, v{P+3}")
    A(f"v_or3_b32 v{P+1}, v{P+1}, v{P+7}, v{P+3}")
    A(f"v_cmp_ne_u32 vcc, 0, v{P+1}")
    A("s_and_b64 exec, exec, vcc")
    A("s_cbranch_execz K2_GOT")
    A(f"s_sleep {opt.slp}")
    A("s_branch K2_POLL")
    A("K2_GOT:")
    A(f"s_mov_b64 exec, s[{sEX}:{sEX+1}]")
    A(f"v_mov_b32 v{vS}, v{P}")
    A(f"v_mov_b32 v{vS+1}, v{P+2}")
    A(f"s_mov_b64 exec, s[{sEX+2}:{sEX+3}]")
    A(f"v_mov_b32 v{vS+2}, v{P+4}")
    A(f"v_mov_b32 v{vS+3}, v{P+6}")
    A("s_mov_b64 exec, -1")
    A.stamp("seg")
    for r in range(4):
        A(f"v_lshrrev_b32 v{vS+4+r}, 12, v{vS+r}")
        A(f"v_and_b32 v{vS+r}, 0xfff, v{vS+r}")
        A(f"v_add_u32 v{vA+r}, v{vT+1}, v{vS+r}")
        A(f"v_mul_u32_u24 v{vA+r}, 12, v{vA+r}")
        A(f"v_add_u32 v{vT+5}, {r}, v{vT}")
        A(f"v_and_b32 v{vT+5}, s{sCM}, v{vT+5}")
        A(f"v_cmp_eq_u32 vcc, s{sK}, v{vT+5}")
        A(f"v_sub_u32 v{vT+6}, v{vS+4+r}, v{vT+7}")
        A("s_nop 0")
        A(f"v_cndmask_b32 v{vT+6}, 0, v{vT+6}, vcc")
        A(f"v_cmp_lt_i32 s[{sEX+2*r}:{sEX+2*r+1}], 0, v{vT+6}")
        A(f"v_cmp_lt_i32 s[{sEX+8+2*r}:{sEX+8+2*r+1}], 16, v{vT+6}")
    A(f"s_mov_b32 s{sT0}, {CH*12}")
    A(f"s_mov_b32 s{sT1}, {2*CH*12}")
    A(f"s_mov_b32 s{sGB}, {3*CH*12}")
    so = ["0", f"s{sT0}", f"s{sT1}", f"s{sGB}"]
    for i in range(8):
        r, it = i % 4, i // 4
        A(f"s_mov_b64 exec, s[{sEX+2*i}:{sEX+2*i+1}]")
        A(f"s_cbranch_execz K2_LD{i}")
        A(f"buffer_load_dwordx3 v[{vAcc+4*i}:{vAcc+4*i+2}], v{vA+r}, s[{sREC}:{sREC+3}], {so[r]} offen offset:{192*it} sc1")
        A(f"K2_LD{i}:")
    A("s_mov_b64 exec, -1")
    A("s_waitcnt lgkmcnt(0)")
    A("s_barrier")
    A(f"s_mul_i32 s{sT0}, s2, {392*128}")
    if opt.et:
        A(f"s_cmp_lt_u32 s2, {NCHUNK}")
        A(f"s_cselect_b32 s{sT1}, {opt.et*8192}, 0")
        A(f"s_add_u32 s{sT0}, s{sT0}, s{sT1}")
        A(f"s_lshr_b32 s{sT1}, s{sT1}, 7")
        A(f"s_sub_u32 s{sT1}, 392, s{sT1}")
        A(f"v_cmp_gt_u32 vcc, s{sT1}, v0")
    else:
        A(f"v_cmp_gt_u32 vcc, 392, v0")
    A(f"v_lshlrev_b32 v{vT+5}, 7, v0")
    A(f"v_mov_b32 v{vT+6}, 0x40000000")
    A(f"v_cndmask_b32 v{vT+5}, v{vT+6}, v{vT+5}, vcc")
    A(f"buffer_load_dword v{vJunk}, v{vT+5}, s[{sX}:{sX+3}], s{sT0} offen")
    A(f"v_max_u32 v{vT+5}, v{vS+4}, v{vS+5}")
    A(f"v_max3_u32 v{vT+5}, v{vT+5}, v{vS+6}, v{vS+7}")
    A(f"v_cmp_lt_u32 vcc, 32, v{vT+5}")
    A(f"s_and_saveexec_b64 s[{sP+4}:{sP+5}], vcc")
    A("s_cbranch_execz K2_NOOVF")
    A(f"ds_max_u32 v{vT+4}, v{vT+5}")
    A("K2_NOOVF:")
    A("s_mov_b64 exec, -1")
    A(f"v_mov_b32 v{vT}, 1")
    A("s_waitcnt vmcnt(1)")
    A.stamp("rec")
    for i in range(8):
        A(f"s_mov_b64 exec, s[{sEX+2*i}:{sEX+2*i+1}]")
        A(f"s_cbranch_execz K2_AT{i}")
        A(f"v_lshrrev_b32 v{vA+i}, 24, v{vAcc+4*i+2}")
        A(f"v_lshlrev_b32 v{vA+i}, 2, v{vA+i}")
        A(f"ds_add_rtn_u32 v{vAcc+4*i+3}, v{vA+i}, v{vT} offset:{L_HIST}")
        A(f"K2_AT{i}:")
    A("s_mov_b64 exec, -1")
    A("s_waitcnt lgkmcnt(0)")
    A("s_barrier")
    A.stamp("bar2")
    A(f"v_lshlrev_b32 v{vT}, 4, v{vLane}")
    A(f"ds_read_b128 v[{vB}:{vB+3}], v{vT} offset:{L_HIST}")
    A(f"ds_read_b32 v{vT+4}, v{vT+4}")
    A("s_waitcnt lgkmcnt(0)")
    A(f"v_add_u32 v{vT+1}, v{vB}, v{vB+1}")
    A(f"v_add_u32 v{vT+2}, v{vT+1}, v{vB+2}")
    A(f"v_add_u32 v{vT+3}, v{vT+2}, v{vB+3}")
    A("s_nop 1")
    A(f"v_add_u32_dpp v{vS}, v{vT+3}, v{vT+3} quad_perm:[1,0,3,2] row_mask:0xf bank_mask:0xf")
    A("s_nop 1")
    A(f"v_add_u32_dpp v{vS}, v{vS}, v{vS} quad_perm:[2,3,0,1] row_mask:0xf bank_mask:0xf")
    A(f"v_and_b32 v{vS+3}, 3, v{vLane}")
    A(f"v_cmp_eq_u32 vcc, 3, v{vS+3}")
    A(f"v_add_u32 v{vS+1}, 15, v{vS}")
    A(f"v_and_b32 v{vS+1}, -16, v{vS+1}")
    A(f"v_max_u32 v{vS+1}, {MINU*16}, v{vS+1}")
    A(f"v_sub_u32 v{vS+2}, v{vS+1}, v{vS}")
    A(f"v_cndmask_b32 v{vS+2}, 0, v{vS+2}, vcc")
    A(f"v_add_u32 v{vT+3}, v{vT+3}, v{vS+2}")
    A(f"v_mov_b32 v{vS}, v{vT+3}")
    wave_scan(A, vS)
    A(f"v_sub_u32 v{vS}, v{vS}, v{vT+3}")
    A(f"v_add_u32 v{vB+1}, v{vS}, v{vB}")
    A(f"v_add_u32 v{vB+2}, v{vS}, v{vT+1}")
    A(f"v_add_u32 v{vB+3}, v{vS}, v{vT+2}")
    A(f"v_mov_b32 v{vB}, v{vS}")
    A(f"ds_write_b128 v{vT}, v[{vB}:{vB+3}] offset:{L_BASE}")
    A(f"s_lshl_b32 s{sT0}, s{sW}, 2")
    A(f"v_readlane_b32 s{sT1}, v{vS}, {4*NG}")
    A(f"v_readfirstlane_b32 s{sP+4}, v{vT+4}")
    A(f"v_readlane_b32 s{sGB}, v{vS}, s{sT0}")
    A(f"v_readlane_b32 s{sNU}, v{vS+1}, s{sT0}")
    for i in range(8):
        A(f"s_mov_b64 exec, s[{sEX+2*i}:{sEX+2*i+1}]")
        A(f"s_cbranch_execz K2_RB{i}")
        A(f"ds_read_b32 v{vA+i}, v{vA+i} offset:{L_BASE}")
        A(f"K2_RB{i}:")
    A("s_mov_b64 exec, -1")
    A(f"s_cmp_lg_u32 s{sMode}, 0")
    A("s_cbranch_scc1 K2_OK")
    A(f"s_cmp_gt_u32 s{sT1}, {CAP}")
    A("s_cbranch_scc1 K2_GOSLOW")
    A(f"s_cmp_eq_u32 s{sP+4}, 0")
    A("s_cbranch_scc1 K2_OK")
    A("K2_GOSLOW:")
    A(f"s_mov_b32 s{sMode}, 1")
    A(f"s_mov_b32 s{sCM}, 3")
    A(f"s_max_u32 s{sP+4}, s{sP+4}, 1")
    A(f"s_add_u32 s{sP+4}, s{sP+4}, 31")
    A(f"s_lshr_b32 s{sP+4}, s{sP+4}, 5")
    A(f"s_lshl_b32 s{sNR}, s{sP+4}, 2")
    A("s_waitcnt vmcnt(0) lgkmcnt(0)")
    A("s_barrier")
    A("s_branch K2_ROUND")
    A("K2_OK:")
    A(f"s_lshl_b32 s{sT0}, s{sGB}, 2")
    A(f"s_add_u32 s{sT0}, s{sT0}, {L_META}")
    A(f"v_add_u32 v{vMI0}, s{sT0}, v{vMI0}")
    A(f"v_add_u32 v{vMC0}, s{sT0}, v{vMC0}")
    A(f"s_lshl_b32 s{sT0}, s{sGB}, 3")
    A(f"v_add_u32 v{vBL0}, s{sT0}, v{vBL0}")
    A(f"s_lshr_b32 s{sNU}, s{sNU}, 4")
    A(f"s_sub_u32 s{sNU}, s{sNU}, 2")
    A("s_waitcnt lgkmcnt(0)")
    for i in range(8):
        A(f"s_mov_b64 exec, s[{sEX+2*i}:{sEX+2*i+1}]")
        A(f"s_cbranch_execz K2_SC{i}")
        A(f"v_add_lshl_u32 v{vA+i}, v{vA+i}, v{vAcc+4*i+3}, 2")
        A(f"v_lshlrev_b32 v{vT}, 1, v{vA+i}")
        A(f"ds_write_b32 v{vA+i}, v{vAcc+4*i+2} offset:{L_META}")
        A(f"ds_write_b64 v{vT}, v[{vAcc+4*i}:{vAcc+4*i+1}] offset:{L_COEF}")
        A(f"K2_SC{i}:")
    A("s_mov_b64 exec, -1")
    A(f"s_mov_b32 s{sPh}, 0")
    A(f"s_mov_b32 s{sQn}, 0")
    A("s_waitcnt lgkmcnt(0)")
    A("s_barrier")
    A.stamp_both("main")
    A(f"s_cmp_ge_u32 s{sW}, {NG}")
    A("s_cbranch_scc1 K2_RIDLE")

    def mads(src=vSrc):
        A(f"v_mad_u32_u16 v{vSrc}, v{src}, s{s512}, v{vDOff}")
        A(f"v_mad_u32_u16 v{vSrc+1}, v{src+1}, s{s512}, v{vDOff}")

    sMc = 24
    def dma(wait=None):
        A(f"s_mov_b32 m0, s{sMc}")
        A(wait if wait else "s_nop 0")
        A(f"buffer_load_dwordx4 v{vSrc}, s[{sX}:{sX+3}], s{sQn} offen lds")
        A(f"s_add_u32 m0, s{sMc}, 1024")
        A(f"s_xor_b32 s{sMc}, s{sMc}, 0x800")
        A(f"buffer_load_dwordx4 v{vSrc+1}, s[{sX}:{sX+3}], s{sQn} offen lds")

    def body(u, mi, miu, mc, mcu, vm=2, nodma=False, adv=False):
        A("s_waitcnt lgkmcnt(0)")
        A(f"v_xor_b32_sdwa v{vB0}, v{vNl}, v{vMy} dst_sel:WORD_1 dst_unused:UNUSED_PRESERVE src0_sel:BYTE_2 src1_sel:WORD_0")
        A(f"v_xor_b32_sdwa v{vB1}, v{vNl+1}, v{vMy} dst_sel:WORD_1 dst_unused:UNUSED_PRESERVE src0_sel:BYTE_2 src1_sel:WORD_0")
        if not nodma:
            A(f"ds_read_b64 v[{vSrc}:{vSrc+1}], v{mi} offset:{64*miu}")
        else:
            A("s_nop 0")
        A(f"ds_read_b64_tr_b16 v[{vB}:{vB+1}], v{vB0} offset:{128*u}")
        A(f"ds_read_b64_tr_b16 v[{vB+2}:{vB+3}], v{vB1} offset:{128*u+8}")
        if adv:
            A(f"v_add_u32 v{vMI}, 64, v{vMI}")
            A(f"v_add_u32 v{vB0}, 128, v{vB0}")
            A(f"v_add_u32 v{vB1}, 128, v{vB1}")
            A(f"s_add_u32 s{sI}, s{sI}, 1")
        A(f"s_waitcnt vmcnt({vm})")
        A(f"ds_read_b64_tr_b16 v[{vA}:{vA+1}], v{vA0}")
        A(f"ds_read_b64_tr_b16 v[{vA+2}:{vA+3}], v{vA0} offset:1024")
        A(f"ds_read_b64_tr_b16 v[{vA+4}:{vA+5}], v{vA1}")
        A(f"ds_read_b64_tr_b16 v[{vA+6}:{vA+7}], v{vA1} offset:1024")
        A(f"v_xor_b32 v{vA0}, 0x800, v{vA0}")
        A(f"v_xor_b32 v{vA1}, 0x800, v{vA1}")
        if nodma:
            A("s_waitcnt lgkmcnt(0)")
        else:
            A("s_waitcnt lgkmcnt(6)")
            mads()
            dma("s_waitcnt lgkmcnt(0)")
        A(f"ds_read_b64 v[{vNl}:{vNl+1}], v{mc} offset:{64*mcu}")
        if adv:
            A(f"v_add_u32 v{vMC}, 64, v{vMC}")
        A(f"v_mfma_f32_32x32x16_bf16 v[{vAcc}:{vAcc+15}], v[{vA}:{vA+3}], v[{vB}:{vB+3}], v[{vAcc}:{vAcc+15}]")
        A(f"v_mfma_f32_32x32x16_bf16 v[{vAcc+16}:{vAcc+31}], v[{vA+4}:{vA+7}], v[{vB}:{vB+3}], v[{vAcc+16}:{vAcc+31}]")

    A(f"s_mov_b32 s{sMc}, s{sM0}")
    A(f"ds_read_b64 v[{vSrc}:{vSrc+1}], v{vMI0}")
    A(f"ds_read_b64 v[{vA}:{vA+1}], v{vMI0} offset:64")
    A(f"ds_read_b64 v[{vNl}:{vNl+1}], v{vMC0}")
    A("s_waitcnt lgkmcnt(2)")
    mads()
    dma()
    A("s_waitcnt lgkmcnt(1)")
    mads(vA)
    dma()
    for i in range(16):
        A(f"v_mov_b32 v{vK+i}, 0")
    PR = [int(c) for c in opt.pr]
    if opt.prio: A(f"s_setprio {PR[0]}")
    A("K2_PHASE:")
    for i in range(32):
        A(f"v_mov_b32 v{vAcc+i}, 0")
    A(f"v_mov_b32 v{vMI}, v{vMI0}")
    A(f"v_mov_b32 v{vMC}, v{vMC0}")
    A(f"v_mov_b32 v{vB0}, v{vBL0}")
    A(f"v_mov_b32 v{vB1}, v{vBL0}")
    A(f"s_mov_b32 s{sI}, 0")
    A("K2_LOOP:")
    body(0, vMI, 2, vMC, 1, adv=True)
    A(f"s_cmp_lt_u32 s{sI}, s{sNU}")
    A("s_cbranch_scc1 K2_LOOP")
    A(f"s_add_u32 s{sQn}, s{sQn}, 128")
    A(f"s_cmp_eq_u32 s{sPh}, 3")
    A("s_cbranch_scc1 K2_TAIL3")
    body(0, vMI0, 0, vMC, 1)
    body(1, vMI0, 1, vMC0, 0)
    A("s_branch K2_COMB")
    A("K2_TAIL3:")
    body(0, vMI0, 0, vMC, 1, nodma=True)
    body(1, vMI0, 1, vMC0, 0, vm=0, nodma=True)
    A("K2_COMB:")
    A(f"v_and_b32 v{vA}, 3, v0")
    A(f"s_add_u32 s{sT0}, s{sPh}, 2")
    A(f"s_cmp_gt_u32 s{sT0}, 3")
    A(f"s_cselect_b32 s{sT1}, 3, 0")
    A(f"s_sub_u32 s{sT0}, s{sT0}, s{sT1}")
    A(f"v_cmp_eq_u32 vcc, s{sT0}, v{vA}")
    A(f"v_mov_b32 v{vSgn}, 1.0")
    A("s_nop 0")
    A(f"v_cndmask_b32 v{vSgn}, v{vSgn}, -1.0, vcc")
    A(f"v_cmp_ne_u32 vcc, s{sPh}, v{vA}")
    A(f"s_cmp_eq_u32 s{sPh}, 2")
    A("s_nop 0")
    A(f"v_cndmask_b32 v{vSgn}, 0, v{vSgn}, vcc")
    A("s_cbranch_scc1 K2_C2")
    A(f"s_cmp_eq_u32 s{sPh}, 1")
    A("s_cbranch_scc1 K2_C1")
    A(f"s_cmp_eq_u32 s{sPh}, 3")
    A("s_cbranch_scc1 K2_C3")
    if opt.prio: A(f"s_setprio {PR[1]}")
    for d in range(16):
        A(f"v_cvt_pk_bf16_f32 v{vP0+d}, v{vAcc+2*d}, v{vAcc+2*d+1}")
    A("s_branch K2_CEND")
    for q, perm in ((1, "[1,0,3,2]"), (2, "[2,3,0,1]"), (3, "[3,2,1,0]")):
        A(f"K2_C{q}:")
        if opt.prio: A(f"s_setprio {PR[q+1]}")
        op = "v_mul_f32_dpp" if q == 1 else "v_fmac_f32_dpp"
        for r in range(32):
            A(f"{op} v{vH+r}, v{vAcc+r}, v{vSgn} quad_perm:{perm} row_mask:0xf bank_mask:0xf")
        if q != 3: A("s_branch K2_CK")
    A("K2_CK:")
    for d in range(16):
        A(f"v_cvt_pk_bf16_f32 v{vAcc+d}, v{vAcc+2*d}, v{vAcc+2*d+1}")
    for d in range(16):
        A(f"v_cndmask_b32_dpp v{vK+d}, v{vAcc+d}, v{vK+d}, vcc quad_perm:[0,0,0,0] row_mask:0xf bank_mask:0xf")
    A("K2_CEND:")
    A.stamp_dyn("fl", 4, sPh)
    A(f"s_add_u32 s{sPh}, s{sPh}, 1")
    A(f"s_cmp_lt_u32 s{sPh}, 4")
    if opt.pbar:
        A("s_cbranch_scc0 K2_PDONE")
        A("s_barrier")
        A("s_branch K2_PHASE")
        A("K2_PDONE:")
    else:
        A("s_cbranch_scc1 K2_PHASE")

    if opt.tbar == 1: A("s_barrier")
    A.stamp_both("a3")
    vCa = vAcc
    vCb = (80, 2)
    vWa, vWb = 18, 19
    A(f"v_subrev_u32 v{vWa}, s{sM0}, v{vA0}")
    A(f"v_add_u32 v{vWa}, {L_WST}, v{vWa}")
    A(f"v_xor_b32 v{vWb}, 64, v{vWa}")
    for d in range(16):
        A(f"v_cvt_pk_bf16_f32 v{vH+d}, v{vH+2*d}, v{vH+2*d+1}")
    sets = [(0, vP0, 0), (2, vP0, 1), (1, vH, 0), (4, vH, 1), (3, vK, 1)]
    steps = []
    for ty, X, ch in sets:
        for z in range(4):
            for C in range(2):
                steps.append((ty, X, ch, z, C))
    bufs = [vA, vA + 4, vB]
    def wread(i):
        ty, X, ch, z, C = steps[i]
        bf = bufs[i % 3]
        off = ty * 8192 + z * 2048
        A(f"ds_read_b64_tr_b16 v[{bf}:{bf+1}], v{vWa if C == 0 else vWb} offset:{off}")
        A(f"ds_read_b64_tr_b16 v[{bf+2}:{bf+3}], v{vWa if C == 0 else vWb} offset:{off+1024}")
    A("s_waitcnt lgkmcnt(0)")
    wread(0); wread(1)
    started = set()
    for i, (ty, X, ch, z, C) in enumerate(steps):
        if i + 2 < len(steps):
            wread(i + 2)
            A("s_waitcnt lgkmcnt(4)")
        else:
            A(f"s_waitcnt lgkmcnt({2 * (len(steps) - 1 - i)})")
        D = (vCa + 16 * C) if ch == 0 else vCb[C]
        bf = bufs[i % 3]
        cin = f"v[{D}:{D+15}]" if (ch, C) in started else "0"
        started.add((ch, C))
        A(f"v_mfma_f32_32x32x16_bf16 v[{D}:{D+15}], v[{bf}:{bf+3}], v[{X+4*z}:{X+4*z+3}], {cin}")
    t = vP0
    A(f"v_and_b32 v{t}, 63, v0")
    A(f"v_and_b32 v{t+1}, 3, v{t}")
    A(f"v_cmp_eq_u32 vcc, 0, v{t+1}")
    A(f"v_and_b32 v{t+1}, 31, v{t}")
    A(f"v_lshrrev_b32 v{t+2}, 5, v{t}")
    A(f"v_and_b32 v{t+3}, 7, v{t}")
    A(f"v_xor_b32 v{t+2}, v{t+2}, v{t+3}")
    A(f"v_lshlrev_b32 v{t+2}, 4, v{t+2}")
    A(f"v_lshl_add_u32 v{t+2}, v{t+1}, 7, v{t+2}")
    A(f"v_add_u32 v{t+2}, s{sM0}, v{t+2}")
    A(f"v_xor_b32 v{t+3}, 32, v{t+2}")
    A(f"v_xor_b32 v{t+4}, 64, v{t+2}")
    A(f"v_xor_b32 v{t+5}, 96, v{t+2}")
    A(f"v_lshrrev_b32 v{t+6}, 3, v{t}")
    A(f"v_and_b32 v{t+7}, 1, v{t+6}")
    A(f"v_lshlrev_b32 v{t+7}, 2, v{t+7}")
    A(f"v_xor_b32 v{t+7}, v{t+7}, v{t}")
    A(f"v_and_b32 v{t+7}, 7, v{t+7}")
    A(f"v_lshlrev_b32 v{t+7}, 4, v{t+7}")
    A(f"v_lshl_add_u32 v{t+7}, v{t+6}, 9, v{t+7}")
    A(f"v_add_u32 v{t+7}, s{sM0}, v{t+7}")
    A(f"v_xor_b32 v{t+8}, 16, v{t+7}")
    A(f"v_xor_b32 v{t+9}, 32, v{t+7}")
    A(f"v_xor_b32 v{t+10}, 48, v{t+7}")
    A(f"v_and_b32 v{t+11}, 7, v{t}")
    A(f"v_lshlrev_b32 v{t+11}, 4, v{t+11}")
    A(f"v_lshl_add_u32 v{t+11}, v{t+6}, 9, v{t+11}")
    for C in range(2):
        for r in range(16):
            A(f"v_cndmask_b32 v{vCa+16*C+r}, v{vCb[C]+r}, v{vCa+16*C+r}, vcc")
    if opt.tbar == 2: A("s_barrier")
    A(f"s_cmp_eq_u32 s{sMode}, 0")
    A("s_cbranch_scc1 K2_EPI")
    A(f"s_lshl_b32 s{sT0}, s2, 4")
    A(f"s_add_u32 s{sT0}, s{sT0}, s{sW}")
    A(f"s_lshl_b32 s{sT0}, s{sT0}, 13")
    A(f"s_add_u32 s{sT0}, s{sT0}, {WS_PART}")
    A(f"v_lshl_add_u32 v{t+12}, v{t}, 7, s{sT0}")
    A(f"s_cmp_eq_u32 s{sRound}, 0")
    A("s_cbranch_scc1 K2_NOACC")
    for j in range(8):
        A(f"global_load_dwordx4 v[{vH+4*j}:{vH+4*j+3}], v{t+12}, s[{sWS}:{sWS+1}] offset:{16*j} sc1")
    A("s_waitcnt vmcnt(0)")
    for r in range(32):
        A(f"v_add_f32 v{vCa+r}, v{vCa+r}, v{vH+r}")
    A("K2_NOACC:")
    A(f"s_add_u32 s{sT0}, s{sRound}, 1")
    A(f"s_cmp_ge_u32 s{sT0}, s{sNR}")
    A("s_cbranch_scc1 K2_EPI")
    for j in range(8):
        A(f"global_store_dwordx4 v{t+12}, v[{vCa+4*j}:{vCa+4*j+3}], s[{sWS}:{sWS+1}] offset:{16*j} sc1")
    A("s_branch K2_RNEXT")
    A("K2_RIDLE:")
    if opt.pbar:
        A("s_barrier\ns_barrier\ns_barrier")
    if opt.tbar: A("s_barrier")
    A("K2_RNEXT:")
    A(f"s_cmp_eq_u32 s{sMode}, 0")
    A("s_cbranch_scc1 K2_DONE")
    A(f"s_add_u32 s{sRound}, s{sRound}, 1")
    A(f"s_cmp_ge_u32 s{sRound}, s{sNR}")
    A("s_cbranch_scc1 K2_DONE")
    A(f"s_and_b32 s{sK}, s{sRound}, 3")
    A(f"s_lshr_b32 s{sJB}, s{sRound}, 2")
    A(f"s_lshl_b32 s{sJB}, s{sJB}, 5")
    A("s_waitcnt vmcnt(0) lgkmcnt(0)")
    A("s_barrier")
    A("s_branch K2_ROUND")
    A("K2_EPI:")
    if len(PR) > 5: A(f"s_setprio {PR[5]}")
    A.stamp("s2f")
    for d in range(16):
        A(f"v_cvt_pk_bf16_f32 v{vCa+d}, v{vCa+2*d}, v{vCa+2*d+1}")
    A(f"s_mul_i32 s{sT0}, s{sB}, {BN*512}")
    A(f"s_mul_i32 s{sT1}, s{sW}, {GN*512}")
    A(f"s_add_u32 s{sT0}, s{sT0}, s{sT1}")
    for j in range(4):
        A(f"v_permlane32_swap_b32 v{vCa+4*j}, v{vCa+4*j+2}")
        A(f"v_permlane32_swap_b32 v{vCa+4*j+1}, v{vCa+4*j+3}")
        A(f"ds_write_b128 v{t+2+j}, v[{vCa+4*j}:{vCa+4*j+3}]")
    A(f"s_mov_b32 s{sT1}, 0xbfb8aa3b")
    A(f"s_mov_b32 s{sGB}, 0xffff0000")
    A(f"s_cmp_lt_u32 s{sW}, {NG-1}")
    A("s_cbranch_scc1 K2_FULL")
    A("s_mov_b64 exec, 0xffff")
    A("K2_FULL:")
    d0 = vH; g = vH + 16; tt = vH + 24
    A("s_waitcnt lgkmcnt(0)")
    for u in range(4):
        A(f"ds_read_b128 v[{d0+4*u}:{d0+4*u+3}], v{t+7+u} offset:{128*u}")
    A("s_waitcnt lgkmcnt(3)")
    A(f"buffer_store_dwordx4 v[{d0}:{d0+3}], v{t+11}, s[{sOUT}:{sOUT+3}], s{sT0} offen {opt.k2st}")
    for j in range(4):
        A(f"v_lshlrev_b32 v{g+2*j}, 16, v{d0+j}")
        A(f"v_and_b32 v{g+2*j+1}, s{sGB}, v{d0+j}")
    for j in range(8): A(f"v_mul_f32 v{g+j}, s{sT1}, v{g+j}")
    for j in range(8): A(f"v_exp_f32 v{g+j}, v{g+j}")
    for j in range(8): A(f"v_add_f32 v{g+j}, 1.0, v{g+j}")
    for j in range(8): A(f"v_rcp_f32 v{g+j}, v{g+j}")
    for u in range(1, 4):
        d = d0 + 4 * u
        A(f"s_waitcnt lgkmcnt({3-u})")
        for j in range(4):
            A(f"v_lshlrev_b32 v{tt+2*j}, 16, v{d+j}")
            A(f"v_and_b32 v{tt+2*j+1}, s{sGB}, v{d+j}")
        for j in range(4):
            A(f"v_pk_mul_f32 v[{tt+2*j}:{tt+2*j+1}], v[{tt+2*j}:{tt+2*j+1}], v[{g+2*j}:{g+2*j+1}]")
        for j in range(4):
            A(f"v_cvt_pk_bf16_f32 v{d+j}, v{tt+2*j}, v{tt+2*j+1}")
        A(f"buffer_store_dwordx4 v[{d}:{d+3}], v{t+11}, s[{sOUT}:{sOUT+3}], s{sT0} offen offset:{128*u} {opt.k2st}")
    A("K2_DONE:")
    A.stamp("st")
    A.dump_stamps(sWS, 16, vK)
    A("K2_END:")
    A("s_endpgm")
    if opt.stamps: print("stamps:", A.names)
    kd = f"""
.amdhsa_kernel {k}
  .amdhsa_next_free_vgpr 128
  .amdhsa_next_free_sgpr {102 if opt.stamps else 72}
  .amdhsa_accum_offset 128
  .amdhsa_group_segment_fixed_size 0
  .amdhsa_kernarg_size 96
  .amdhsa_user_sgpr_count 2
  .amdhsa_user_sgpr_kernarg_segment_ptr 1
  .amdhsa_system_sgpr_workgroup_id_x 1
  .amdhsa_float_denorm_mode_32 3
.end_amdhsa_kernel
"""
    return A.text(), kd


def main():
    ap = argparse.ArgumentParser()
    ap.add_argument("-o", default=f"cdna_kernels/{NAME}.s")
    ap.add_argument("--stamps", type=int, default=0)
    ap.add_argument("--k2st", default="sc1")
    ap.add_argument("--slp", type=int, default=2)
    ap.add_argument("--pr", default="32210")
    ap.add_argument("--et", type=int, default=0)
    ap.add_argument("--samp", type=int, default=1)
    ap.add_argument("--wlate", type=int, default=0)
    ap.add_argument("--plain", type=int, default=0)
    ap.add_argument("--pre", type=int, default=0)
    ap.add_argument("--fst", type=int, default=0)
    ap.add_argument("--rsh", type=int, default=0)
    ap.add_argument("--tbar", type=int, default=0)
    ap.add_argument("--prio", type=int, default=2)
    ap.add_argument("--pbar", type=int, default=0)
    ap.add_argument("--aslist", type=int, default=1)
    opt = ap.parse_args()
    hdr = open(f"cdna_kernels/{NAME}.s.ref").read().split("\n")
    head = [l for l in hdr if l.startswith(";") and "@launch" not in l and "Override launch" not in l and "grid=ceil" not in l]
    t2, kd2 = gen(opt)
    out = "\n".join(head) + "\n"
    if opt.aslist:
        out += f"; @launch kernel={NAME}_kernel grid=({NB},1,1) block=(1024,1,1) lds={K2_LDS}\n"
    else:
        out += f"; @launch grid=({NB},1,1) block=(1024,1,1) lds={K2_LDS}\n"
    out += '.amdgcn_target "amdgcn-amd-amdhsa--gfx950"\n.text\n' + t2
    out += '.section .rodata,"a"\n.p2align 6\n' + kd2
    open(opt.o, "w").write(out)


if __name__ == "__main__":
    main()
```

```python
import argparse

NAME = "standalone__tensor_product_equiv_equiformer__graph"
N = 25000
CH = 3200
NCHUNK = 250
BN = 98
NB = 256
NG = 13
GN = 8
CAP = 3776
MINU = 3
SPIN = 400000

WS_SEG = 0x930000
WS_DBG = 0xA00000

L_COEF = 0
L_META = CAP * 8
L_HIST = L_META + CAP * 4
L_BASE = L_HIST + 1024
L_STG = 49152
L_WST = L_STG + NG * 4096
L_FLAG = L_WST + 40960
L_TAG = L_FLAG + 16
K2_LDS = L_FLAG + 64
WS_PART = 0x1000000
assert L_STG % 256 == 0 and L_WST % 256 == 0 and K2_LDS <= 163840

K1_HIST = 0
K1_BASE = 1024
K1_REC = 4096


class Asm:
    def __init__(self, stamps=False, sbase=72):
        self.l = []; self.stamps = stamps; self.ns = 0; self.sbase = sbase; self.names = []
    def stamp(self, name):
        if not self.stamps: return
        if self.sbase + 2 * self.ns + 1 > 101: return
        r = self.sbase + 2 * self.ns
        self(f"s_memrealtime s[{r}:{r+1}]" if self.stamps == 2 else f"s_memtime s[{r}:{r+1}]")
        self.names.append(name); self.ns += 1
    def stamp_both(self, name):
        self.stamp(name)
        if self.stamps == 1:
            self.stamps = 2; self.stamp(name + "rt"); self.stamps = 1
    def stamp_dyn(self, name, n, sidx):
        if not self.stamps: return
        lab = f"SD_{self.ns}"
        for i in range(n):
            self(f"s_cmp_lg_u32 s{sidx}, {i}")
            self(f"s_cbranch_scc1 {lab}_{i}")
            self.stamp(f"{name}{i}")
            self(f"{lab}_{i}:")
    def dump_stamps(self, ws, nwaves, vt):
        if not self.stamps: return
        self("s_waitcnt vmcnt(0) lgkmcnt(0)")
        self("s_mov_b64 exec, -1")
        self(f"v_mov_b32 v{vt}, 0")
        for i in range(self.ns):
            self(f"v_writelane_b32 v{vt}, s{self.sbase + 2*i}, {i}")
        self(f"v_lshrrev_b32 v{vt+1}, 6, v0")
        self(f"s_mul_i32 s{self.sbase}, s2, {nwaves}")
        self(f"v_add_u32 v{vt+1}, s{self.sbase}, v{vt+1}")
        self(f"v_lshlrev_b32 v{vt+1}, 6, v{vt+1}")
        self(f"v_and_b32 v{vt+2}, 63, v0")
        self(f"v_lshl_add_u32 v{vt+1}, v{vt+2}, 2, v{vt+1}")
        self(f"v_add_u32 v{vt+1}, {WS_DBG}, v{vt+1}")
        self(f"s_mov_b64 exec, 0xffff")
        self(f"global_store_dword v{vt+1}, v{vt}, s[{ws}:{ws+1}]")
    def __call__(self, s):
        for ln in s.strip("\n").split("\n"):
            self.l.append("    " + ln.strip() if not ln.strip().endswith(":") else ln.strip())
    def text(self):
        return "\n".join(self.l) + "\n"


def wave_scan(A, v):
    for sh in (1, 2, 4, 8):
        A("s_nop 1")
        A(f"v_add_u32_dpp v{v}, v{v}, v{v} row_shr:{sh} row_mask:0xf bank_mask:0xf bound_ctrl:0")
    A("s_nop 1")
    A(f"v_add_u32_dpp v{v}, v{v}, v{v} row_bcast:15 row_mask:0xa bank_mask:0xf")
    A("s_nop 1")
    A(f"v_add_u32_dpp v{v}, v{v}, v{v} row_bcast:31 row_mask:0xc bank_mask:0xf")


def srd(A, d, lo, hi, nbytes):
    A(f"s_mov_b32 s{d}, s{lo}")
    A(f"s_and_b32 s{d+1}, s{hi}, 0xffff")
    A(f"s_mov_b32 s{d+2}, {nbytes}")
    A(f"s_mov_b32 s{d+3}, 0x00020000")


def emit_tag_poll(A, lab):
    A("s_mov_b32 s36, 0")
    A("v_mov_b32 v62, 0")
    A("global_load_dword v63, v62, s[38:39]")
    A(f"s_branch {lab}_W")
    A(f"{lab}_L:")
    A("global_load_dword v63, v62, s[38:39] sc1")
    A(f"{lab}_W:")
    A("s_waitcnt vmcnt(0)")
    A("v_readfirstlane_b32 s37, v63")
    A("s_add_u32 s36, s36, 1")
    A(f"s_cmp_gt_u32 s36, {SPIN}")
    A("s_cbranch_scc1 K2_END")
    A("s_cmp_lg_u32 s37, 0")
    A(f"s_cbranch_scc1 {lab}_D")
    A("s_sleep 1")
    A(f"s_branch {lab}_L")
    A(f"{lab}_D:")
    A(f"v_mov_b32 v62, {L_TAG}")
    A("ds_write_b32 v62, v63")


def emit_scan(A):
    A(f"ds_read_b128 v[8:11], v1 offset:{K1_HIST}")
    A("s_waitcnt lgkmcnt(0)")
    A("v_add_u32 v48, v8, v9")
    A("v_add_u32 v49, v48, v10")
    A("v_add_u32 v50, v49, v11")
    A("v_mov_b32 v51, v50")
    wave_scan(A, 51)
    A("v_sub_u32 v52, v51, v50")
    A("v_add_u32 v53, v52, v8")
    A("v_add_u32 v54, v52, v48")
    A("v_add_u32 v55, v52, v49")


def w_load(A):
    W = 64
    A(f"v_lshlrev_b32 v{W+20}, 4, v0")
    A(f"v_lshrrev_b32 v{W+21}, 3, v0")
    A(f"v_lshlrev_b32 v{W+21}, 1, v{W+21}")
    A(f"v_and_b32 v{W+22}, 0x1ff0, v{W+20}")
    A(f"v_add_u32 v{W+22}, 16384, v{W+22}")
    A(f"v_and_b32 v{W+23}, 0x7e, v{W+21}")
    A(f"global_load_dwordx4 v[{W}:{W+3}], v{W+20}, s[66:67]")
    A(f"global_load_dwordx4 v[{W+4}:{W+7}], v{W+20}, s[68:69]")
    A(f"global_load_dwordx4 v[{W+8}:{W+11}], v{W+22}, s[68:69]")
    A(f"global_load_ushort v{W+12}, v{W+21}, s[64:65]")
    A(f"global_load_ushort v{W+13}, v{W+21}, s[64:65] offset:256")
    A(f"global_load_ushort v{W+14}, v{W+23}, s[64:65] offset:512")
    A(f"v_bfe_u32 v{W+16}, v0, 4, 1")
    A(f"v_lshlrev_b32 v{W+16}, 6, v{W+16}")
    A(f"v_xor_b32 v{W+16}, v{W+16}, v{W+20}")
    A(f"v_add_u32 v{W+16}, {L_WST}, v{W+16}")


def w_stage(A, lab):
    W = 64
    A("s_mov_b32 s7, 0xffff0000")
    for c in range(3):
        if c == 2:
            A("s_cmp_ge_u32 s6, 512")
            A(f"s_cbranch_scc1 {lab}")
        A(f"v_lshlrev_b32 v{W+12+c}, 16, v{W+12+c}")
        for d in range(4):
            r = W + 4 * c + d
            A(f"v_lshlrev_b32 v{W+18}, 16, v{r}")
            A(f"v_and_b32 v{W+19}, s7, v{r}")
            A(f"v_mul_f32 v{W+18}, v{W+12+c}, v{W+18}")
            A(f"v_mul_f32 v{W+19}, v{W+12+c}, v{W+19}")
            A(f"v_cvt_pk_bf16_f32 v{r}, v{W+18}, v{W+19}")
        A(f"ds_write_b128 v{W+16}, v[{W+4*c}:{W+4*c+3}] offset:{16384*c}")
    A(f"{lab}:")


def emit_front(A, opt):
    A("s_load_dwordx8 s[8:15], s[0:1], 0x0")
    A("s_load_dwordx2 s[16:17], s[0:1], 0x20")
    A("s_load_dwordx2 s[26:27], s[0:1], 0x58")
    A("s_load_dwordx2 s[38:39], s[0:1], 0x50")
    A("v_readfirstlane_b32 s6, v0")
    A("v_lshlrev_b32 v1, 2, v0")
    A("v_mov_b32 v2, 0")
    A(f"s_cmp_ge_u32 s2, {NCHUNK}")
    A("s_cbranch_scc1 K1_IDLE")
    A("ds_write_b32 v1, v2")
    A("s_cmp_ge_u32 s6, 832")
    A("s_cbranch_scc1 K1_AUX")
    A(f"s_mul_i32 s3, s2, {CH*4}")
    A("v_lshlrev_b32 v3, 4, v0")
    A("v_add_u32 v3, s3, v3")
    A("v_lshrrev_b32 v4, 1, v3")
    A("v_add_u32 v5, v3, v4")
    A(f"v_cmp_gt_u32 vcc, {CH//4}, v0")
    A("s_waitcnt lgkmcnt(0)")
    A("s_and_saveexec_b64 s[28:29], vcc")
    A("s_mov_b64 s[30:31], exec")
    A(f"global_load_dwordx4 v[8:11], v3, s[16:17] {opt.k1ld}")
    if opt.fst: A.stamp("f_iss")
    A("s_barrier")
    if opt.fst: A.stamp("f_b1")
    A(f"global_load_dwordx4 v[12:15], v3, s[14:15] {opt.k1ld}")
    A(f"global_load_dwordx2 v[16:17], v4, s[12:13] {opt.k1ld}")
    A(f"global_load_dwordx4 v[18:21], v5, s[10:11] {opt.k1ld}")
    A(f"global_load_dwordx2 v[22:23], v5, s[10:11] offset:16 {opt.k1ld}")
    A("s_mov_b32 s4, 42800")
    A("v_mov_b32 v60, 1")
    if opt.fst: A.stamp("f_iss2")
    A("s_waitcnt vmcnt(4)")
    if opt.fst: A.stamp("f_dst")
    for i in range(4):
        A(f"v_mul_u32_u24 v{24+i}, s4, v{8+i}")
        A(f"v_lshrrev_b32 v{24+i}, 22, v{24+i}")
        A(f"v_lshlrev_b32 v{28+i}, 2, v{24+i}")
        A(f"ds_add_rtn_u32 v{32+i}, v{28+i}, v60")
    for i in range(4):
        A(f"v_mul_u32_u24 v{36+i}, {BN}, v{24+i}")
        A(f"v_sub_u32 v{36+i}, v{8+i}, v{36+i}")
        A(f"v_lshrrev_b32 v{40+i}, 3, v{36+i}")
        A(f"v_and_b32 v{44+i}, 7, v{36+i}")
        A(f"v_lshlrev_b32 v{44+i}, 18, v{44+i}")
        A(f"v_lshl_or_b32 v{44+i}, v{40+i}, 28, v{44+i}")
    A("s_mov_b64 exec, -1")
    A("v_and_b32 v1, 63, v0")
    A("v_lshlrev_b32 v1, 4, v1")
    A("s_waitcnt lgkmcnt(0)")
    A("s_barrier")
    if opt.fst: A.stamp("f_b2")
    emit_scan(A)
    A(f"ds_write_b128 v1, v[52:55] offset:{K1_BASE}")
    A("s_mov_b64 exec, s[30:31]")
    for i in range(4):
        A(f"ds_read_b32 v{24+i}, v{28+i} offset:{K1_BASE}")
    for i in range(4):
        A(f"s_waitcnt lgkmcnt({3-i})")
        A(f"v_add_u32 v{24+i}, v{24+i}, v{32+i}")
        A(f"v_mul_u32_u24 v{24+i}, 12, v{24+i}")
        A(f"v_add_u32 v{24+i}, {K1_REC}, v{24+i}")
    A("s_waitcnt vmcnt(3)")
    if opt.fst: A.stamp("f_src")
    for i in range(4):
        A(f"v_mul_u32_u24 v{36+i}, 41, v{12+i}")
        A(f"v_lshrrev_b32 v{36+i}, {16+opt.rsh}, v{36+i}")
        A(f"v_lshl_or_b32 v{36+i}, v{36+i}, 24, v{12+i}")
        A(f"v_or_b32 v{36+i}, v{44+i}, v{36+i}")
        A(f"ds_write_b32 v{24+i}, v{36+i} offset:8")
    A("s_waitcnt vmcnt(0)")
    if opt.fst: A.stamp("f_all")
    A("s_mov_b32 s7, 0xffff0000")
    A("v_lshlrev_b32 v40, 16, v16")
    A("v_and_b32 v41, s7, v16")
    A("v_lshlrev_b32 v42, 16, v17")
    A("v_and_b32 v43, s7, v17")
    for i in range(4):
        for j in range(3):
            h = 3 * i + j
            reg = 18 + h // 2
            A(f"v_lshlrev_b32 v{44+j}, 16, v{reg}" if h % 2 == 0 else f"v_and_b32 v{44+j}, s7, v{reg}")
            A(f"v_mul_f32 v{44+j}, v{40+i}, v{44+j}")
        A(f"v_cvt_pk_bf16_f32 v{48+2*i}, v{40+i}, v44")
        A(f"v_cvt_pk_bf16_f32 v{49+2*i}, v45, v46")
        A(f"ds_write2_b32 v{24+i}, v{48+2*i}, v{49+2*i} offset1:1")
    A("s_mov_b64 exec, -1")
    A("s_branch K1_JOIN")

    A("K1_AUX:")
    A("v_and_b32 v1, 63, v0")
    A("v_lshlrev_b32 v1, 4, v1")
    if opt.cpf:
        A("s_cmp_lg_u32 s6, 896")
        A("s_cbranch_scc1 K1_NOCPF")
        A(f"s_cmp_ge_u32 s2, {opt.cpf}")
        A("s_cbranch_scc1 K1_NOCPF")
        A("s_getpc_b64 s[34:35]")
        A("K1_PC:")
        A(f"s_sub_u32 s34, s34, K1_PC-{NAME}_kernel")
        A("s_subb_u32 s35, s35, 0")
        A("v_lshlrev_b32 v61, 3, v1")
        A(f"v_min_u32 v60, K2_CODE_END-{NAME}_kernel-4, v61")
        A("global_load_dword v59, v60, s[34:35]")
        A("v_add_u32 v61, 8192, v61")
        A(f"v_min_u32 v60, K2_CODE_END-{NAME}_kernel-4, v61")
        A("global_load_dword v59, v60, s[34:35]")
        A("K1_NOCPF:")
    A("s_waitcnt lgkmcnt(0)")
    A("s_cmp_lg_u32 s6, 960")
    A("s_cbranch_scc1 K1_AUX1")
    A("s_cmp_lg_u32 s2, 0")
    A("s_cbranch_scc1 K1_AUX1")
    A("s_memrealtime s[36:37]")
    A("s_waitcnt lgkmcnt(0)")
    A("s_or_b32 s36, s36, 1")
    A("v_mov_b32 v63, s36")
    A("s_mov_b64 exec, 1")
    A("global_store_dword v2, v63, s[38:39] sc1")
    A("s_mov_b64 exec, -1")
    A("K1_AUX1:")
    A("s_barrier")
    A("s_barrier")
    A("s_cmp_lg_u32 s6, 960")
    A("s_cbranch_scc1 K1_AUX2")
    emit_tag_poll(A, "K1_TP")
    A("s_branch K1_JOIN")
    A("K1_AUX2:")
    if opt.et:
        A("s_cmp_lg_u32 s6, 896")
        A("s_cbranch_scc1 K1_AUX3")
        A(f"s_mul_i32 s3, s2, {392*128}")
        A("v_lshl_add_u32 v61, v1, 3, s3")
        for kk in range(opt.et):
            A("global_load_dword v60, v61, s[8:9]")
            A("v_add_u32 v61, 8192, v61")
        A("s_branch K1_JOIN")
        A("K1_AUX3:")
    A("s_cmp_lg_u32 s6, 832")
    A("s_cbranch_scc1 K1_JOIN")
    emit_scan(A)
    for i in range(4):
        A(f"v_lshl_or_b32 v{56+i}, v{8+i}, 12, v{52+i}")
    A("K1_JOIN:")
    if not opt.wlate: w_load(A)
    A("v_lshlrev_b32 v6, 4, v0")
    A(f"s_mul_i32 s3, s2, {CH*12}")
    A("v_add_u32 v2, s3, v6")
    A("v_add_u32 v3, 16384, v2")
    A("v_add_u32 v4, 32768, v2")
    A(f"v_cmp_gt_u32 vcc, {CH*12//16 - 2048}, v0")
    A("s_waitcnt lgkmcnt(0)")
    A("s_barrier")
    A.stamp("bar3")
    A(f"ds_read_b128 v[8:11], v6 offset:{K1_REC}")
    A(f"ds_read_b128 v[12:15], v6 offset:{K1_REC + 16384}")
    A(f"ds_read_b128 v[16:19], v6 offset:{K1_REC + 32768}")
    A("s_waitcnt lgkmcnt(2)")
    A("global_store_dwordx4 v2, v[8:11], s[26:27] sc1")
    A("s_waitcnt lgkmcnt(1)")
    A("global_store_dwordx4 v3, v[12:15], s[26:27] sc1")
    A("s_and_saveexec_b64 s[28:29], vcc")
    A("s_cbranch_execz K1_FIN")
    A("s_waitcnt lgkmcnt(0)")
    A("global_store_dwordx4 v4, v[16:19], s[26:27] sc1")
    A("K1_FIN:")
    A("s_mov_b64 exec, -1")
    if not opt.wlate:
        A("s_waitcnt vmcnt(2)")
        w_stage(A, "K1_WS1")
    A("s_waitcnt vmcnt(0) lgkmcnt(0)")
    A("s_barrier")
    A.stamp("pub")
    A("s_cmp_lg_u32 s6, 832")
    A("s_cbranch_scc1 K1_DONE")
    A(f"v_mov_b32 v62, {L_TAG}")
    A("ds_read_b32 v49, v62")
    A("s_lshl_b32 s3, s2, 11")
    A(f"s_add_u32 s3, s3, {WS_SEG}")
    A("v_lshl_add_u32 v2, v1, 1, s3")
    A("s_waitcnt lgkmcnt(0)")
    A("v_lshlrev_b32 v62, 23, v49")
    A("v_and_b32 v62, 0xff000000, v62")
    A("v_or_b32 v48, v62, v56")
    A("v_or_b32 v50, v62, v57")
    A("v_or_b32 v52, v62, v58")
    A("v_or_b32 v54, v62, v59")
    A("v_mov_b32 v51, v49")
    A("v_mov_b32 v53, v49")
    A("v_mov_b32 v55, v49")
    A("global_store_dwordx4 v2, v[48:51], s[26:27] sc1")
    A("global_store_dwordx4 v2, v[52:55], s[26:27] offset:16 sc1")
    A("s_branch K1_DONE")
    A("K1_IDLE:")
    A("s_waitcnt lgkmcnt(0)")
    if not opt.wlate:
        w_load(A)
        A("s_waitcnt vmcnt(0)")
        w_stage(A, "K1_WS2")
    A("s_cmp_lg_u32 s6, 960")
    A("s_cbranch_scc1 K1_IDLE1")
    A("s_mov_b32 s36, 0")
    A("v_mov_b32 v62, 0")
    A("s_branch K1_TW_L")
    emit_tag_poll(A, "K1_TW")
    A("K1_IDLE1:")
    A("s_waitcnt lgkmcnt(0)")
    A("s_barrier")
    A("K1_DONE:")
    if opt.wlate:
        w_load(A)
        A("s_waitcnt vmcnt(0)")
        w_stage(A, "K1_WS1")


def gen(opt):
    A = Asm(opt.stamps, 72)
    k = f"{NAME}_kernel"
    sX, sREC, sOUT = 4, 8, 12
    sW, sNU, sI, sQn, sM0, s512, sB, sPh = range(16, 24)
    sT0, sT1, sGB, sTag2 = 26, 27, 28, 29
    sMode, sRound, sNR, sJB, sK, sCM = 30, 31, 32, 33, 34, 35
    sTag = 39
    sEX = 40
    sWS = 56
    sP = 58
    sWP = 64
    (vDOff, vMI, vMC, vMI0, vMC0, vB0, vB1, vBL0, vA0, vA1, vMy, vSgn, vJunk) = range(1, 14)
    vSrc = 14
    vNl = 16
    vA = 20
    vB = 28
    vAcc = 32
    vH = 64
    vK = 96
    vP0 = 112
    vT = 96; vS = 104; vLane = 112; vR = 114

    A(f".globl {k}\n.p2align 8\n.type {k},@function\n{k}:")
    A(f"s_cmp_ge_u32 s2, {NB}")
    A("s_cbranch_scc1 K2_END")
    A.stamp("entry")
    A(f"s_load_dwordx2 s[{sWS}:{sWS+1}], s[0:1], 0x58")
    A(f"s_load_dwordx2 s[{sP}:{sP+1}], s[0:1], 0x0")
    A(f"s_load_dwordx2 s[{sP+2}:{sP+3}], s[0:1], 0x48")
    A(f"s_load_dwordx2 s[{sWP}:{sWP+1}], s[0:1], 0x28")
    A(f"s_load_dwordx2 s[{sWP+2}:{sWP+3}], s[0:1], 0x30")
    A(f"s_load_dwordx2 s[{sWP+4}:{sWP+5}], s[0:1], 0x38")
    emit_front(A, opt)
    A(f"v_mov_b32 v{vT+1}, {L_TAG}")
    A(f"ds_read_b32 v{vT+1}, v{vT+1}")
    A(f"s_lshr_b32 s{sW}, s6, 6")
    A(f"s_and_b32 s{sT0}, s2, 7")
    A(f"s_lshr_b32 s{sT1}, s2, 3")
    A(f"s_lshl_b32 s{sB}, s{sT0}, 5")
    A(f"s_add_u32 s{sB}, s{sB}, s{sT1}")
    for r in (sMode, sRound, sJB, sK, sCM):
        A(f"s_mov_b32 s{r}, 0")
    A(f"s_movk_i32 s{s512}, 512")
    srd(A, sX, sP, sP + 1, N * 512)
    srd(A, sOUT, sP + 2, sP + 3, N * 512)
    srd(A, sREC, sWS, sWS + 1, NCHUNK * CH * 12)
    A("s_waitcnt lgkmcnt(0)")
    A(f"v_readfirstlane_b32 s{sTag}, v{vT+1}")
    A("s_nop 3")
    A(f"s_lshl_b32 s{sTag2}, s{sTag}, 23")
    A(f"s_and_b32 s{sTag2}, s{sTag2}, 0xff000000")

    A("K2_ROUND:")
    A(f"v_lshlrev_b32 v{vT+2}, 4, v0")
    A(f"v_and_b32 v{vLane}, 63, v0")
    A(f"s_lshl_b32 s{sT0}, s{sB}, 3")
    A(f"s_add_u32 s{sT0}, s{sT0}, {WS_SEG}")
    A(f"v_and_b32 v{vT}, 0x3f0, v0")
    A(f"v_lshl_add_u32 v{vSrc}, v{vT}, 9, s{sT0}")
    A(f"v_add_u32 v{vSrc+1}, 4096, v{vSrc}")
    A(f"v_cmp_gt_u32 vcc, {CAP*4//16}, v0")
    A(f"v_mov_b32 v{vT+3}, 0")
    A(f"v_mov_b32 v{vT+4}, {L_FLAG}")
    for i in range(4):
        A(f"v_cndmask_b32 v{vA+i}, 0, -1, vcc")
    A(f"ds_write_b128 v{vT+2}, v[{vA}:{vA+3}] offset:{L_META}")
    A(f"ds_write_b32 v{vT+4}, v{vT+3}")
    A(f"v_and_b32 v{vA}, 7, v{vLane}")
    A(f"v_bfe_u32 v{vA+1}, v{vLane}, 4, 1")
    A(f"v_lshlrev_b32 v{vA+2}, 2, v{vA+1}")
    A(f"v_xor_b32 v{vA}, v{vA}, v{vA+2}")
    A(f"v_lshlrev_b32 v{vDOff}, 4, v{vA}")
    A(f"v_lshrrev_b32 v{vA}, 5, v{vLane}")
    A(f"v_bfe_u32 v{vA+2}, v{vLane}, 2, 2")
    A(f"v_lshl_add_u32 v{vA+3}, v{vA}, 2, v{vA+2}")
    A(f"v_and_b32 v{vMI0}, 56, v{vLane}")
    A(f"v_lshlrev_b32 v{vMC0}, 3, v{vA+3}")
    A(f"v_lshlrev_b32 v{vBL0}, 4, v{vA+3}")
    A(f"v_and_b32 v{vA+4}, 3, v{vLane}")
    A(f"v_lshl_add_u32 v{vMy}, v{vA+1}, 2, v{vA+4}")
    A(f"v_lshlrev_b32 v{vMy}, 2, v{vMy}")
    A(f"s_lshl_b32 s{sM0}, s{sW}, 12")
    A(f"s_add_u32 s{sM0}, s{sM0}, {L_STG}")
    A(f"v_lshlrev_b32 v{vA0}, 7, v{vA+3}")
    A(f"v_bfe_u32 v{vA+5}, v{vLane}, 3, 1")
    A(f"v_lshl_add_u32 v{vA0}, v{vA+5}, 6, v{vA0}")
    A(f"v_lshl_add_u32 v{vA0}, v{vA+1}, 5, v{vA0}")
    A(f"v_lshl_add_u32 v{vA0}, v{vA+4}, 3, v{vA0}")
    A(f"v_add_u32 v{vA0}, s{sM0}, v{vA0}")
    A(f"v_xor_b32 v{vA1}, 64, v{vA0}")
    A(f"v_and_b32 v{vA}, 15, v{vLane}")
    A(f"v_lshrrev_b32 v{vT}, 2, v{vT}")
    A(f"v_mul_u32_u24 v{vT+1}, {CH}, v{vT}")
    A(f"v_add_u32 v{vT+1}, v{vT+1}, v{vA}")
    A(f"v_add_u32 v{vT+1}, s{sJB}, v{vT+1}")
    A(f"v_add_u32 v{vT+7}, s{sJB}, v{vA}")
    A(f"v_cmp_gt_u32 vcc, {NCHUNK-2}, v{vT}")
    A(f"v_lshrrev_b32 v{vA+3}, 2, v{vT}")
    A(f"v_cmp_eq_u32 s[{sP+4}:{sP+5}], 62, v{vA+3}")
    for r in range(4):
        A(f"v_mov_b32 v{vS+r}, 0")
    A(f"v_cndmask_b32 v{vSrc+1}, v{vSrc}, v{vSrc+1}, vcc")
    A(f"s_or_b64 s[{sEX}:{sEX+1}], vcc, s[{sP+4}:{sP+5}]")
    A(f"s_mov_b64 s[{sEX+2}:{sEX+3}], vcc")
    A(f"s_mov_b32 s{sI}, 0")
    P = vR
    if opt.xpos == 1:
        A(f"s_mul_i32 s{sT0}, s2, {392*128}")
        if opt.et:
            A(f"s_cmp_lt_u32 s2, {NCHUNK}")
            A(f"s_cselect_b32 s{sT1}, {opt.et*8192}, 0")
            A(f"s_add_u32 s{sT0}, s{sT0}, s{sT1}")
            A(f"s_lshr_b32 s{sT1}, s{sT1}, 7")
            A(f"s_sub_u32 s{sT1}, 392, s{sT1}")
            A(f"v_cmp_gt_u32 vcc, s{sT1}, v0")
        else:
            A(f"v_cmp_gt_u32 vcc, {opt.xt}, v0")
        A(f"v_lshlrev_b32 v{vT+5}, 7, v0")
        A(f"v_mov_b32 v{vT+6}, 0x40000000")
        A(f"v_cndmask_b32 v{vT+5}, v{vT+6}, v{vT+5}, vcc")
        A(f"buffer_load_dword v{vJunk}, v{vT+5}, s[{sX}:{sX+3}], s{sT0} offen")
    if opt.samp:
        A(f"s_and_b32 s{sT0}, s{sW}, 7")
        A(f"s_lshl_b32 s{sT1}, s{sW}, 4")
        A(f"s_add_u32 s{sT0}, s{sT0}, s{sT1}")
        A(f"s_lshl_b32 s{sT0}, s{sT0}, 11")
        A(f"s_lshl_b32 s{sT1}, s{sB}, 3")
        A(f"s_add_u32 s{sT0}, s{sT0}, s{sT1}")
        A(f"s_add_u32 s{sT0}, s{sT0}, {WS_SEG + 4}")
        A(f"v_mov_b32 v{P+8}, s{sT0}")
        A("s_mov_b64 exec, 1")
        A("K2_SAMP:")
        A(f"global_load_dword v{P}, v{P+8}, s[{sWS}:{sWS+1}] sc1")
        A(f"s_add_u32 s{sI}, s{sI}, 1")
        A(f"s_cmp_gt_u32 s{sI}, {SPIN}")
        A("s_cbranch_scc1 K2_END")
        A("s_waitcnt vmcnt(0)")
        A(f"v_readfirstlane_b32 s{sT0}, v{P}")
        A("s_nop 3")
        A(f"s_cmp_eq_u32 s{sT0}, s{sTag}")
        A("s_cbranch_scc1 K2_SAMPD")
        A(f"s_sleep {opt.slp}")
        A("s_branch K2_SAMP")
        A("K2_SAMPD:")
        A("s_barrier")
    A(f"s_mov_b64 exec, s[{sEX}:{sEX+1}]")
    if opt.pre: A(f"s_sleep {opt.pre}")
    if opt.plain:
        A(f"global_load_dwordx2 v[{P}:{P+1}], v{vSrc}, s[{sWS}:{sWS+1}] sc0")
        A(f"global_load_dwordx2 v[{P+2}:{P+3}], v{vSrc}, s[{sWS}:{sWS+1}] offset:2048 sc0")
        A(f"global_load_dwordx2 v[{P+4}:{P+5}], v{vSrc+1}, s[{sWS}:{sWS+1}] sc0")
        A(f"global_load_dwordx2 v[{P+6}:{P+7}], v{vSrc+1}, s[{sWS}:{sWS+1}] offset:2048 sc0")
        A("s_branch K2_POLLW")
    A("K2_POLL:")
    A(f"global_load_dwordx2 v[{P}:{P+1}], v{vSrc}, s[{sWS}:{sWS+1}] sc1")
    A(f"global_load_dwordx2 v[{P+2}:{P+3}], v{vSrc}, s[{sWS}:{sWS+1}] offset:2048 sc1")
    A(f"global_load_dwordx2 v[{P+4}:{P+5}], v{vSrc+1}, s[{sWS}:{sWS+1}] sc1")
    A(f"global_load_dwordx2 v[{P+6}:{P+7}], v{vSrc+1}, s[{sWS}:{sWS+1}] offset:2048 sc1")
    A("K2_POLLW:")
    A(f"s_add_u32 s{sI}, s{sI}, 1")
    A(f"s_cmp_gt_u32 s{sI}, {SPIN}")
    A("s_cbranch_scc1 K2_END")
    A("s_waitcnt vmcnt(0)")
    for r in range(4):
        A(f"v_xor_b32 v{P+2*r+1}, s{sTag}, v{P+2*r+1}")
        A(f"v_xor_b32 v{P+2*r}, s{sTag2}, v{P+2*r}")
    A(f"v_or3_b32 v{P+1}, v{P+1}, v{P+3}, v{P+5}")
    A(f"v_or3_b32 v{P+3}, v{P}, v{P+2}, v{P+4}")
    A(f"v_or_b32 v{P+3}, v{P+3}, v{P+6}")
    A(f"v_lshrrev_b32 v{P+3}, 24, v{P+3}")
    A(f"v_or3_b32 v{P+1}, v{P+1}, v{P+7}, v{P+3}")
    A(f"v_cmp_ne_u32 vcc, 0, v{P+1}")
    A("s_and_b64 exec, exec, vcc")
    A("s_cbranch_execz K2_GOT")
    A(f"s_sleep {opt.slp}")
    A("s_branch K2_POLL")
    A("K2_GOT:")
    A(f"s_mov_b64 exec, s[{sEX}:{sEX+1}]")
    A(f"v_mov_b32 v{vS}, v{P}")
    A(f"v_mov_b32 v{vS+1}, v{P+2}")
    A(f"s_mov_b64 exec, s[{sEX+2}:{sEX+3}]")
    A(f"v_mov_b32 v{vS+2}, v{P+4}")
    A(f"v_mov_b32 v{vS+3}, v{P+6}")
    A("s_mov_b64 exec, -1")
    A.stamp("seg")
    for r in range(4):
        A(f"v_lshrrev_b32 v{vS+4+r}, 12, v{vS+r}")
        A(f"v_and_b32 v{vS+r}, 0xfff, v{vS+r}")
        A(f"v_add_u32 v{vA+r}, v{vT+1}, v{vS+r}")
        A(f"v_mul_u32_u24 v{vA+r}, 12, v{vA+r}")
        A(f"v_add_u32 v{vT+5}, {r}, v{vT}")
        A(f"v_and_b32 v{vT+5}, s{sCM}, v{vT+5}")
        A(f"v_cmp_eq_u32 vcc, s{sK}, v{vT+5}")
        A(f"v_sub_u32 v{vT+6}, v{vS+4+r}, v{vT+7}")
        A("s_nop 0")
        A(f"v_cndmask_b32 v{vT+6}, 0, v{vT+6}, vcc")
        A(f"v_cmp_lt_i32 s[{sEX+2*r}:{sEX+2*r+1}], 0, v{vT+6}")
        A(f"v_cmp_lt_i32 s[{sEX+8+2*r}:{sEX+8+2*r+1}], 16, v{vT+6}")
    A(f"s_mov_b32 s{sT0}, {CH*12}")
    A(f"s_mov_b32 s{sT1}, {2*CH*12}")
    A(f"s_mov_b32 s{sGB}, {3*CH*12}")
    so = ["0", f"s{sT0}", f"s{sT1}", f"s{sGB}"]
    for i in range(8):
        r, it = i % 4, i // 4
        A(f"s_mov_b64 exec, s[{sEX+2*i}:{sEX+2*i+1}]")
        A(f"s_cbranch_execz K2_LD{i}")
        A(f"buffer_load_dwordx3 v[{vAcc+4*i}:{vAcc+4*i+2}], v{vA+r}, s[{sREC}:{sREC+3}], {so[r]} offen offset:{192*it} sc1")
        A(f"K2_LD{i}:")
    A("s_mov_b64 exec, -1")
    A("s_waitcnt lgkmcnt(0)")
    A("s_barrier")
    if opt.xpos == 0:
        A(f"s_mul_i32 s{sT0}, s2, {392*128}")
        if opt.et:
            A(f"s_cmp_lt_u32 s2, {NCHUNK}")
            A(f"s_cselect_b32 s{sT1}, {opt.et*8192}, 0")
            A(f"s_add_u32 s{sT0}, s{sT0}, s{sT1}")
            A(f"s_lshr_b32 s{sT1}, s{sT1}, 7")
            A(f"s_sub_u32 s{sT1}, 392, s{sT1}")
            A(f"v_cmp_gt_u32 vcc, s{sT1}, v0")
        else:
            A(f"v_cmp_gt_u32 vcc, {opt.xt}, v0")
        A(f"v_lshlrev_b32 v{vT+5}, 7, v0")
        A(f"v_mov_b32 v{vT+6}, 0x40000000")
        A(f"v_cndmask_b32 v{vT+5}, v{vT+6}, v{vT+5}, vcc")
        A(f"buffer_load_dword v{vJunk}, v{vT+5}, s[{sX}:{sX+3}], s{sT0} offen")
    A(f"v_max_u32 v{vT+5}, v{vS+4}, v{vS+5}")
    A(f"v_max3_u32 v{vT+5}, v{vT+5}, v{vS+6}, v{vS+7}")
    A(f"v_cmp_lt_u32 vcc, 32, v{vT+5}")
    A(f"s_and_saveexec_b64 s[{sP+4}:{sP+5}], vcc")
    A("s_cbranch_execz K2_NOOVF")
    A(f"ds_max_u32 v{vT+4}, v{vT+5}")
    A("K2_NOOVF:")
    A("s_mov_b64 exec, -1")
    A(f"v_mov_b32 v{vT}, 1")
    A(f"s_waitcnt vmcnt({1 if opt.xpos == 0 else 0})")
    A.stamp("rec")
    for i in range(8):
        A(f"s_mov_b64 exec, s[{sEX+2*i}:{sEX+2*i+1}]")
        A(f"s_cbranch_execz K2_AT{i}")
        A(f"v_lshrrev_b32 v{vA+i}, 24, v{vAcc+4*i+2}")
        A(f"v_lshlrev_b32 v{vA+i}, 2, v{vA+i}")
        A(f"ds_add_rtn_u32 v{vAcc+4*i+3}, v{vA+i}, v{vT} offset:{L_HIST}")
        A(f"K2_AT{i}:")
    A("s_mov_b64 exec, -1")
    A("s_waitcnt lgkmcnt(0)")
    A("s_barrier")
    A.stamp("bar2")
    A(f"v_lshlrev_b32 v{vT}, 4, v{vLane}")
    A(f"ds_read_b128 v[{vB}:{vB+3}], v{vT} offset:{L_HIST}")
    A(f"ds_read_b32 v{vT+4}, v{vT+4}")
    A("s_waitcnt lgkmcnt(0)")
    A(f"v_add_u32 v{vT+1}, v{vB}, v{vB+1}")
    A(f"v_add_u32 v{vT+2}, v{vT+1}, v{vB+2}")
    A(f"v_add_u32 v{vT+3}, v{vT+2}, v{vB+3}")
    A("s_nop 1")
    A(f"v_add_u32_dpp v{vS}, v{vT+3}, v{vT+3} quad_perm:[1,0,3,2] row_mask:0xf bank_mask:0xf")
    A("s_nop 1")
    A(f"v_add_u32_dpp v{vS}, v{vS}, v{vS} quad_perm:[2,3,0,1] row_mask:0xf bank_mask:0xf")
    A(f"v_and_b32 v{vS+3}, 3, v{vLane}")
    A(f"v_cmp_eq_u32 vcc, 3, v{vS+3}")
    A(f"v_add_u32 v{vS+1}, 15, v{vS}")
    A(f"v_and_b32 v{vS+1}, -16, v{vS+1}")
    A(f"v_max_u32 v{vS+1}, {MINU*16}, v{vS+1}")
    A(f"v_sub_u32 v{vS+2}, v{vS+1}, v{vS}")
    A(f"v_cndmask_b32 v{vS+2}, 0, v{vS+2}, vcc")
    A(f"v_add_u32 v{vT+3}, v{vT+3}, v{vS+2}")
    A(f"v_mov_b32 v{vS}, v{vT+3}")
    wave_scan(A, vS)
    A(f"v_sub_u32 v{vS}, v{vS}, v{vT+3}")
    A(f"v_add_u32 v{vB+1}, v{vS}, v{vB}")
    A(f"v_add_u32 v{vB+2}, v{vS}, v{vT+1}")
    A(f"v_add_u32 v{vB+3}, v{vS}, v{vT+2}")
    A(f"v_mov_b32 v{vB}, v{vS}")
    A(f"ds_write_b128 v{vT}, v[{vB}:{vB+3}] offset:{L_BASE}")
    A(f"s_lshl_b32 s{sT0}, s{sW}, 2")
    A(f"v_readlane_b32 s{sT1}, v{vS}, {4*NG}")
    A(f"v_readfirstlane_b32 s{sP+4}, v{vT+4}")
    A(f"v_readlane_b32 s{sGB}, v{vS}, s{sT0}")
    A(f"v_readlane_b32 s{sNU}, v{vS+1}, s{sT0}")
    for i in range(8):
        A(f"s_mov_b64 exec, s[{sEX+2*i}:{sEX+2*i+1}]")
        A(f"s_cbranch_execz K2_RB{i}")
        A(f"ds_read_b32 v{vA+i}, v{vA+i} offset:{L_BASE}")
        A(f"K2_RB{i}:")
    A("s_mov_b64 exec, -1")
    A(f"s_cmp_lg_u32 s{sMode}, 0")
    A("s_cbranch_scc1 K2_OK")
    A(f"s_cmp_gt_u32 s{sT1}, {CAP}")
    A("s_cbranch_scc1 K2_GOSLOW")
    A(f"s_cmp_eq_u32 s{sP+4}, 0")
    A("s_cbranch_scc1 K2_OK")
    A("K2_GOSLOW:")
    A(f"s_mov_b32 s{sMode}, 1")
    A(f"s_mov_b32 s{sCM}, 3")
    A(f"s_max_u32 s{sP+4}, s{sP+4}, 1")
    A(f"s_add_u32 s{sP+4}, s{sP+4}, 31")
    A(f"s_lshr_b32 s{sP+4}, s{sP+4}, 5")
    A(f"s_lshl_b32 s{sNR}, s{sP+4}, 2")
    A("s_waitcnt vmcnt(0) lgkmcnt(0)")
    A("s_barrier")
    A("s_branch K2_ROUND")
    A("K2_OK:")
    A(f"s_lshl_b32 s{sT0}, s{sGB}, 2")
    A(f"s_add_u32 s{sT0}, s{sT0}, {L_META}")
    A(f"v_add_u32 v{vMI0}, s{sT0}, v{vMI0}")
    A(f"v_add_u32 v{vMC0}, s{sT0}, v{vMC0}")
    A(f"s_lshl_b32 s{sT0}, s{sGB}, 3")
    A(f"v_add_u32 v{vBL0}, s{sT0}, v{vBL0}")
    A(f"s_lshr_b32 s{sNU}, s{sNU}, 4")
    A(f"s_sub_u32 s{sNU}, s{sNU}, 2")
    A("s_waitcnt lgkmcnt(0)")
    for i in range(8):
        A(f"s_mov_b64 exec, s[{sEX+2*i}:{sEX+2*i+1}]")
        A(f"s_cbranch_execz K2_SC{i}")
        A(f"v_add_lshl_u32 v{vA+i}, v{vA+i}, v{vAcc+4*i+3}, 2")
        A(f"v_lshlrev_b32 v{vT}, 1, v{vA+i}")
        A(f"ds_write_b32 v{vA+i}, v{vAcc+4*i+2} offset:{L_META}")
        A(f"ds_write_b64 v{vT}, v[{vAcc+4*i}:{vAcc+4*i+1}] offset:{L_COEF}")
        A(f"K2_SC{i}:")
    A("s_mov_b64 exec, -1")
    A(f"s_mov_b32 s{sPh}, 0")
    A(f"s_mov_b32 s{sQn}, 0")
    A("s_waitcnt lgkmcnt(0)")
    A("s_barrier")
    A.stamp_both("main")
    A(f"s_cmp_ge_u32 s{sW}, {NG}")
    A("s_cbranch_scc1 K2_RIDLE")

    def mads(src=vSrc):
        A(f"v_mad_u32_u16 v{vSrc}, v{src}, s{s512}, v{vDOff}")
        A(f"v_mad_u32_u16 v{vSrc+1}, v{src+1}, s{s512}, v{vDOff}")

    sMc = 24
    def dma(wait=None):
        A(f"s_mov_b32 m0, s{sMc}")
        A(wait if wait else "s_nop 0")
        A(f"buffer_load_dwordx4 v{vSrc}, s[{sX}:{sX+3}], s{sQn} offen lds")
        A(f"s_add_u32 m0, s{sMc}, 1024")
        A(f"s_xor_b32 s{sMc}, s{sMc}, 0x800")
        A(f"buffer_load_dwordx4 v{vSrc+1}, s[{sX}:{sX+3}], s{sQn} offen lds")

    def body(u, mi, miu, mc, mcu, vm=2, nodma=False, adv=False):
        A("s_waitcnt lgkmcnt(0)")
        A(f"v_xor_b32_sdwa v{vB0}, v{vNl}, v{vMy} dst_sel:WORD_1 dst_unused:UNUSED_PRESERVE src0_sel:BYTE_2 src1_sel:WORD_0")
        A(f"v_xor_b32_sdwa v{vB1}, v{vNl+1}, v{vMy} dst_sel:WORD_1 dst_unused:UNUSED_PRESERVE src0_sel:BYTE_2 src1_sel:WORD_0")
        if not nodma:
            A(f"ds_read_b64 v[{vSrc}:{vSrc+1}], v{mi} offset:{64*miu}")
        else:
            A("s_nop 0")
        A(f"ds_read_b64_tr_b16 v[{vB}:{vB+1}], v{vB0} offset:{128*u}")
        if opt.mf != 4 or not opt.hb:
            A(f"ds_read_b64_tr_b16 v[{vB+2}:{vB+3}], v{vB1} offset:{128*u+8}")
        if adv:
            A(f"v_add_u32 v{vMI}, 64, v{vMI}")
            A(f"v_add_u32 v{vB0}, 128, v{vB0}")
            A(f"v_add_u32 v{vB1}, 128, v{vB1}")
            A(f"s_add_u32 s{sI}, s{sI}, 1")
        A(f"s_waitcnt vmcnt({vm})")
        A(f"ds_read_b64_tr_b16 v[{vA}:{vA+1}], v{vA0}")
        A(f"ds_read_b64_tr_b16 v[{vA+2}:{vA+3}], v{vA0} offset:1024")
        A(f"ds_read_b64_tr_b16 v[{vA+4}:{vA+5}], v{vA1}")
        A(f"ds_read_b64_tr_b16 v[{vA+6}:{vA+7}], v{vA1} offset:1024")
        A(f"v_xor_b32 v{vA0}, 0x800, v{vA0}")
        A(f"v_xor_b32 v{vA1}, 0x800, v{vA1}")
        if nodma:
            A("s_waitcnt lgkmcnt(0)")
        else:
            A("s_waitcnt lgkmcnt(6)" if not (opt.mf == 4 and opt.hb) else "s_waitcnt lgkmcnt(5)")
            mads()
            dma("s_waitcnt lgkmcnt(0)")
        A(f"ds_read_b64 v[{vNl}:{vNl+1}], v{mc} offset:{64*mcu}")
        if adv:
            A(f"v_add_u32 v{vMC}, 64, v{vMC}")
        if opt.mf == 1:
            A(f"v_mfma_f32_32x32x16_bf16 v[{vAcc}:{vAcc+15}], v[{vA}:{vA+3}], v[{vB}:{vB+3}], v[{vAcc}:{vAcc+15}]")
            A(f"v_mfma_f32_32x32x16_bf16 v[{vAcc+16}:{vAcc+31}], v[{vA+4}:{vA+7}], v[{vB}:{vB+3}], v[{vAcc+16}:{vAcc+31}]")
        elif opt.mf == 4:
            A(f"v_mfma_f32_16x16x32_bf16 v[{vAcc}:{vAcc+3}], v[{vA}:{vA+3}], v[{vB}:{vB+3}], v[{vAcc}:{vAcc+3}]")
            A(f"v_mfma_f32_16x16x32_bf16 v[{vAcc+16}:{vAcc+19}], v[{vA+4}:{vA+7}], v[{vB}:{vB+3}], v[{vAcc+16}:{vAcc+19}]")

    A(f"s_mov_b32 s{sMc}, s{sM0}")
    A(f"ds_read_b64 v[{vSrc}:{vSrc+1}], v{vMI0}")
    A(f"ds_read_b64 v[{vA}:{vA+1}], v{vMI0} offset:64")
    A(f"ds_read_b64 v[{vNl}:{vNl+1}], v{vMC0}")
    A("s_waitcnt lgkmcnt(2)")
    mads()
    dma()
    A("s_waitcnt lgkmcnt(1)")
    mads(vA)
    dma()
    for i in range(16):
        A(f"v_mov_b32 v{vK+i}, 0")
    PR = [int(c) for c in opt.pr]
    if opt.prio: A(f"s_setprio {PR[0]}")
    A("K2_PHASE:")
    for i in range(32):
        A(f"v_mov_b32 v{vAcc+i}, 0")
    A(f"v_mov_b32 v{vMI}, v{vMI0}")
    A(f"v_mov_b32 v{vMC}, v{vMC0}")
    A(f"v_mov_b32 v{vB0}, v{vBL0}")
    A(f"v_mov_b32 v{vB1}, v{vBL0}")
    A(f"s_mov_b32 s{sI}, 0")
    A("K2_LOOP:")
    body(0, vMI, 2, vMC, 1, adv=True)
    A(f"s_cmp_lt_u32 s{sI}, s{sNU}")
    A("s_cbranch_scc1 K2_LOOP")
    A(f"s_add_u32 s{sQn}, s{sQn}, 128")
    A(f"s_cmp_eq_u32 s{sPh}, 3")
    A("s_cbranch_scc1 K2_TAIL3")
    body(0, vMI0, 0, vMC, 1)
    body(1, vMI0, 1, vMC0, 0)
    A("s_branch K2_COMB")
    A("K2_TAIL3:")
    body(0, vMI0, 0, vMC, 1, nodma=True)
    body(1, vMI0, 1, vMC0, 0, vm=0, nodma=True)
    A("K2_COMB:")
    A(f"v_and_b32 v{vA}, 3, v0")
    A(f"s_add_u32 s{sT0}, s{sPh}, 2")
    A(f"s_cmp_gt_u32 s{sT0}, 3")
    A(f"s_cselect_b32 s{sT1}, 3, 0")
    A(f"s_sub_u32 s{sT0}, s{sT0}, s{sT1}")
    A(f"v_cmp_eq_u32 vcc, s{sT0}, v{vA}")
    A(f"v_mov_b32 v{vSgn}, 1.0")
    A("s_nop 0")
    A(f"v_cndmask_b32 v{vSgn}, v{vSgn}, -1.0, vcc")
    A(f"v_cmp_ne_u32 vcc, s{sPh}, v{vA}")
    A(f"s_cmp_eq_u32 s{sPh}, 2")
    A("s_nop 0")
    A(f"v_cndmask_b32 v{vSgn}, 0, v{vSgn}, vcc")
    A("s_cbranch_scc1 K2_C2")
    A(f"s_cmp_eq_u32 s{sPh}, 1")
    A("s_cbranch_scc1 K2_C1")
    A(f"s_cmp_eq_u32 s{sPh}, 3")
    A("s_cbranch_scc1 K2_C3")
    if opt.prio: A(f"s_setprio {PR[1]}")
    for d in range(16):
        A(f"v_cvt_pk_bf16_f32 v{vP0+d}, v{vAcc+2*d}, v{vAcc+2*d+1}")
    A("s_branch K2_CEND")
    for q, perm in ((1, "[1,0,3,2]"), (2, "[2,3,0,1]"), (3, "[3,2,1,0]")):
        A(f"K2_C{q}:")
        if opt.prio: A(f"s_setprio {PR[q+1]}")
        op = "v_mul_f32_dpp" if q == 1 else "v_fmac_f32_dpp"
        for r in range(32):
            A(f"{op} v{vH+r}, v{vAcc+r}, v{vSgn} quad_perm:{perm} row_mask:0xf bank_mask:0xf")
        if q != 3: A("s_branch K2_CK")
    A("K2_CK:")
    for d in range(16):
        A(f"v_cvt_pk_bf16_f32 v{vAcc+d}, v{vAcc+2*d}, v{vAcc+2*d+1}")
    for d in range(16):
        A(f"v_cndmask_b32_dpp v{vK+d}, v{vAcc+d}, v{vK+d}, vcc quad_perm:[0,0,0,0] row_mask:0xf bank_mask:0xf")
    A("K2_CEND:")
    A.stamp_dyn("fl", 4, sPh)
    A(f"s_add_u32 s{sPh}, s{sPh}, 1")
    A(f"s_cmp_lt_u32 s{sPh}, 4")
    if opt.pbar:
        A("s_cbranch_scc0 K2_PDONE")
        A("s_barrier")
        A("s_branch K2_PHASE")
        A("K2_PDONE:")
    else:
        A("s_cbranch_scc1 K2_PHASE")

    if opt.tbar == 1: A("s_barrier")
    A.stamp_both("a3")
    vCa = vAcc
    vCb = (80, 2)
    vWa, vWb = 18, 19
    A(f"v_subrev_u32 v{vWa}, s{sM0}, v{vA0}")
    A(f"v_add_u32 v{vWa}, {L_WST}, v{vWa}")
    A(f"v_xor_b32 v{vWb}, 64, v{vWa}")
    for d in range(16):
        A(f"v_cvt_pk_bf16_f32 v{vH+d}, v{vH+2*d}, v{vH+2*d+1}")
    sets = [(0, vP0, 0), (2, vP0, 1), (1, vH, 0), (4, vH, 1), (3, vK, 1)]
    steps = []
    for ty, X, ch in sets:
        for z in range(4):
            for C in range(2):
                steps.append((ty, X, ch, z, C))
    bufs = [vA, vA + 4, vB]
    def wread(i):
        ty, X, ch, z, C = steps[i]
        bf = bufs[i % 3]
        off = ty * 8192 + z * 2048
        A(f"ds_read_b64_tr_b16 v[{bf}:{bf+1}], v{vWa if C == 0 else vWb} offset:{off}")
        A(f"ds_read_b64_tr_b16 v[{bf+2}:{bf+3}], v{vWa if C == 0 else vWb} offset:{off+1024}")
    A("s_waitcnt lgkmcnt(0)")
    wread(0); wread(1)
    started = set()
    for i, (ty, X, ch, z, C) in enumerate(steps):
        if i + 2 < len(steps):
            wread(i + 2)
            A("s_waitcnt lgkmcnt(4)")
        else:
            A(f"s_waitcnt lgkmcnt({2 * (len(steps) - 1 - i)})")
        D = (vCa + 16 * C) if ch == 0 else vCb[C]
        bf = bufs[i % 3]
        cin = f"v[{D}:{D+15}]" if (ch, C) in started else "0"
        started.add((ch, C))
        A(f"v_mfma_f32_32x32x16_bf16 v[{D}:{D+15}], v[{bf}:{bf+3}], v[{X+4*z}:{X+4*z+3}], {cin}")
    t = vP0
    A(f"v_and_b32 v{t}, 63, v0")
    A(f"v_and_b32 v{t+1}, 3, v{t}")
    A(f"v_cmp_eq_u32 vcc, 0, v{t+1}")
    A(f"v_and_b32 v{t+1}, 31, v{t}")
    A(f"v_lshrrev_b32 v{t+2}, 5, v{t}")
    A(f"v_and_b32 v{t+3}, 7, v{t}")
    A(f"v_xor_b32 v{t+2}, v{t+2}, v{t+3}")
    A(f"v_lshlrev_b32 v{t+2}, 4, v{t+2}")
    A(f"v_lshl_add_u32 v{t+2}, v{t+1}, 7, v{t+2}")
    A(f"v_add_u32 v{t+2}, s{sM0}, v{t+2}")
    A(f"v_xor_b32 v{t+3}, 32, v{t+2}")
    A(f"v_xor_b32 v{t+4}, 64, v{t+2}")
    A(f"v_xor_b32 v{t+5}, 96, v{t+2}")
    A(f"v_lshrrev_b32 v{t+6}, 3, v{t}")
    A(f"v_and_b32 v{t+7}, 1, v{t+6}")
    A(f"v_lshlrev_b32 v{t+7}, 2, v{t+7}")
    A(f"v_xor_b32 v{t+7}, v{t+7}, v{t}")
    A(f"v_and_b32 v{t+7}, 7, v{t+7}")
    A(f"v_lshlrev_b32 v{t+7}, 4, v{t+7}")
    A(f"v_lshl_add_u32 v{t+7}, v{t+6}, 9, v{t+7}")
    A(f"v_add_u32 v{t+7}, s{sM0}, v{t+7}")
    A(f"v_xor_b32 v{t+8}, 16, v{t+7}")
    A(f"v_xor_b32 v{t+9}, 32, v{t+7}")
    A(f"v_xor_b32 v{t+10}, 48, v{t+7}")
    A(f"v_and_b32 v{t+11}, 7, v{t}")
    A(f"v_lshlrev_b32 v{t+11}, 4, v{t+11}")
    A(f"v_lshl_add_u32 v{t+11}, v{t+6}, 9, v{t+11}")
    for C in range(2):
        for r in range(16):
            A(f"v_cndmask_b32 v{vCa+16*C+r}, v{vCb[C]+r}, v{vCa+16*C+r}, vcc")
    if opt.tbar == 2: A("s_barrier")
    A(f"s_cmp_eq_u32 s{sMode}, 0")
    A("s_cbranch_scc1 K2_EPI")
    A(f"s_lshl_b32 s{sT0}, s2, 4")
    A(f"s_add_u32 s{sT0}, s{sT0}, s{sW}")
    A(f"s_lshl_b32 s{sT0}, s{sT0}, 13")
    A(f"s_add_u32 s{sT0}, s{sT0}, {WS_PART}")
    A(f"v_lshl_add_u32 v{t+12}, v{t}, 7, s{sT0}")
    A(f"s_cmp_eq_u32 s{sRound}, 0")
    A("s_cbranch_scc1 K2_NOACC")
    for j in range(8):
        A(f"global_load_dwordx4 v[{vH+4*j}:{vH+4*j+3}], v{t+12}, s[{sWS}:{sWS+1}] offset:{16*j} sc1")
    A("s_waitcnt vmcnt(0)")
    for r in range(32):
        A(f"v_add_f32 v{vCa+r}, v{vCa+r}, v{vH+r}")
    A("K2_NOACC:")
    A(f"s_add_u32 s{sT0}, s{sRound}, 1")
    A(f"s_cmp_ge_u32 s{sT0}, s{sNR}")
    A("s_cbranch_scc1 K2_EPI")
    for j in range(8):
        A(f"global_store_dwordx4 v{t+12}, v[{vCa+4*j}:{vCa+4*j+3}], s[{sWS}:{sWS+1}] offset:{16*j} sc1")
    A("s_branch K2_RNEXT")
    A("K2_RIDLE:")
    if opt.pbar:
        A("s_barrier\ns_barrier\ns_barrier")
    if opt.tbar: A("s_barrier")
    A("K2_RNEXT:")
    A(f"s_cmp_eq_u32 s{sMode}, 0")
    A("s_cbranch_scc1 K2_DONE")
    A(f"s_add_u32 s{sRound}, s{sRound}, 1")
    A(f"s_cmp_ge_u32 s{sRound}, s{sNR}")
    A("s_cbranch_scc1 K2_DONE")
    A(f"s_and_b32 s{sK}, s{sRound}, 3")
    A(f"s_lshr_b32 s{sJB}, s{sRound}, 2")
    A(f"s_lshl_b32 s{sJB}, s{sJB}, 5")
    A("s_waitcnt vmcnt(0) lgkmcnt(0)")
    A("s_barrier")
    A("s_branch K2_ROUND")
    A("K2_EPI:")
    if len(PR) > 5: A(f"s_setprio {PR[5]}")
    A.stamp("s2f")
    for d in range(16):
        A(f"v_cvt_pk_bf16_f32 v{vCa+d}, v{vCa+2*d}, v{vCa+2*d+1}")
    A(f"s_mul_i32 s{sT0}, s{sB}, {BN*512}")
    A(f"s_mul_i32 s{sT1}, s{sW}, {GN*512}")
    A(f"s_add_u32 s{sT0}, s{sT0}, s{sT1}")
    for j in range(4):
        A(f"v_permlane32_swap_b32 v{vCa+4*j}, v{vCa+4*j+2}")
        A(f"v_permlane32_swap_b32 v{vCa+4*j+1}, v{vCa+4*j+3}")
        A(f"ds_write_b128 v{t+2+j}, v[{vCa+4*j}:{vCa+4*j+3}]")
    A(f"s_mov_b32 s{sT1}, 0xbfb8aa3b")
    A(f"s_mov_b32 s{sGB}, 0xffff0000")
    A(f"s_cmp_lt_u32 s{sW}, {NG-1}")
    A("s_cbranch_scc1 K2_FULL")
    A("s_mov_b64 exec, 0xffff")
    A("K2_FULL:")
    d0 = vH; g = vH + 16; tt = vH + 24
    A("s_waitcnt lgkmcnt(0)")
    for u in range(4):
        A(f"ds_read_b128 v[{d0+4*u}:{d0+4*u+3}], v{t+7+u} offset:{128*u}")
    A("s_waitcnt lgkmcnt(3)")
    A(f"buffer_store_dwordx4 v[{d0}:{d0+3}], v{t+11}, s[{sOUT}:{sOUT+3}], s{sT0} offen {opt.k2st}")
    for j in range(4):
        A(f"v_lshlrev_b32 v{g+2*j}, 16, v{d0+j}")
        A(f"v_and_b32 v{g+2*j+1}, s{sGB}, v{d0+j}")
    for j in range(8): A(f"v_mul_f32 v{g+j}, s{sT1}, v{g+j}")
    for j in range(8): A(f"v_exp_f32 v{g+j}, v{g+j}")
    for j in range(8): A(f"v_add_f32 v{g+j}, 1.0, v{g+j}")
    for j in range(8): A(f"v_rcp_f32 v{g+j}, v{g+j}")
    for u in range(1, 4):
        d = d0 + 4 * u
        A(f"s_waitcnt lgkmcnt({3-u})")
        for j in range(4):
            A(f"v_lshlrev_b32 v{tt+2*j}, 16, v{d+j}")
            A(f"v_and_b32 v{tt+2*j+1}, s{sGB}, v{d+j}")
        for j in range(4):
            A(f"v_pk_mul_f32 v[{tt+2*j}:{tt+2*j+1}], v[{tt+2*j}:{tt+2*j+1}], v[{g+2*j}:{g+2*j+1}]")
        for j in range(4):
            A(f"v_cvt_pk_bf16_f32 v{d+j}, v{tt+2*j}, v{tt+2*j+1}")
        A(f"buffer_store_dwordx4 v[{d}:{d+3}], v{t+11}, s[{sOUT}:{sOUT+3}], s{sT0} offen offset:{128*u} {opt.k2st}")
    A("K2_DONE:")
    A.stamp("st")
    A.dump_stamps(sWS, 16, vK)
    A("K2_END:")
    A("s_endpgm")
    A("K2_CODE_END:")
    if opt.stamps: print("stamps:", A.names)
    kd = f"""
.amdhsa_kernel {k}
  .amdhsa_next_free_vgpr 128
  .amdhsa_next_free_sgpr {102 if opt.stamps else 72}
  .amdhsa_accum_offset 128
  .amdhsa_group_segment_fixed_size 0
  .amdhsa_kernarg_size 96
  .amdhsa_user_sgpr_count 2
  .amdhsa_user_sgpr_kernarg_segment_ptr 1
  .amdhsa_system_sgpr_workgroup_id_x 1
  .amdhsa_float_denorm_mode_32 3
.end_amdhsa_kernel
"""
    return A.text(), kd


def main():
    ap = argparse.ArgumentParser()
    ap.add_argument("-o", default=f"cdna_kernels/{NAME}.s")
    ap.add_argument("--stamps", type=int, default=0)
    ap.add_argument("--k2st", default="sc1")
    ap.add_argument("--slp", type=int, default=2)
    ap.add_argument("--cpf", type=int, default=0)
    ap.add_argument("--mf", type=int, default=1)
    ap.add_argument("--hb", type=int, default=0)
    ap.add_argument("--xpos", type=int, default=0)
    ap.add_argument("--k1ld", default="nt")
    ap.add_argument("--xt", type=int, default=392)
    ap.add_argument("--pr", default="32210")
    ap.add_argument("--et", type=int, default=0)
    ap.add_argument("--samp", type=int, default=1)
    ap.add_argument("--wlate", type=int, default=0)
    ap.add_argument("--plain", type=int, default=0)
    ap.add_argument("--pre", type=int, default=0)
    ap.add_argument("--fst", type=int, default=0)
    ap.add_argument("--rsh", type=int, default=0)
    ap.add_argument("--tbar", type=int, default=0)
    ap.add_argument("--prio", type=int, default=2)
    ap.add_argument("--pbar", type=int, default=0)
    ap.add_argument("--aslist", type=int, default=1)
    opt = ap.parse_args()
    hdr = open(f"cdna_kernels/{NAME}.s.ref").read().split("\n")
    head = [l for l in hdr if l.startswith(";") and "@launch" not in l and "Override launch" not in l and "grid=ceil" not in l]
    t2, kd2 = gen(opt)
    desc = """;
;     12-byte records {a, a*Yx, a*Yy, a*Yz, src|node|bin} plus a row of tagged {offset,count} granules (write-through).
"""
    out = "\n".join(head) + "\n" + desc
    if opt.aslist:
        out += f"; @launch kernel={NAME}_kernel grid=({NB},1,1) block=(1024,1,1) lds={K2_LDS}\n"
    else:
        out += f"; @launch grid=({NB},1,1) block=(1024,1,1) lds={K2_LDS}\n"
    out += '.amdgcn_target "amdgcn-amd-amdhsa--gfx950"\n.text\n' + t2
    out += '.section .rodata,"a"\n.p2align 6\n' + kd2
    open(opt.o, "w").write(out)


if __name__ == "__main__":
    main()
```
